```python
import torch

def _softmax(x, axis=-1):
    return torch.softmax(x, dim=axis)
def _gelu(x):
    return torch.nn.functional.gelu(x, approximate="tanh")
def _silu(x):
    return torch.nn.functional.silu(x)
def _sigmoid(x):
    return torch.sigmoid(x)
def _layernorm(x, axis=-1, eps=1e-5):
    m = x.mean(dim=axis, keepdim=True)
    v = x.var(dim=axis, keepdim=True, unbiased=False)
    return (x - m) / torch.sqrt(v + eps)
def _scatter_add(tgt, idx, src, axis=0):
    return tgt.clone().index_add_(axis, idx, src)
def _segment_sum(src, seg, n):
    out = torch.zeros((n,) + src.shape[1:], dtype=src.dtype)
    return out.index_add_(0, seg, src)
def _pad(x, pw):
    flat = tuple(v for pair in reversed(pw) for v in pair)
    return torch.nn.functional.pad(x, flat)

kernel_name = 'interleave_layers__spectral_gfnet__linear_attn_block__prompt'

def setup_inputs():

    _w = (lambda a: (lambda t: t.to(torch.bfloat16) if t.is_floating_point() else t)(torch.as_tensor(a)))
    def _A_setup():
        B, S, D = 1, 2048, 640
        Df = D // 2 + 1
        return {
            "x": _w((lambda *s: torch.randn(*s, dtype=torch.bfloat16) * 0.05)(B, S, D)),
            "w_r": _w((lambda *s: torch.randn(*s, dtype=torch.bfloat16) * 0.4)(S, Df) * 0.02),
            "w_i": _w((lambda *s: torch.randn(*s, dtype=torch.bfloat16) * 0.4)(S, Df) * 0.02),
        }
    _A_in = _A_setup()

    def _B_setup():
        B, S, D = 1, 2048, 640
        return {
            "x": _w((lambda *s: torch.randn(*s, dtype=torch.bfloat16) * 0.05)(B, S, D)),
            "wqkv": _w((lambda *s: torch.randn(*s, dtype=torch.bfloat16) * 0.05)(D, 3 * D)),
            "wo": _w((lambda *s: torch.randn(*s, dtype=torch.bfloat16) * 0.05)(D, D)),
        }
    _B_in = _B_setup()

    return {
        "A_x": _A_in["x"],
        "A_w_r": _A_in["w_r"],
        "A_w_i": _A_in["w_i"],
        "B_x": _B_in["x"],
        "B_wqkv": _B_in["wqkv"],
        "B_wo": _B_in["wo"],
    }

def reference(A_x, A_w_r, A_w_i, B_x, B_wqkv, B_wo):
    def _A_ref(x, w_r, w_i):
        B, S, D = x.shape
        X = (lambda x, axes=(-2,-1): torch.fft.rfft2(x.float(), dim=axes))(x, axes=(-2, -1))
        W = w_r + 1j * w_i
        X = X * W
        y = (lambda x, s, axes=(-2,-1): torch.fft.irfft2(x, s=s, dim=axes).to(torch.bfloat16))(X, (S, D), axes=(-2, -1))
        return y

    def _B_ref(x, wqkv, wo):
        B, S, D = x.shape
        H = 32; Dh = D // H
        qkv = (lambda x, *d: x.permute(*d))((x @ wqkv).reshape(B, S, 3, H, Dh), 2, 0, 3, 1, 4)
        q, k, v = qkv[0], qkv[1], qkv[2]
        phi = lambda t: torch.where(t > 0, t + 1, torch.exp(t)) + 1e-6
        pq, pk = phi(q), phi(k)
        kv = torch.einsum("bhsd,bhse->bhde", pk, v)
        z = torch.einsum("bhsd->bhd", pk)
        num = torch.einsum("bhqd,bhde->bhqe", pq, kv)
        den = torch.einsum("bhqd,bhd->bhq", pq, z)[..., None] + 1e-6
        o = num / den
        return (lambda x, *d: x.permute(*d))(o, 0, 2, 1, 3).reshape(B, S, D) @ wo

    x = A_x
    x = x + _A_ref(_layernorm(x, axis=-1), A_w_r, A_w_i)
    x = x + _B_ref(_layernorm(x, axis=-1), B_wqkv, B_wo)
    x = x + _A_ref(_layernorm(x, axis=-1), A_w_r, A_w_i)
    x = x + _B_ref(_layernorm(x, axis=-1), B_wqkv, B_wo)
    return x
```

```python
import re

TRANS = ("v_exp_f32","v_log_f32","v_rcp_f32","v_rsq_f32","v_sqrt_f32","v_sin_f32","v_cos_f32","v_rcp_iflag_f32")
_reg = re.compile(r"^(-|abs\()?([vas])(?:(\d+)|\[(\d+):(\d+)\])\)?$")

def regs(tok):
    tok = tok.strip()
    if tok in ("vcc",): return {("s","vcc")}
    if tok in ("vcc_lo","vcc_hi"): return {("s","vcc")}
    if tok in ("exec","exec_lo","exec_hi"): return {("s","exec")}
    if tok == "m0": return {("s","m0")}
    t = tok
    if t.startswith("-"): t = t[1:]
    if t.startswith("|") and t.endswith("|"): t = t[1:-1]
    if t.startswith("abs(") : t = t[4:-1]
    m = re.match(r"^([vas])(?:(\d+)|\[(\d+):(\d+)\])$", t)
    if not m: return set()
    k = m.group(1)
    if m.group(2) is not None: return {(k,int(m.group(2)))}
    return {(k,i) for i in range(int(m.group(3)), int(m.group(4))+1)}

class Ins:
    __slots__=("text","op","ops","mods","cls","defs","uses","passes","srcc","srcab","dpp","wide_store_data","is_trans","nop","label","branch")
    def __init__(s, text):
        s.text=text; s.label=None; s.branch=None
        body=text.split(";")[0].strip()
        s.defs=set(); s.uses=set(); s.passes=0; s.srcc=set(); s.srcab=set(); s.dpp=False; s.wide_store_data=set(); s.is_trans=False; s.nop=1
        s.cls="none"; s.op=""; s.ops=[]; s.mods=""
        if not body or body.startswith("."):
            if body.endswith(":"): s.label=body[:-1]
            s.nop=0; return
        if body.endswith(":"):
            s.label=body[:-1]; s.nop=0; return
        parts=body.split(None,1); s.op=parts[0]
        rest=parts[1] if len(parts)>1 else ""
        mm=re.search(r"\s+[a-z_0-9]+:", rest)
        m2=""
        if mm: m2=rest[mm.start():]; rest=rest[:mm.start()]
        toks=[t.strip() for t in rest.split(",")] if rest else []
        if toks:
            last=toks[-1].split()
            toks[-1]=last[0] if last else ""
            s.mods=" ".join(last[1:])+" "+m2
        s.ops=toks
        op=s.op
        R=[regs(t) for t in toks]
        if op.startswith("v_mfma"):
            s.cls="mfma"; s.defs=R[0]; s.srcab=R[1]|R[2]; s.srcc=R[3]; s.uses=s.srcab|s.srcc
            s.passes=4 if "16x16x32" in op else 8 if "32x32x16" in op else None
            assert s.passes, op
        elif op.startswith("v_"):
            s.cls="valu"
            base=op.replace("_e32","").replace("_e64","").replace("_dpp","")
            s.is_trans = base in TRANS
            s.dpp = ("quad_perm" in s.mods or "row_" in s.mods or "wave_" in s.mods or op.endswith("_dpp"))
            if base.startswith("v_cmp"):
                s.defs=R[0]; s.uses=set().union(*R[1:])
                if base.startswith("v_cmpx"): s.defs|={("s","exec")}
            elif base in ("v_add_co_u32","v_sub_co_u32","v_addc_co_u32","v_subb_co_u32","v_subrev_co_u32"):
                s.defs=R[0]|R[1]; s.uses=set().union(*R[2:])
            elif base.startswith("v_permlane") or base=="v_swap_b32":
                s.defs=R[0]|R[1]; s.uses=R[0]|R[1]
            elif base=="v_nop": pass
            else:
                s.defs=R[0]; s.uses=set().union(*R[1:]) if len(R)>1 else set()
                if base in ("v_fmac_f32","v_dot2c_f32_bf16","v_pk_fmac_f16","v_writelane_b32") or s.dpp: s.uses|=R[0]
        elif op.startswith("buffer_") or op.startswith("global_"):
            s.cls="vmem"
            allm=" "+s.mods+" "
            if "_load" in op:
                if " lds " in allm or op.startswith("global_load_lds"):
                    s.uses=set().union(*R)|{("s","m0")}
                else:
                    s.defs=R[0]; s.uses=set().union(*R[1:])
            elif "_store" in op:
                s.uses=set().union(*R)
                data=R[0] if op.startswith("buffer_") else R[1]
                if "x3" in op or "x4" in op: s.wide_store_data=data
            elif "_atomic" in op:
                s.uses=set().union(*R)
                if " sc0 " in allm: s.defs=R[0]
            else: pass
        elif op.startswith("ds_"):
            s.cls="ds"
            if op.startswith("ds_read") or "permute" in op or "swizzle" in op or "_rtn" in op:
                s.defs=R[0]; s.uses=set().union(*R[1:])
            else: s.uses=set().union(*R)
        elif op.startswith("s_"):
            s.cls="salu"
            if op=="s_nop": s.nop=int(toks[0],0)+1
            elif op.startswith("s_cbranch") or op=="s_branch": s.branch=toks[0]
            elif op.startswith("s_cmp") or op in("s_waitcnt","s_barrier","s_endpgm","s_setprio","s_sleep","s_bitcmp0_b32","s_bitcmp1_b32"):
                s.uses=set().union(*R) if R else set()
            else:
                s.defs=R[0] if R else set(); s.uses=set().union(*R[1:]) if len(R)>1 else set()
                if "saveexec" in op: s.defs|={("s","exec")}
        else:
            raise ValueError("unknown instruction: "+text)

def need(p, c):
    n=0
    vd = {r for r in p.defs if r[0] in "va"}
    sd = {r for r in p.defs if r[0]=="s"}
    if p.cls=="valu":
        isdot = p.op.startswith("v_dot")
        if c.cls=="mfma" and vd & c.uses: n=max(n,3 if isdot else 2)
        if c.cls=="mfma" and ("s","exec") in sd: n=max(n,4)
        if p.is_trans and (vd & c.uses) and not (c.cls=="valu" and c.is_trans): n=max(n,1)
        if isdot and (vd & (c.uses|c.defs)):
            same = c.op==p.op
            if same and not (vd & set().union(*[regs(t) for t in c.ops[1:3]])): pass
            else: n=max(n,3)
        if c.cls=="valu":
            if c.dpp and vd & c.uses: n=max(n,2)
            if c.dpp and ("s","exec") in sd: n=max(n,5)
            if c.op.startswith("v_permlane") and vd & c.uses: n=max(n,2)
            if c.op.startswith("v_permlane") and ("s","exec") in sd: n=max(n,4)
            if c.op.startswith(("v_readlane","v_readfirstlane")) and vd & c.uses: n=max(n,1)
            if c.op.startswith(("v_readlane","v_readfirstlane","v_writelane")) and ("s","exec") in sd: n=max(n,4)
            if sd & c.uses:
                n=max(n,4 if c.op.startswith(("v_readlane","v_writelane","v_div_fmas")) else 2)
        if c.cls=="vmem" and sd & c.uses: n=max(n,5)
        if c.cls=="salu" and sd & c.uses: n=max(n,1)
    elif p.cls=="mfma":
        big = {4:8, 8:12}[p.passes]
        if c.cls=="mfma":
            if vd & c.srcab: n=max(n,big)
            if vd & c.srcc:
                if c.srcc==vd and c.passes==p.passes: pass
                else: n=max(n,big-2)
            elif vd & c.defs: n=max(n,big)
        elif c.cls=="valu":
            if vd & (c.uses|c.defs): n=max(n,big)
            if p.srcc & c.defs: n=max(n,{4:3,8:7}[p.passes])
        elif c.cls in ("vmem","ds"):
            if vd & (c.uses|c.defs): n=max(n,big)
    elif p.cls=="vmem":
        if p.wide_store_data and (p.wide_store_data & c.defs):
            n=max(n,2 if c.cls in("valu","mfma") else 1)
    elif p.cls=="salu":
        if ("s","m0") in sd and ("s","m0") in c.uses and c.cls in ("vmem","ds"): n=max(n,1)
    return n

def fix_hazards(lines):
    ins=[Ins(l) for l in lines]
    labels={i.label:k for k,i in enumerate(ins) if i.label}
    out=[]; win=[]
    WIN=14
    def required(window, seq):
        extra=0; d_after=0
        for c in seq:
            if c.nop==0: continue
            d=d_after
            for p in reversed(window):
                r=need(p,c)
                if r>d: extra=max(extra,r-d)
                d+=p.nop
                if d>=WIN: break
            d_after+=c.nop
            if d_after>=WIN or c.op in("s_branch","s_endpgm"): break
        return extra
    def addnop(n):
        while n>0:
            k=min(n,16); x=Ins("    s_nop %d"%(k-1)); out.append(x); win.append(x); n-=k
    for k,c in enumerate(ins):
        if c.nop==0:
            out.append(c); continue
        e=required(win,[c])
        if e: addnop(e)
        if c.branch and c.branch in labels:
            tgt=ins[labels[c.branch]:labels[c.branch]+40]
            e=required(win+[c],tgt)
            if e: addnop(e)
        out.append(c); win.append(c)
        if c.op in ("s_branch","s_endpgm"): win=[]
        if len(win)>40: win=win[-40:]
    return [i.text for i in out]

class Asm:
    def __init__(s): s.l=[]; s.uid=0
    def __call__(s, text):
        for t in text.split("\n"):
            t=t.strip()
            if t: s.l.append(t if t.endswith(":") or t.startswith(".") else "    "+t)
    def label(s,name): s.l.append(name+":")
    def newlabel(s,p="L"): s.uid+=1; return "%s_%d"%(p,s.uid)
    def text(s): return "\n".join(fix_hazards(s.l))+"\n"

def v(a,n=1): return "v%d"%a if n==1 else "v[%d:%d]"%(a,a+n-1)
def sr(a,n=1): return "s%d"%a if n==1 else "s[%d:%d]"%(a,a+n-1)
import struct
def f2u(x): return "0x%08x"%struct.unpack("<I",struct.pack("<f",x))[0]
```

```python
import sys, math
sys.path.insert(0, "gen")
from asmlib import *

NAME = "interleave_layers__spectral_gfnet__linear_attn_block__prompt"
XB = 2621440
X0, X1, X2, X3 = 0, XB, 2*XB, 3*XB
O4 = 5*XB
O2 = 13*XB
KVP = 14*XB
Y3 = 6*XB
WT = 11*XB
WQF = 8*XB
WOF = WQF + 32*102400
WOR = WOF + 819200
ZA = 10*XB
VAR0 = ZA; CNT0 = ZA + 8192
ZC = KVP + 2*256*1792
VAR2 = ZC; VAR1 = VAR2 + 8192; VAR3 = VAR1 + 8192
LSS = VAR3 + 8192
CNT1 = LSS + 32768
ZCEND = CNT1 + 5*16384
def CNTB(b): return CNT0 + b*16384 if b<2 else CNT1 + (b-1)*16384
RXS = [4,2]
DBGW = 10*XB + 1048576
WS_SIZE = 15*XB
OOB = 0x7ff00000

SW,SX,SA,ST,SI = "s3","s4","s5","s6","s7"
SH = "s71"
SR = "s80"
SROT = "s68"
R_X,R_WR,R_WI,R_WQKV,R_WO,R_OUT,R_WS,R_DBG = ["s[%d:%d]"%(8+4*i,11+4*i) for i in range(8)]
VL,VN,VG,VL16 = "v1","v2","v3","v4"
M16 = "v_mfma_f32_16x16x32_bf16"
STAMPS = False
EXP = set()

def pst(a, i):
    if STAMPS: a(f"s_memrealtime s[{84+2*i}:{85+2*i}]")
def pflush(a, k):
    if not STAMPS: return
    a("s_waitcnt lgkmcnt(0)")
    a(f"""
    s_lshl_b32 s58, s2, 3
    s_add_u32 s58, s58, {SW}
    s_lshl_b32 s58, s58, 5
    s_add_u32 s58, s58, {DBGW + k*65536}
    v_lshlrev_b32 v255, 2, {VL}
    """)
    for i in range(8): a(f"v_writelane_b32 v254, s{84+2*i}, {i}")
    a(f"""
    s_mov_b64 exec, 0xff
    buffer_store_dword v254, v255, {R_WS}, s58 offen
    s_mov_b64 exec, -1
    """)
    for i in range(84,100): a(f"s_mov_b32 s{i}, 0")

def prologue(a):
    a(f"""
    s_cmp_ge_u32 s2, 256
    s_cbranch_scc1 kexit
    s_load_dwordx16 s[40:55], s[0:1], 0
    s_load_dwordx2 s[56:57], s[0:1], 64
    v_and_b32 {VL}, 63, v0
    v_lshrrev_b32 v5, 6, v0
    v_and_b32 {VN}, 15, v0
    v_bfe_u32 {VG}, v0, 4, 2
    v_readfirstlane_b32 {SW}, v5
    v_lshlrev_b32 {VL16}, 4, {VL}
    s_and_b32 {SX}, s2, 7
    s_bfe_u32 {SA}, s2, 0x20003
    s_lshr_b32 {ST}, s2, 5
    s_lshl_b32 {SI}, {SX}, 2
    s_add_u32 {SI}, {SI}, {SA}
    s_mov_b32 s83, 0
    s_mov_b32 s79, 0
    v_mov_b32 v252, 0
    s_and_b32 s60, {SW}, 3
    s_lshr_b32 s61, {SW}, 2
    s_and_b32 s62, {SW}, 1
    s_lshl_b32 s62, s62, 2
    s_bfe_u32 s63, {SW}, 0x10001
    s_and_b32 s72, {ST}, 1
    s_lshl_b32 s72, s72, 2
    s_add_u32 s72, s72, {SX}
    s_and_b32 s72, s72, 7
    s_lshl_b32 s73, {SA}, 3
    s_add_u32 s72, s72, s73
    s_mul_i32 s73, {ST}, 20
    s_add_u32 s73, s73, s72
    s_waitcnt lgkmcnt(0)
    """)
    for srd, src, size in ((8,40,2621440),(32,56,WS_SIZE),(20,48,2457600),(12,42,1314816),(16,44,1314816),(24,50,819200),(28,52,2621440),(36,54,256)):
        a(f"""
        s_mov_b32 s{srd}, s{src}
        s_and_b32 s{srd+1}, s{src+1}, 0xffff
        s_mov_b32 s{srd+2}, {size}
        s_mov_b32 s{srd+3}, 0x20000
        """)

def zero_issue(a):
    L = a.newlabel("zi")
    a(f"""
    s_cmp_lg_u32 s2, 0
    s_cbranch_scc1 {L}
    s_cmp_lg_u32 {SW}, 6
    s_cbranch_scc1 {L}
    v_mov_b32 v8, 0
    v_mov_b32 v9, 0
    v_mov_b32 v10, 0
    v_mov_b32 v11, 0
    s_mov_b32 s40, {VAR0}
    s_mov_b32 s41, {VAR0+4096}
    s_mov_b32 s42, {CNT0}
    v_lshlrev_b32 v12, 8, {VL}
    buffer_store_dword v8, v12, {R_WS}, s42 offen sc1
    s_mov_b32 s42, {CNT0+16384}
    buffer_store_dword v8, v12, {R_WS}, s42 offen sc1
    """)
    for j in range(8):
        a(f"buffer_store_dwordx4 v[8:11], {VL16}, {R_WS}, s{40+(j>>2)} offen offset:{1024*(j&3)} sc1")
    a.label(L)

def zero_signal(a):
    L = a.newlabel("zs")
    a(f"""
    s_cmp_lg_u32 s2, 0
    s_cbranch_scc1 {L}
    s_cmp_lg_u32 {SW}, 6
    s_cbranch_scc1 {L}
    v_mov_b32 v254, 1
    v_mov_b32 v255, 0
    s_waitcnt vmcnt(0)
    s_mov_b64 exec, 1
    buffer_store_dword v254, v255, {R_DBG}, 0 offen sc1
    s_mov_b64 exec, -1
    {L}:
    """)

def zfill(a, base, nchunks, rounds, zr):
    for k in range(4): a(f"v_mov_b32 v{zr+k}, 0")
    a(f"""
    s_lshl_b32 s40, {SW}, 8
    s_add_u32 s40, s40, s2
    s_lshl_b32 s41, s40, 10
    s_add_u32 s41, s41, {base}
    """)
    L=a.newlabel("zf")
    for i in range(rounds):
        if (i+1)*2048>nchunks: a(f"s_cmp_ge_u32 s40, {nchunks-i*2048}\n s_cbranch_scc1 {L}")
        a(f"buffer_store_dwordx4 {v(zr,4)}, {VL16}, {R_WS}, s41 offen sc1")
        if i<rounds-1: a(f"s_add_u32 s41, s41, {2048*1024}")
    a.label(L)

SPIN = 40000
def retry_check(a, Lfail_tag, Lback, Ldone, tag):
    a(f"""
    s_cmp_lg_u32 s83, 0
    s_cbranch_scc1 {Ldone}
    s_sub_u32 s58, s58, 1
    s_cmp_lg_u32 s58, 0
    s_cbranch_scc1 {Lback}
    s_mov_b32 s83, {tag}
    v_mov_b32 v254, {tag}
    v_mov_b32 v255, 16
    buffer_store_dword v254, v255, {R_DBG}, 0 offen
    s_branch {Ldone}
    """)

def poll(a, srd, soff, vaddr, target, tag):
    Lp=a.newlabel("poll"); Ld=a.newlabel("polld")
    a(f"""
    s_mov_b32 s58, {SPIN}
    s_cmp_lg_u32 s83, 0
    s_cbranch_scc1 {Ld}
    {Lp}:
    buffer_load_dword v254, {vaddr}, {srd}, {soff} offen sc1
    s_waitcnt vmcnt(0)
    v_cmp_gt_u32 vcc, {target}, v254
    s_cmp_eq_u64 vcc, 0
    s_cbranch_scc1 {Ld}
    s_sub_u32 s58, s58, 1
    s_cmp_lg_u32 s58, 0
    s_cbranch_scc1 {Lp}
    s_mov_b32 s83, {tag}
    v_mov_b32 v254, {tag}
    v_mov_b32 v255, 16
    buffer_store_dword v254, v255, {R_DBG}, 0 offen
    {Ld}:
    """)

def init_probe(a):
    L=a.newlabel("ip")
    a(f"""
    s_cmp_lg_u32 {SW}, 6
    s_cbranch_scc1 {L}
    v_mov_b32 v255, 0
    buffer_load_dword v253, v255, {R_DBG}, 0 offen sc1
    {L}:
    """)

def init_wait(a):
    L=a.newlabel("iw")
    a(f"""
    v_cmp_gt_u32 vcc, 1, v253
    s_cmp_eq_u64 vcc, 0
    s_cbranch_scc1 {L}
    v_mov_b32 v255, 0
    """)
    poll(a, R_DBG, 0, "v255", 1, 100)
    a.label(L)

def drain(a): a("s_waitcnt vmcnt(0) lgkmcnt(0)\n s_barrier")

def arrive(a, beta):
    L=a.newlabel("arr")
    a(f"""
    s_cmp_lg_u32 {SW}, 6
    s_cbranch_scc1 {L}
    s_and_b32 s59, s2, 15
    s_lshl_b32 s59, s59, 8
    s_add_u32 s59, s59, {CNTB(beta)}
    v_lshlrev_b32 v255, 12, {VL}
    v_mov_b32 v254, 1
    s_mov_b64 exec, 15
    buffer_atomic_add v254, v255, {R_WS}, s59 offen sc1
    s_mov_b64 exec, -1
    {L}:
    """)

def bar_target(a, beta):
    lo = 4 if beta in (1,5) else 12
    a(f"v_cmp_gt_u32 vcc, 8, {VN}\n v_mov_b32 v253, {lo}\n v_cndmask_b32 v253, 8, v253, vcc")

def wait(a, beta, bar=True, target=16):
    L=a.newlabel("wt")
    a(f"""
    s_cmp_lg_u32 {SW}, 7
    s_cbranch_scc1 {L}
    s_and_b32 s59, s2, 3
    s_lshl_b32 s59, s59, 12
    s_add_u32 s59, s59, {CNTB(beta)}
    v_lshlrev_b32 v255, 8, {VN}
    """)
    if beta in (1,2,4,5):
        bar_target(a, beta); target="v253"
    poll(a, R_WS, "s59", "v255", target, beta+1)
    a.label(L)
    if bar: a("s_barrier")

def larrive(a, soff):
    a(f"""
    v_mov_b32 v255, 0
    v_mov_b32 v254, 1
    s_mov_b64 exec, 1
    buffer_atomic_add v254, v255, {R_WS}, {soff} offen sc1
    s_mov_b64 exec, -1
    """)

FT = 0
AL = 51200
RS = 102400
VARL = 147456
def gen_ftile(a, selector=False, mid=None):
    Lp=a.newlabel("ft")
    a(f"s_mov_b32 s40, {SW}")
    if not selector:
        a(f"""
        v_and_b32 v8, 1, {VN}
        v_cvt_f32_u32 v8, v8
        v_mul_f32 v8, 0.25, v8
        v_lshrrev_b32 v9, 1, {VN}
        s_mul_i32 s44, {ST}, 40
        s_add_u32 s44, s44, 1
        v_add_u32 v9, s44, v9
        v_lshlrev_b32 v10, 3, {VG}
        s_mov_b32 s45, {f2u(1.0/640)}
        v_mov_b32 v28, 0.125
        v_sub_f32 v29, 0.5, v8
        v_sub_f32 v29, v29, v8
        """)
    else:
        a(f"""
        v_lshrrev_b32 v9, 2, {VN}
        v_mul_u32_u24 v9, 20, v9
        v_and_b32 v8, 3, {VN}
        v_add_u32 v9, v9, v8
        s_and_b32 s44, {ST}, 3
        s_mul_i32 s44, s44, 80
        v_add_u32 v9, s44, v9
        v_lshlrev_b32 v10, 3, {VG}
        v_sub_u32 v9, v9, v10
        v_mov_b32 v28, 0x3f80
        v_mov_b32 v29, 0x3f800000
        """)
    a.label(Lp)
    a(f"""
    s_mul_i32 s41, s40, 52
    s_lshr_b32 s41, s41, 8
    s_mul_i32 s42, s41, 5
    s_sub_u32 s42, s40, s42
    s_lshl_b32 s43, s40, 10
    v_add_u32 v30, s43, {VL16}
    """)
    if not selector:
        a(f"""
        s_lshl_b32 s42, s42, 3
        s_lshl_b32 s41, s41, 5
        v_add_u32 v11, s42, v9
        v_add_u32 v12, s41, v10
        v_cmp_eq_u32 vcc, 0x140, v11
        v_cvt_f32_u32 v13, v11
        v_cvt_f32_u32 v12, v12
        v_mul_f32 v13, s45, v13
        v_cndmask_b32 v14, v8, v28, vcc
        v_cndmask_b32 v13, v13, v29, vcc
        v_fma_f32 v16, v12, v13, v14
        v_cos_f32 v15, v13
        v_add_f32 v17, v16, v13
        v_cos_f32 v16, v16
        v_cos_f32 v17, v17
        v_add_f32 v15, v15, v15
        """)
        for i in range(2,8): a(f"v_fma_f32 v{16+i}, v15, v{15+i}, -v{14+i}")
        for i in range(4): a(f"v_cvt_pk_bf16_f32 v{24+i}, v{16+2*i}, v{17+2*i}")
    else:
        a(f"""
        s_lshl_b32 s42, s42, 2
        s_lshl_b32 s41, s41, 5
        s_sub_u32 s42, s42, s41
        v_add_u32 v11, s42, v9
        """)
        for q in range(4):
            a(f"""
            v_cmp_eq_u32 vcc, {2*q}, v11
            v_cndmask_b32 v{24+q}, 0, v28, vcc
            v_cmp_eq_u32 vcc, {2*q+1}, v11
            v_cndmask_b32 v{24+q}, v{24+q}, v29, vcc
            """)
    a(f"""
    ds_write_b128 v30, v[24:27] offset:{FT}
    s_add_u32 s40, s40, 8
    s_cmp_lt_u32 s40, 50
    s_cbranch_scc1 {Lp}
    """)

def l2_touch(a):
    L1=a.newlabel("tc1"); L2=a.newlabel("tc2"); L3=a.newlabel("tc3"); L4=a.newlabel("tc4")
    a(f"""
    s_cmp_ge_u32 {SW}, 4
    s_cbranch_scc1 {L3}
    s_cmp_lg_u32 {SW}, 3
    s_cbranch_scc1 {L2}
    v_lshlrev_b32 v8, 7, {VL}
    s_mul_i32 s40, s2, 3200
    v_min_u32 v9, {24*128}, v8
    buffer_load_dword v254, v9, {R_WO}, s40 offen
    s_branch {L2}
    {L3}:
    s_and_b32 s40, {SW}, 1
    s_lshl_b32 s40, s40, 6
    v_add_u32 v8, s40, {VL}
    v_min_u32 v8, 79, v8
    s_cmp_ge_u32 {SW}, 6
    s_cbranch_scc1 {L1}
    v_mul_u32_u24 v9, 205, v8
    v_lshrrev_b32 v9, 11, v9
    v_mul_u32_u24 v10, 10, v9
    v_sub_u32 v10, v8, v10            ; line
    v_and_b32 v11, 3, v9              ; s2&3
    v_lshrrev_b32 v9, 2, v9
    s_lshl_b32 s40, {SA}, 4
    s_lshl_b32 s41, {ST}, 1
    s_add_u32 s40, s40, s41
    v_add_u32 v9, s40, v9             ; s1
    v_lshl_add_u32 v9, v9, 5, v11
    s_lshl_b32 s40, {SX}, 2
    v_add_u32 v9, s40, v9
    v_mul_u32_u24 v9, 1280, v9
    v_lshl_add_u32 v9, v10, 7, v9
    buffer_load_dword v254, v9, {R_X}, 0 offen
    s_branch {L2}
    {L1}:
    s_mul_i32 s40, {ST}, 80
    v_add_u32 v8, s40, v8
    v_mul_u32_u24 v8, 3840, v8
    s_lshl_b32 s40, {SI}, 7
    s_cmp_ge_u32 {SI}, 30
    s_cselect_b32 s40, {OOB}, s40
    buffer_load_dword v254, v8, {R_WQKV}, s40 offen
    {L2}:
    """)

class LQ:
    def __init__(s,a): s.a=a; s.q=[]
    def op(s,text,tag): s.a(text); s.q.append(tag)
    def need(s,*tags):
        idx=[i for i,t in enumerate(s.q) if t in tags]
        if not idx: return
        n=len(s.q)-1-max(idx)
        s.a(f"s_waitcnt lgkmcnt({min(n,15)})")
        s.q=s.q[len(s.q)-min(n,15):] if n else []

AC = 24
SB = 44
PF = 84
WQR = 124
def g640_core(a, swapped, vbase, wait_priv=None):
    def rd(j):
        for nt in range(5):
            a(f"ds_read_b128 {v(SB+20*(j&1)+4*nt,4)}, {vbase} offset:{(j*5+nt)*1024}")
    rd(0)
    for j in range(10):
        if j<9: rd(j+1)
        if wait_priv: wait_priv(j)
        a(f"s_waitcnt lgkmcnt({5 if j<9 else 0})")
        for nt in range(5):
            p=v(PF+4*j,4); s=v(SB+20*(j&1)+4*nt,4); d=v(AC+4*nt,4)
            c = d if j else "0"
            if swapped: a(f"{M16} {d}, {s}, {p}, {c}")
            else:       a(f"{M16} {d}, {p}, {s}, {c}")

def xe_prep(a, fraglin, s_res=None, sign=None):
    a(f"""
    v_lshrrev_b32 v10, 3, {VL}
    v_and_b32 v11, 7, {VL}
    s_lshl_b32 s42, s60, 3
    """)
    if sign: a(f"v_and_b32 {sign}, 2, v10\n v_cvt_f32_u32 {sign}, {sign}\n v_subrev_f32 {sign}, 1.0, {sign}")
    if fraglin:
        a(f"""
        v_lshrrev_b32 v9, 1, v11
        v_lshlrev_b32 v9, 8, v9
        v_lshl_add_u32 v9, v10, 4, v9
        v_and_b32 v8, 1, v11
        v_lshl_add_u32 v9, v8, 3, v9
        s_mul_i32 s43, s61, 5120
        s_lshl_b32 s44, s63, 10
        s_add_u32 s43, s43, s44
        s_lshl_b32 s44, s62, 5
        s_add_u32 s43, s43, s44
        v_add_u32 v9, s43, v9
        """)
    else:
        a(f"""
        s_mul_i32 s43, s61, 40960
        s_lshl_b32 s44, s60, 9
        s_add_u32 s43, s43, s44
        v_lshlrev_b32 v9, 3, {VL}
        v_add_u32 v9, s43, v9
        """)
    a(f"""
    v_xor_b32 v11, v11, v10
    v_lshlrev_b32 v11, 4, v11
    v_lshl_add_u32 v10, v10, 7, v11
    s_mul_i32 s43, s61, 10240
    s_lshl_b32 s44, s60, 10
    s_add_u32 s43, s43, s44
    s_add_u32 s43, s43, {RS}
    v_add_u32 v10, s43, v10
    v_lshlrev_b32 v8, 1, {VG}
    s_lshr_b32 s44, s62, 2
    v_add_u32 v8, s44, v8
    v_and_b32 v11, 7, {VN}
    v_xor_b32 v8, v8, v11
    v_lshlrev_b32 v8, 4, v8
    v_lshl_add_u32 v8, {VN}, 7, v8
    s_mul_i32 s43, s61, 20480
    s_mul_i32 s44, s63, 10240
    s_add_u32 s43, s43, s44
    s_add_u32 s43, s43, {RS}
    v_add_u32 v8, s43, v8
    """)
    if s_res:
        a(f"""
        s_add_u32 s46, {s_res}, 4096
        s_cmp_ge_u32 s60, 2
        s_cselect_b32 s46, {OOB}, s46
        buffer_load_dwordx2 v[12:13], v9, {R_WS}, {s_res} offen sc1
        buffer_load_dwordx2 v[14:15], v9, {R_WS}, {s_res} offen offset:2048 sc1
        buffer_load_dwordx2 v[16:17], v9, {R_WS}, s46 offen sc1
        """)

def xtype_epilogue(a, s_dst, res=False, s_var=None, vm0=None, vm1=None, pre_bar=None, AC=AC, T=SB, extra_write=None, extra_work=None):
    for nt in range(5): a(f"ds_write_b128 v8, {v(AC+4*nt,4)} offset:{nt*2048}")
    if s_var:
        a(f"""
        """)
    if extra_write: extra_write()
    a(f"""
    s_add_u32 s46, {s_dst}, 4096
    s_cmp_ge_u32 s60, 2
    s_cselect_b32 s46, {OOB}, s46
    s_cselect_b32 s47, 0, 1.0
    """)
    if res:
        a("s_waitcnt vmcnt(0)")
        for q in range(6):
            a(f"v_lshlrev_b32 v{T+24+2*q}, 16, v{12+q}")
            a(f"v_and_b32 v{T+25+2*q}, 0xffff0000, v{12+q}")
    if s_var:
        a(f"""
        v_mov_b32 v18, s47
        s_cmp_eq_u32 {ST}, 7
        s_cselect_b32 s47, 1, 99
        s_cmp_eq_u32 s60, s47
        s_cselect_b32 s47, 7, 99
        v_lshrrev_b32 v19, 3, {VL}
        v_cmp_ne_u32 vcc, s47, v19
        v_cndmask_b32 v18, 0, v18, vcc
        v_and_b32 v20, 7, {VL}
        v_lshlrev_b32 v20, 4, v20
        v_lshl_add_u32 v20, {VG}, 2, v20
        s_lshl_b32 s47, s61, 7
        s_lshl_b32 s45, s60, 8
        s_add_u32 s47, s47, s45
        s_add_u32 s47, s47, {VARL}
        v_add_u32 v20, s47, v20
        """)
    D = ("xe" in EXP and res)
    if D: pst(a,1)
    a("s_waitcnt lgkmcnt(0)")
    if D: pst(a,2)
    a("s_barrier")
    if D: pst(a,3)
    for k in range(3):
        a(f"ds_read_b128 {v(T+4*k,4)}, v10 offset:{4096*k}")
        a(f"ds_read_b128 {v(T+12+4*k,4)}, v10 offset:{20480+4096*k}")
    for k in range(3):
        a(f"s_waitcnt lgkmcnt({4-2*k})")
        for i in range(4*k,4*k+4):
            if vm0: a(f"v_mul_f32 v{T+i}, {vm0}, v{T+i}")
            if vm1: a(f"v_fma_f32 v{T+i}, {vm1}, v{T+12+i}, v{T+i}")
            else: a(f"v_add_f32 v{T+i}, v{T+i}, v{T+12+i}")
            if res: a(f"v_add_f32 v{T+i}, v{T+i}, v{T+24+i}")
        a(f"v_cvt_pk_bf16_f32 v{12+2*k}, v{T+4*k}, v{T+4*k+1}")
        a(f"v_cvt_pk_bf16_f32 v{13+2*k}, v{T+4*k+2}, v{T+4*k+3}")
        if k<2: a(f"buffer_store_dwordx2 {v(12+2*k,2)}, v9, {R_WS}, {s_dst} offen offset:{2048*k} sc1")
        else: a(f"buffer_store_dwordx2 {v(12+2*k,2)}, v9, {R_WS}, s46 offen sc1")
    if D: pst(a,4)
    if s_var:
        a("v_cmp_lt_f32 vcc, 0, v18")
        for i in range(4): a(f"v_mul_f32 v{T+i}, v{T+i}, v{T+i}")
        for i in range(4): a(f"v_cndmask_b32 v{T+8+i}, 0, v{T+8+i}, vcc")
        for i in range(4): a(f"v_fmac_f32 v{T+i}, v{T+4+i}, v{T+4+i}")
        for i in range(4): a(f"v_fmac_f32 v{T+i}, v{T+8+i}, v{T+8+i}")
        a(f"""
        v_permlane32_swap_b32 v{T}, v{T+2}
        v_permlane32_swap_b32 v{T+1}, v{T+3}
        v_add_f32 v{T}, v{T}, v{T+2}
        v_add_f32 v{T+1}, v{T+1}, v{T+3}
        v_permlane16_swap_b32 v{T}, v{T+1}
        v_add_f32 v{T}, v{T}, v{T+1}
        v_add_f32_dpp v{T}, v{T}, v{T} row_ror:8 row_mask:0xf bank_mask:0xf
        ds_write_b32 v20, v{T}
        """)
        Ls=a.newlabel("xv")
        a(f"""
        v_and_b32 v18, 3, {VL}
        v_bfe_u32 v19, {VL}, 2, 3
        v_lshl_add_u32 v18, v19, 3, v18
        v_lshrrev_b32 v19, 5, {VL}
        v_lshl_add_u32 v18, v19, 2, v18
        v_lshlrev_b32 v18, 2, v18
        v_add_u32 v18, {VARL}, v18
        v_and_b32 v11, 31, {VL}
        v_lshlrev_b32 v11, 2, v11
        v_lshl_add_u32 v11, v19, 9, v11
        s_lshl_b32 s47, {SX}, 10
        s_lshl_b32 s46, {SA}, 7
        s_add_u32 s47, s47, s46
        s_add_u32 s47, s47, {s_var}
        s_waitcnt lgkmcnt(0)
        """)
        if D: pst(a,5)
        a(f"""
        s_barrier
        s_cmp_lg_u32 {SW}, 6
        s_cbranch_scc1 {Ls}
        ds_read_b32 v10, v18
        ds_read_b32 v19, v18 offset:256
        ds_read_b32 v20, v18 offset:512
        ds_read_b32 v18, v18 offset:768
        s_waitcnt lgkmcnt(0)
        v_add_f32 v10, v10, v19
        v_add_f32 v18, v18, v20
        v_add_f32 v10, v10, v18
        """)
        if pre_bar: pre_bar()
        a(f"""
        buffer_atomic_add_f32 v10, v11, {R_WS}, s47 offen
        {Ls}:
        """)
    if extra_work: extra_work()

def mu_pos(a, dst, s_a, tmp, src=VN):
    a(f"""
    v_lshrrev_b32 {tmp}, 2, {src}
    v_and_b32 {dst}, 3, {src}
    v_lshl_add_u32 {dst}, {tmp}, 3, {dst}
    v_add_u32 {dst}, {s_a}, {dst}
    """)

def vsign(a, dst):
    a(f"""
    v_and_b32 {dst}, 2, {VN}
    v_cvt_f32_u32 {dst}, {dst}
    v_subrev_f32 {dst}, 1.0, {dst}
    """)

def rows_dma(a, srd, rowfn, defer=False):
    a(f"""
    v_lshrrev_b32 v8, 3, {VL}
    v_add_u32 v9, 8, v8
    """)
    rowfn("v6","v8"); rowfn("v7","v9")
    a(f"""
    s_movk_i32 s41, 1280
    v_mul_lo_u32 v6, v6, s41
    v_mul_lo_u32 v7, v7, s41
    v_and_b32 v9, 6, v8
    v_and_b32 v10, 7, {VL}
    v_xor_b32 v9, v9, v10
    v_lshl_add_u32 v6, v9, 4, v6
    v_lshl_add_u32 v7, v9, 4, v7
    s_mul_i32 s52, s61, 640
    s_mul_i32 s53, {SW}, 10240
    s_add_u32 s53, s53, {AL}
    """)
    def ch(c):
        for hf in range(2):
            a(f"s_add_u32 m0, s53, {2048*c+1024*hf-128*c}")
            a(f"buffer_load_dwordx4 v{6+hf}, {srd}, s52 offen offset:{128*c} lds")
    if defer: return ch
    for c in range(5): ch(c)

def rows_read(a, later_vm):
    a(f"""
    v_and_b32 v6, 6, {VN}
    v_xor_b32 v6, v6, {VG}
    v_lshlrev_b32 v6, 4, v6
    v_lshl_add_u32 v6, {VN}, 7, v6
    s_mul_i32 s41, {SW}, 10240
    s_add_u32 s41, s41, {AL}
    v_add_u32 v6, s41, v6
    v_xor_b32 v7, 64, v6
    s_waitcnt vmcnt({later_vm})
    """)
    for j in range(10):
        a(f"ds_read_b128 {v(PF+4*j,4)}, v{6+(j&1)} offset:{2048*(j>>1)}")

def tok_row(a):
    def fn(dst, m):
        a(f"""
        s_lshl_b32 s42, {SA}, 1
        s_add_u32 s42, s42, s63
        s_lshl_b32 s42, s42, 3
        s_add_u32 s42, s42, s62
        s_lshl_b32 s42, s42, 5
        s_lshl_b32 s43, {SX}, 2
        s_add_u32 s42, s42, s43
        v_and_b32 {dst}, 3, {m}
        v_lshlrev_b32 {dst}, 5, {dst}
        v_lshrrev_b32 v11, 2, {m}
        v_add3_u32 {dst}, {dst}, v11, s42
        """)
    return fn

def xtile_base(a, dst):
    a(f"""
    s_mul_i32 {dst}, {SI}, 81920
    s_mul_i32 s40, {ST}, 5120
    s_add_u32 {dst}, {dst}, s40
    """)

def wo_job(a, selector):
    def fn(dst, m):
        a(f"""
        s_lshl_b32 s40, s66, 1
        s_add_u32 s40, s40, s63
        s_lshl_b32 s40, s40, 5
        s_add_u32 s40, s40, s62
        """)
        mu_pos(a, dst, "s40", "v11", m)
    rows_dma(a, R_WO, fn)
    if selector: gen_ftile(a, True)
    xe_prep(a, True, sign="v22")
    rows_read(a, 0)
    a("s_waitcnt lgkmcnt(0)\n s_barrier")
    g640_core(a, False, VL16)
    a(f"""
    s_mul_i32 s64, {ST}, 102400
    s_mul_i32 s65, s66, 10240
    s_add_u32 s64, s64, s65
    s_add_u32 s64, s64, {WOR if selector else WOF}
    """)
    if selector:
        a(f"""
        s_cmp_ge_u32 {ST}, 4
        s_cselect_b32 s40, 0, 1.0
        s_cselect_b32 s41, 1.0, 0
        v_mov_b32 v22, s40
        v_mov_b32 v23, s41
        """)
        xtype_epilogue(a, "s64", vm0="v22", vm1="v23")
    else:
        xtype_epilogue(a, "s64", vm1="v22")

WQL = AL
def wq_loads(a):
    a(f"""
    v_lshrrev_b32 v6, 3, {VL}
    v_and_b32 v7, 2, v6
    v_and_b32 v8, 7, {VL}
    v_xor_b32 v7, v7, v8
    s_movk_i32 s41, 3840
    v_mul_lo_u32 v6, v6, s41
    v_lshl_add_u32 v6, v7, 4, v6
    v_xor_b32 v7, 64, v6
    s_mul_i32 s40, {SW}, {80*3840}
    s_lshl_b32 s41, {SI}, 7
    s_add_u32 s40, s40, s41
    s_cmp_ge_u32 {SI}, 30
    s_cselect_b32 s40, {OOB}, s40
    """)
    for j in range(10):
        a(f"buffer_load_dwordx4 {v(WQR+4*j,4)}, v{6+(j&1)}, {R_WQKV}, s40 offen")
        if j<9: a(f"s_add_u32 s40, s40, {8*3840}")

def wq_stage(a):
    a(f"""
    s_mul_i32 s41, {SW}, 10240
    s_add_u32 s41, s41, {WQL}
    v_add_u32 v6, s41, {VL16}
    """)
    for j in range(10): a(f"ds_write_b128 v6, {v(WQR+4*j,4)} offset:{1024*j}")

ACX, ACQ, SBM = 12, 32, 52
RS2 = 51200
def xq_core(a):
    a(f"""
    v_lshrrev_b32 v7, 2, {VN}
    v_lshl_add_u32 v6, {VG}, 3, v7
    v_lshlrev_b32 v6, 7, v6
    v_lshrrev_b32 v7, 1, v7
    v_and_b32 v11, 1, {VG}
    v_lshl_add_u32 v7, v11, 1, v7
    v_xor_b32 v7, s60, v7
    v_lshl_add_u32 v6, v7, 5, v6
    v_and_b32 v7, 3, {VN}
    v_lshl_add_u32 v7, v7, 3, v6
    s_mul_i32 s40, s61, 40960
    s_add_u32 s40, s40, {WQL}
    v_add_u32 v7, s40, v7
    s_waitcnt lgkmcnt(0)
    s_barrier
    """)
    q=LQ(a)
    def rq(j):
        q.op(f"ds_read_b64_tr_b16 {v(WQR+4*j,2)}, v7 offset:{4096*j}", ("Q",j))
        q.op(f"ds_read_b64_tr_b16 {v(WQR+4*j+2,2)}, v7 offset:{4096*j+512}", ("Q",j))
    def rf(f): q.op(f"ds_read_b128 {v(SBM+4*(f%8),4)}, {VL16} offset:{f*1024}", ("F",f))
    for f in range(4): rf(f)
    rq(0)
    for f in range(4,7): rf(f)
    rq(1)
    for f in range(50):
        j,nt=divmod(f,5)
        q.need(("F",f))
        sb=v(SBM+4*(f%8),4)
        a(f"{M16} {v(ACX+4*nt,4)}, {v(PF+4*j,4)}, {sb}, {v(ACX+4*nt,4) if j else 0}")
        if f+7<50: rf(f+7)
        q.need(("Q",j))
        a(f"{M16} {v(ACQ+4*nt,4)}, {sb}, {v(WQR+4*j,4)}, {v(ACQ+4*nt,4) if j else 0}")
        if f<16 and f%2==0 and 2+f//2<10: rq(2+f//2)
        if f==24: a("s_barrier")

def wq_write(a):
    L1=a.newlabel("wq1")
    a(f"""
    s_mul_i32 s40, s60, 5120
    s_add_u32 s40, s40, {RS2}
    v_add_u32 v7, s40, {VL16}
    s_cmp_eq_u32 s61, 0
    s_cbranch_scc1 {L1}
    """)
    for nt in range(5): a(f"ds_write_b128 v7, {v(ACQ+4*nt,4)} offset:{nt*1024}")
    a.label(L1)

def wq_fin(a):
    L2=a.newlabel("wq2"); LZ=a.newlabel("wqz")
    AC=ACQ; SB=WQR
    a(f"""
    s_cmp_ge_u32 {SI}, 30
    s_cbranch_scc1 {L2}
    s_cmp_lg_u32 s61, 0
    s_cbranch_scc1 {L2}
    """)
    for nt in range(5): a(f"ds_read_b128 {v(SB+4*nt,4)}, v7 offset:{nt*1024}")
    a(f"""
    s_mul_i32 s41, {SI}, 205
    s_lshr_b32 s41, s41, 11
    s_mul_i32 s42, s41, 10
    s_sub_u32 s42, {SI}, s42
    s_lshl_b32 s42, s42, 6
    s_lshl_b32 s43, s60, 4
    s_add_u32 s42, s42, s43
    v_add_u32 v10, s42, {VN}
    v_mul_u32_u24 v11, 3277, v10
    v_lshrrev_b32 v11, 16, v11
    v_mul_u32_u24 v12, 20, v11
    v_sub_u32 v10, v10, v12
    s_cmp_eq_u32 s41, 0
    s_cselect_b32 s42, {3*64}, 0
    s_cselect_b32 s43, 8, 0
    s_cmp_eq_u32 s41, 2
    s_cselect_b32 s42, 64, s42
    s_cselect_b32 s43, 4, s43
    s_add_u32 s43, s43, {128-16}
    v_add_u32 v12, s42, v10
    v_add_u32 v13, s43, v10
    v_cmp_gt_u32 vcc, 16, v10
    v_cndmask_b32 v10, v13, v12, vcc
    v_lshrrev_b32 v12, 1, {VG}
    v_lshl_add_u32 v10, v12, 4, v10
    v_lshlrev_b32 v10, 4, v10
    v_and_b32 v12, 1, {VG}
    v_lshl_add_u32 v10, v12, 3, v10
    s_mov_b32 s41, 102400
    v_mul_lo_u32 v11, v11, s41
    v_add_u32 v10, v10, v11
    s_mov_b32 s42, {f2u(2.0/640)}
    v_mov_b32 v12, s42
    s_cmp_eq_u32 {ST}, 7
    s_cselect_b32 s43, 3, 99
    v_cmp_ne_u32 vcc, s43, {VG}
    v_cndmask_b32 v12, 0, v12, vcc
    s_mul_i32 s44, {ST}, 5
    s_waitcnt lgkmcnt(0)
    """)
    for nt in range(5):
        a(f"""
        s_add_u32 s45, s44, {nt}
        s_lshr_b32 s40, s45, 1
        s_mul_i32 s40, s40, 5120
        s_and_b32 s45, s45, 1
        s_lshl_b32 s45, s45, 9
        s_add_u32 s40, s40, s45
        s_add_u32 s40, s40, {WQF}
        """)
        for i in range(4):
            op = "v_sub_f32" if i<2 else "v_add_f32"
            a(f"{op} v{16+i}, v{AC+4*nt+i}, v{SB+4*nt+i}")
            a(f"v_mul_f32 v{16+i}, {'v12' if (nt==4 and i==3) else 's42'}, v{16+i}")
        a(f"v_cvt_pk_bf16_f32 v{20+2*(nt&1)}, v16, v17")
        a(f"v_cvt_pk_bf16_f32 v{21+2*(nt&1)}, v18, v19")
        a(f"buffer_store_dwordx2 {v(20+2*(nt&1),2)}, v10, {R_WS}, s40 offen sc1")
    a.label(L2)

def gcol_job(a):
    L2=a.newlabel("gce")
    Lp=a.newlabel("gc")
    a(f"""
    s_sub_u32 s40, s66, 10
    s_lshl_b32 s40, s40, 3
    s_add_u32 s40, s40, {ST}
    s_lshl_b32 s40, s40, 1
    s_add_u32 s40, s40, s61           ; head
    s_mul_i32 s41, s40, 20
    v_add_u32 v8, s41, {VN}
    v_cvt_f32_u32 v8, v8
    v_add_f32 v9, 4.0, v8
    v_mul_f32 v8, {f2u(1/640)}, v8
    v_mul_f32 v9, {f2u(1/640)}, v9
    v_lshl_add_u32 v10, {VG}, 2, 1    ; 4g+1
    s_mul_i32 s40, s40, 102400
    s_add_u32 s40, s40, {WQF}
    s_mov_b32 s42, s60                ; kstep
    v_mov_b32 v29, 0x3f353f35
    {Lp}:
    s_lshl_b32 s41, s42, 4
    v_add_u32 v11, s41, v10           ; k0
    v_cvt_f32_u32 v12, v11
    v_cmp_eq_u32 vcc, 0x13d, v11
    s_mul_i32 s43, s42, 5120
    s_add_u32 s43, s43, s40
    """)
    for part in range(2):
        st=f"v{8+part}"
        a(f"""
        v_mul_f32 v16, v12, {st}
        v_fract_f32 v16, v16
        v_add_f32 v17, v16, {st}
        v_fma_f32 v18, 2.0, {st}, v16
        v_add_f32 v19, v18, {st}
        """)
        for i in range(4): a(f"v_sin_f32 v{20+i}, -v{16+i}")
        for i in range(4): a(f"v_cos_f32 v{16+i}, v{16+i}")
        D=32+4*part
        for i in range(4): a(f"v_cvt_pk_bf16_f32 v{D+i}, v{16+i}, v{20+i}")
        a(f"""
        v_and_b32 v28, 0x8000, v{D+3}
        v_or_b32 v28, v28, v29
        v_cndmask_b32 v{D+3}, v{D+3}, v28, vcc
        """)
        if part==0:
            a(f"s_add_u32 s44, s43, 4096")
            a(f"buffer_store_dwordx4 {v(D,4)}, {VL16}, {R_WS}, s44 offen sc1")
        else:
            a(f"""
            s_mov_b32 exec_lo, 0xf000f000
            s_mov_b32 exec_hi, 0xf000f000
            buffer_store_dwordx4 {v(D,4)}, {VL16}, {R_WS}, s43 offen offset:2048 sc1
            s_mov_b64 exec, -1
            """)
    a(f"""
    s_add_u32 s42, s42, 4
    s_cmp_lt_u32 s42, 20
    s_cbranch_scc1 {Lp}
    """)
    a.label(L2)

WTR = 164
WTX = 84
def wt_loads(a):
    L=a.newlabel("wtl")
    a(f"""
    s_cmp_ge_u32 {SW}, 3
    s_cbranch_scc1 {L}
    s_mul_i32 s79, s2, 3
    s_add_u32 s79, s79, {SW}
    s_mul_i32 s69, s79, 5462
    s_lshr_b32 s69, s69, 16           ; j1 = task/12
    s_mul_i32 s40, s69, 12
    s_sub_u32 s70, s79, s40
    v_bfe_u32 v6, {VL}, 3, 1
    v_lshrrev_b32 v7, 4, {VL}
    v_lshl_add_u32 v5, v6, 2, v7
    s_mov_b32 s41, {64*642}
    v_mul_lo_u32 v6, v5, s41
    v_and_b32 v7, 7, {VL}
    v_lshl_add_u32 v6, v7, 4, v6
    s_mul_i32 s40, s69, 642
    s_andn2_b32 s40, s40, 127
    s_lshr_b32 s41, s70, 1
    s_lshl_b32 s41, s41, 7
    s_add_u32 s40, s40, s41
    s_and_b32 s41, s70, 1
    s_mul_i32 s41, s41, {16*64*642}
    s_add_u32 s40, s40, s41
    s_add_u32 s41, s40, {8*64*642}
    buffer_load_dwordx4 {v(WTX,4)}, v6, {R_WR}, s40 offen
    buffer_load_dwordx4 {v(WTX+4,4)}, v6, {R_WI}, s40 offen
    buffer_load_dwordx4 {v(WTX+8,4)}, v6, {R_WR}, s41 offen
    buffer_load_dwordx4 {v(WTX+12,4)}, v6, {R_WI}, s41 offen
    {L}:
    """)

def wor_loads(a):
    L=a.newlabel("wol")
    a(f"""
    s_sub_u32 s67, s72, 20
    s_lshl_b32 s67, s67, 3
    s_add_u32 s67, s67, {ST}
    s_lshl_b32 s67, s67, 3
    s_add_u32 s67, s67, {SW}
    v_and_b32 v7, 7, {VL}
    ; WoR: task = (R16 = task/10 (16 rows), lam = task%10): rows hd = 16R + 8*(rho&1) + 4*ld + (rho>>1)
    s_mul_i32 s42, s67, 6554
    s_lshr_b32 s42, s42, 16
    s_mul_i32 s43, s42, 10
    s_sub_u32 s43, s67, s43
    v_bfe_u32 v6, {VL}, 3, 1
    v_lshrrev_b32 v8, 4, {VL}
    v_lshl_add_u32 v6, v6, 3, v8
    v_mul_u32_u24 v6, 1280, v6
    v_lshl_add_u32 v6, v7, 4, v6
    s_mul_i32 s40, s42, {16*1280}
    s_lshl_b32 s41, s43, 7
    s_add_u32 s40, s40, s41
    s_add_u32 s41, s40, {4*1280}
    buffer_load_dwordx4 {v(WTR+16,4)}, v6, {R_WO}, s40 offen
    buffer_load_dwordx4 {v(WTR+20,4)}, v6, {R_WO}, s41 offen
    {L}:
    """)

def side_job(a, wor, vm):
    L=a.newlabel("wtskip"); L2=a.newlabel("wos")
    if not wor: a(f"s_cmp_ge_u32 {SW}, 3\n s_cbranch_scc1 {L}")
    a(f"""
    v_and_b32 v6, 3, {VN}
    v_cmp_eq_u32 vcc, v6, {VG}
    v_lshrrev_b32 v6, 2, {VN}
    v_cndmask_b32 v6, 7, v6, vcc
    v_mov_b32 v28, 0x3f80
    v_mov_b32 v29, 0x3f800000
    v_cmp_eq_u32 vcc, 0, v6
    v_cndmask_b32 v8, 0, v28, vcc
    v_cmp_eq_u32 vcc, 1, v6
    v_cndmask_b32 v8, v8, v29, vcc
    v_cmp_eq_u32 vcc, 2, v6
    v_cndmask_b32 v9, 0, v28, vcc
    v_cmp_eq_u32 vcc, 3, v6
    v_cndmask_b32 v9, v9, v29, vcc
    v_mov_b32 v10, 0
    v_mov_b32 v11, 0
    v_mov_b32 v12, 0
    v_mov_b32 v13, 0
    v_mov_b32 v14, v8
    v_mov_b32 v15, v9
    v_and_b32 v7, 7, {VN}
    v_lshlrev_b32 v16, 7, v7
    v_lshl_add_u32 v16, {VG}, 5, v16
    v_lshrrev_b32 v17, 3, {VN}
    v_lshl_add_u32 v16, v17, 4, v16
    s_lshl_b32 s40, s79, 12
    s_add_u32 s40, s40, {WT}
    s_waitcnt vmcnt({vm})
    """)
    for G in range(2):
        if wor: break
        for mf in range(2):
            for ri in range(2):
                a(f"{M16} {v(32+16*G+8*mf+4*ri,4)}, {v(8+4*mf,4)}, {v(WTX+8*G+4*ri,4)}, 0")
    for mf in range(2):
        if not wor: break
        for ld in range(2):
            a(f"{M16} {v(64+8*mf+4*ld,4)}, {v(8+4*mf,4)}, {v(WTR+16+4*ld,4)}, 0")
    for G in range(2):
        if wor: break
        for mf in range(2):
            b=32+16*G+8*mf; d=64+8*G+4*mf
            for i in range(4): a(f"v_cvt_pk_bf16_f32 v{d+i}, v{b+i}, v{b+4+i}")
            a(f"buffer_store_dwordx4 {v(d,4)}, v16, {R_WS}, s40 offen offset:{2048*G+1024*mf} sc1")
    if not wor:
        a.label(L); return
    a(f"""
    s_cmp_ge_u32 s67, 400
    s_cbranch_scc1 {L}
    s_mul_i32 s42, s67, 6554
    s_lshr_b32 s42, s42, 16
    s_mul_i32 s43, s42, 10
    s_sub_u32 s43, s67, s43
    s_lshl_b32 s43, s43, 4
    s_lshr_b32 s40, s42, 1
    s_mul_i32 s40, s40, 5120
    s_and_b32 s42, s42, 1
    s_lshl_b32 s42, s42, 9
    s_add_u32 s40, s40, s42
    s_add_u32 s40, s40, {WOR}
    s_mov_b32 s41, 102400
    v_lshlrev_b32 v18, 8, v17
    v_lshl_add_u32 v18, {VG}, 4, v18
    """)
    for mf in range(2):
        a(f"""
        v_lshl_add_u32 v19, v7, 1, s43
        v_add_u32 v19, {mf}, v19          ; dq
        v_mul_u32_u24 v20, 205, v19
        v_lshrrev_b32 v20, 10, v20        ; dq/5
        v_mul_u32_u24 v21, 5, v20
        v_sub_u32 v19, v19, v21           ; nt
        v_lshrrev_b32 v21, 2, v20         ; t
        v_and_b32 v20, 3, v20
        v_mul_lo_u32 v21, v21, s41
        v_lshl_add_u32 v21, v19, 10, v21
        v_lshl_add_u32 v21, v20, 6, v21
        v_add_u32 v21, v21, v18
        """)
        d=WTR+40+4*mf
        for q in range(4): a(f"v_cvt_pk_bf16_f32 v{d+q}, v{64+8*mf+2*q}, v{65+8*mf+2*q}")
        a(f"buffer_store_dwordx4 {v(d,4)}, v21, {R_WS}, s40 offen sc1")
    a.label(L)

C64, S64, C32, S32 = 164, 180, 196, 204
TW1C, TW1S, TW2C, TW2S = 212, 220, 228, 236
WP = 244
N64, N32, WRE, WIM, UP, DA = 64, 80, 88, 96, 104, 120
FSC, FRW, FX1 = 102400, 118784, 135168
def ang8(a, base, step, dst):
    a(f"""
    v_mov_b32 v{dst}, {base}
    v_add_f32 v{dst+1}, {base}, {step}
    v_fma_f32 v{dst+2}, 2.0, {step}, {base}
    v_fma_f32 v{dst+4}, 4.0, {step}, {base}
    v_add_f32 v{dst+3}, v{dst+2}, {step}
    v_add_f32 v{dst+5}, v{dst+4}, {step}
    v_fma_f32 v{dst+6}, 2.0, {step}, v{dst+4}
    v_add_f32 v{dst+7}, v{dst+6}, {step}
    """)

def fft_consts(a):
    a("s_mov_b32 s40, 0")
    mu_pos(a, "v6", "s40", "v7")
    a(f"""
    v_cvt_f32_u32 v6, v6
    v_lshlrev_b32 v7, 3, {VG}
    v_cvt_f32_u32 v7, v7
    s_lshl_b32 s40, s63, 5
    v_cvt_f32_u32 v8, s40
    s_xor_b32 s40, s40, 32
    v_cvt_f32_u32 v9, s40
    v_cvt_f32_u32 v10, s62
    """)
    def cs(step, base, c, s):
        a(f"""
        v_cos_f32 v14, {step}
        v_add_f32 v17, {base}, {step}
        v_sin_f32 v24, {base}
        v_cos_f32 v16, {base}
        v_sin_f32 v25, v17
        v_cos_f32 v17, v17
        v_add_f32 v14, v14, v14
        """)
        for i in range(2,8):
            a(f"v_fma_f32 v{24+i}, v14, v{23+i}, -v{22+i}")
            a(f"v_fma_f32 v{16+i}, v14, v{15+i}, -v{14+i}")
        for i in range(4): a(f"v_cvt_pk_bf16_f32 v{s+i}, v{24+2*i}, v{25+2*i}")
        for i in range(4): a(f"v_cvt_pk_bf16_f32 v{c+i}, v{16+2*i}, v{17+2*i}")
    for aa in range(2):
        a(f"v_add_f32 v11, v8, v6")
        if aa: a("v_add_f32 v11, 4.0, v11")
        a(f"v_mul_f32 v12, {f2u(1/64)}, v11")
        for kk in range(2):
            a(f"v_add_f32 v13, v{8+kk}, v7")
            a(f"v_mul_f32 v13, v13, v12")
            o=8*aa+4*kk
            cs("v12","v13",C64+o,S64+o)
        a(f"""
        v_mul_f32 v12, {f2u(1/2048)}, v11
        v_add_f32 v13, v7, v10
        v_mul_f32 v16, v13, v12
        v_add_f32 v17, v16, v12
        v_fma_f32 v18, 2.0, v12, v16
        v_add_f32 v19, v18, v12
        """)
        for i in range(4): a(f"v_sin_f32 v{TW1S+4*aa+i}, v{16+i}")
        for i in range(4): a(f"v_cos_f32 v{TW1C+4*aa+i}, v{16+i}")
        a(f"v_mov_b32 v11, v6")
        if aa: a("v_add_f32 v11, 4.0, v11")
        a(f"""
        v_mul_f32 v12, {f2u(1/32)}, v11
        v_mul_f32 v13, v7, v12
        """)
        cs("v12","v13",C32+4*aa,S32+4*aa)
        a(f"""
        v_mul_f32 v12, {f2u(1/2048)}, v11
        v_add_f32 v13, v7, v10
        v_add_f32 v13, v13, v8
        v_mul_f32 v16, v13, v12
        v_add_f32 v17, v16, v12
        v_fma_f32 v18, 2.0, v12, v16
        v_add_f32 v19, v18, v12
        """)
        for i in range(4): a(f"v_sin_f32 v{TW2S+4*aa+i}, v{16+i}")
        for i in range(4): a(f"v_cos_f32 v{TW2C+4*aa+i}, v{16+i}")
    for i in range(16): a(f"v_mul_f32 v{TW2C+i}, {f2u(1/2048)}, v{TW2C+i}")

def fft_prep(a, first):
    mu_pos(a, "v141", "s62", "v140")
    a(f"""
    v_lshrrev_b32 v136, 3, v0
    s_mov_b32 s41, 40960
    v_mul_lo_u32 v136, v136, s41
    v_and_b32 v137, 7, v0
    v_lshl_add_u32 v136, v137, 4, v136
    v_and_b32 v137, 3, v0
    v_lshrrev_b32 v138, 3, {VL}
    v_lshlrev_b32 v137, 4, v137
    v_lshl_add_u32 v137, v138, 6, v137
    s_lshl_b32 s40, {SW}, 10
    v_add_u32 v137, s40, v137
    s_lshr_b32 s42, {SW}, 1
    s_lshr_b32 s43, {SW}, 2
    s_xor_b32 s42, s42, s43
    s_lshl_b32 s42, s42, 6
    v_xor_b32 v138, s42, {VL16}
    s_add_u32 s40, s40, {FSC}
    v_add_u32 v138, s40, v138
    s_lshl_b32 s40, s63, 5
    v_add_u32 v142, s40, v141         ; j1
    s_lshl_b32 s40, s73, 1
    s_add_u32 s40, s40, s61
    s_add_u32 s40, s40, 1
    v_add_u32 v143, s40, v142         ; e = c+1 + (321 j1 mod 64 = j1)
    v_mul_u32_u24 v142, 6, v142
    v_lshrrev_b32 v144, 6, v143
    v_add_u32 v142, v142, v144
    v_lshl_add_u32 v142, v142, 2, {VG}
    v_bfe_u32 v144, v143, 2, 1
    v_lshl_add_u32 v142, v142, 1, v144
    v_bfe_u32 v144, v143, 3, 3
    v_lshl_add_u32 v142, v142, 3, v144
    v_and_b32 v144, 3, v143
    v_lshl_add_u32 v142, v142, 2, v144
    v_lshlrev_b32 v142, 5, v142
    v_lshrrev_b32 v141, 2, v141
    s_lshl_b32 s40, s63, 2
    v_add_u32 v140, s40, {VG}
    v_lshl_add_u32 v141, v141, 3, v140
    v_and_b32 v143, 3, {VN}
    v_lshl_add_u32 v139, v141, 3, v143
    v_lshrrev_b32 v144, 2, {VN}
    v_lshrrev_b32 v145, 3, {VN}
    v_xor_b32 v144, v144, v145
    v_lshlrev_b32 v144, 2, v144
    v_xor_b32 v139, v139, v144
    s_lshl_b32 s40, s61, 13
    s_add_u32 s42, s40, {FSC}
    v_lshl_add_u32 v139, v139, 4, s42
    v_xor_b32 v140, 512, v139
    v_mul_lo_u32 v141, v141, s41
    v_lshl_add_u32 v141, v143, 4, v141
    s_lshl_b32 s43, s63, 12
    s_add_u32 s43, s43, s40
    s_add_u32 s43, s43, {FX1}
    s_lshl_b32 s44, s62, 1
    s_add_u32 s45, s44, s43
    v_add_u32 v143, s45, {VL16}
    s_lshl_b32 s45, s62, 9
    s_add_u32 s45, s45, s43
    v_add_u32 v144, s45, {VL16}
    s_lshl_b32 s43, s63, 11
    s_add_u32 s43, s43, s42
    s_add_u32 s45, s44, s43
    v_add_u32 v145, s45, {VL16}
    s_lshl_b32 s45, s62, 10
    s_add_u32 s45, s45, s43
    v_add_u32 v146, s45, {VL16}
    v_xor_b32 v147, 2048, v146
    s_cmp_eq_u32 s73, 159
    s_cselect_b32 s40, 4, 99
    v_and_b32 v148, 4, v0
    v_cmp_ne_u32 vcc, s40, v148
    v_cndmask_b32 v148, 0, -1, vcc
    s_mov_b32 s41, 0x80008000
    """)
    for i in range(16): a(f"v_xor_b32 v{N64+i}, s41, v{S64+i}")
    for i in range(8): a(f"v_xor_b32 v{N32+i}, s41, v{S32+i}")
    if not first: fft_w_unpack(a)

def fft_w_load(a):
    a(f"""
    s_mov_b32 s40, {WT}
    buffer_load_dwordx4 {v(WP,4)}, v142, {R_WS}, s40 offen
    buffer_load_dwordx4 {v(WP+4,4)}, v142, {R_WS}, s40 offen offset:16
    """)

def fft_w_unpack(a):
    for i in range(8):
        a(f"v_lshlrev_b32 v{WRE+i}, 16, v{WP+i}")
        a(f"v_and_b32 v{WIM+i}, 0xffff0000, v{WP+i}")

def cmul(a, xr, xi, cr, ci, outr, outi, conj, n=8):
    for i in range(n):
        a(f"v_mul_f32 v{outr+i}, v{xr+i}, v{cr+i}")
        a(f"v_mul_f32 v{outi+i}, v{xi+i}, v{cr+i}")
    for i in range(n):
        if conj:
            a(f"v_fma_f32 v{outr+i}, -v{xi+i}, v{ci+i}, v{outr+i}")
            a(f"v_fma_f32 v{outi+i}, v{xr+i}, v{ci+i}, v{outi+i}")
        else:
            a(f"v_fma_f32 v{outr+i}, v{xi+i}, v{ci+i}, v{outr+i}")
            a(f"v_fma_f32 v{outi+i}, -v{xr+i}, v{ci+i}, v{outi+i}")

def fft_main(a, xin, xout, var, first):
    DR, DI = DA, DA+8
    a(f"""
    s_lshl_b32 s46, s73, 8
    s_add_u32 s47, s46, {xout}
    s_add_u32 s46, s46, {xin}
    s_mov_b32 s45, {var}
    buffer_load_dwordx4 v[40:43], v137, {R_WS}, s45 offen sc1
    buffer_load_dwordx4 v[44:47], v137, {R_WS}, s45 offen offset:512 sc1
    buffer_load_dwordx4 v[48:51], v136, {R_WS}, s46 offen sc1
    buffer_load_dwordx4 v[52:55], v136, {R_WS}, s46 offen offset:128 sc1
    """)
    ex = 0
    if first: fft_w_load(a); ex = 2
    bg = qkv_bload_setup(a, 4 if first else 5)
    def tick(n=1):
        if "notick" in EXP: return
        for _ in range(n):
            if bg: bg.pop(0)()
    a(f"""
    s_lshl_b32 s44, s61, 7
    s_add_u32 s47, s47, s44
    s_mov_b32 s40, {f2u(2.0/(640*640))}
    v_mov_b32 v8, {f2u(1e-5)}
    s_waitcnt vmcnt({2+ex})
    """)
    for i in range(8): a(f"v_fma_f32 v{40+i}, v{40+i}, s40, v8")
    for i in range(8): a(f"v_rsq_f32 v{40+i}, v{40+i}")
    for c in range(2):
        a(f"s_waitcnt vmcnt({1-c+ex})")
        a(f"ds_write_b128 v138, {v(48+4*c,4)} offset:{FRW-FSC+8192*c}")
        for q in range(4):
            a(f"v_lshlrev_b32 v{16+2*q}, 16, v{48+4*c+q}")
            a(f"v_and_b32 v{17+2*q}, 0xffff0000, v{48+4*c+q}")
        for i in range(8): a(f"v_mul_f32 v{16+i}, v{16+i}, v{40+i}")
        for q in range(4): a(f"v_cvt_pk_bf16_f32 v{56+4*c+q}, v{16+2*q}, v{17+2*q}")
        if c==1:
            for q in range(4): a(f"v_and_b32 v{60+q}, v{60+q}, v148")
        a(f"ds_write_b128 v138, {v(56+4*c,4)} offset:{8192*c}")
    FD = ("fd" in EXP and not first)
    if FD: pflush(a,7); pst(a,0)
    tick()
    a(f"""
    v_xor_b32 v8, 64, v139
    v_xor_b32 v9, 64, v140
    s_waitcnt lgkmcnt(0)
    s_barrier
    ds_read_b128 {v(UP,4)}, v139
    ds_read_b128 {v(UP+4,4)}, v8
    ds_read_b128 {v(UP+8,4)}, v140
    ds_read_b128 {v(UP+12,4)}, v9
    ds_read_b128 v[48:51], v139 offset:{FRW-FSC}
    ds_read_b128 v[52:55], v8 offset:{FRW-FSC}
    """)
    if FD: pst(a,1)
    tick()
    ur=lambda kk: v(UP+8*kk,4); ui=lambda kk: v(UP+8*kk+4,4)
    for kk in range(2):
        a(f"s_waitcnt lgkmcnt({4-2*kk})")
        for aa in range(2):
            dr=v(DR+4*aa,4); di=v(DI+4*aa,4); o=8*aa+4*kk
            a(f"{M16} {dr}, {ur(kk)}, {v(C64+o,4)}, {dr if kk else 0}")
            a(f"{M16} {di}, {ui(kk)}, {v(C64+o,4)}, {di if kk else 0}")
            a(f"{M16} {dr}, {ui(kk)}, {v(S64+o,4)}, {dr}")
            a(f"{M16} {di}, {ur(kk)}, {v(N64+o,4)}, {di}")
        tick()
    def exch(vw, stride):
        for aa in range(2):
            for ri in range(2):
                b=16+8*ri+4*aa; d=32+4*aa+2*ri
                a(f"v_cvt_pk_bf16_f32 v{d}, v{b}, v{b+1}")
                a(f"v_cvt_pk_bf16_f32 v{d+1}, v{b+2}, v{b+3}")
                a(f"ds_write_b64 {vw}, {v(d,2)} offset:{stride*aa+1024*ri}")
    if FD: pst(a,2)
    cmul(a, DR, DI, TW1C, TW1S, 16, 24, False)
    tick()
    exch("v143", 2048)
    tick()
    if FD: pst(a,7)
    a(f"""
    s_waitcnt lgkmcnt(0)
    s_barrier
    ds_read_b128 {v(UP,4)}, v144
    ds_read_b128 {v(UP+4,4)}, v144 offset:1024
    """)
    tick()
    a("s_waitcnt lgkmcnt(0)")
    if FD: pst(a,4)
    tr=v(UP,4); ti=v(UP+4,4)
    for aa in range(2):
        dr=v(DR+4*aa,4); di=v(DI+4*aa,4)
        a(f"{M16} {dr}, {v(C32+4*aa,4)}, {tr}, 0")
        a(f"{M16} {di}, {v(C32+4*aa,4)}, {ti}, 0")
        a(f"{M16} {dr}, {v(S32+4*aa,4)}, {ti}, {dr}")
        a(f"{M16} {di}, {v(N32+4*aa,4)}, {tr}, {di}")
    if first:
        a(f"s_waitcnt vmcnt({0 if 'notick' in EXP else 7})")
        fft_w_unpack(a)
    tick()
    cmul(a, DR, DI, WRE, WIM, 16, 24, True)
    tick()
    for q in range(4): a(f"v_cvt_pk_bf16_f32 v{UP+8+q}, v{16+2*q}, v{17+2*q}")
    for q in range(4): a(f"v_cvt_pk_bf16_f32 v{UP+12+q}, v{24+2*q}, v{25+2*q}")
    yr=v(UP+8,4); yi=v(UP+12,4)
    for aa in range(2):
        dr=v(DR+4*aa,4); di=v(DI+4*aa,4)
        a(f"{M16} {dr}, {yr}, {v(C32+4*aa,4)}, 0")
        a(f"{M16} {di}, {yi}, {v(C32+4*aa,4)}, 0")
        a(f"{M16} {dr}, {yi}, {v(N32+4*aa,4)}, {dr}")
        a(f"{M16} {di}, {yr}, {v(S32+4*aa,4)}, {di}")
    tick()
    cmul(a, DR, DI, TW2C, TW2S, 16, 24, True)
    tick()
    exch("v145", 4096)
    tick(2)
    if first:
        a(f"""
        v_mov_b32 v8, 0
        v_mov_b32 v9, 0
        v_mov_b32 v10, 0
        v_mov_b32 v11, 0
        s_lshl_b32 s40, s73, 3
        s_add_u32 s40, s40, {SW}
        s_lshl_b32 s40, s40, 11
        s_add_u32 s40, s40, {O2}
        buffer_store_dwordx4 v[8:11], {VL16}, {R_WS}, s40 offen sc1
        buffer_store_dwordx4 v[8:11], {VL16}, {R_WS}, s40 offen offset:1024 sc1
        """)
    if FD: pst(a,5)
    for ri in range(2):
        for q in range(4):
            a(f"v_lshlrev_b32 v{16+8*ri+2*q}, 16, v{48+4*ri+q}")
            a(f"v_and_b32 v{17+8*ri+2*q}, 0xffff0000, v{48+4*ri+q}")
    a(f"""
    s_waitcnt lgkmcnt(0)
    s_barrier
    ds_read_b128 {v(UP,4)}, v146
    ds_read_b128 {v(UP+4,4)}, v146 offset:1024
    ds_read_b128 {v(UP+8,4)}, v147
    ds_read_b128 {v(UP+12,4)}, v147 offset:1024
    """)
    if FD: pst(a,6)
    for kk in range(2):
        a(f"s_waitcnt lgkmcnt({2-2*kk})")
        for aa in range(2):
            dr=v(DR+4*aa,4); di=v(DI+4*aa,4); o=8*aa+4*kk
            a(f"{M16} {dr}, {v(C64+o,4)}, {ur(kk)}, {dr if kk else v(16+4*aa,4)}")
            a(f"{M16} {di}, {v(C64+o,4)}, {ui(kk)}, {di if kk else v(24+4*aa,4)}")
            a(f"{M16} {dr}, {v(N64+o,4)}, {ui(kk)}, {dr}")
            a(f"{M16} {di}, {v(S64+o,4)}, {ur(kk)}, {di}")
    for q in range(4): a(f"v_cvt_pk_bf16_f32 v{32+q}, v{DR+2*q}, v{DR+2*q+1}")
    for q in range(4): a(f"v_cvt_pk_bf16_f32 v{36+q}, v{DI+2*q}, v{DI+2*q+1}")
    L=a.newlabel("nyq2")
    a(f"""
    s_lshl_b32 s40, s73, 1
    s_add_u32 s40, s40, s61
    s_cmp_lg_u32 s40, 319
    s_cbranch_scc1 {L}
    """)
    for q in range(4): a(f"v_mov_b32 v{36+q}, v{52+q}")
    a.label(L)
    a(f"""
    buffer_store_dwordx4 v[32:35], v141, {R_WS}, s47 offen sc1
    buffer_store_dwordx4 v[36:39], v141, {R_WS}, s47 offen offset:64 sc1
    """)
    return bg

QB = 0
def QAb(layer): return 102400
def NRS(layer): return 3
def BST(layer): return 5120 if layer else 4096
KVF = 151552
QACC = 8
QAF = 48
QBF = 72
def qkv_rot(a): pass
def qkv_roles(a, layer):
    RX=RXS[layer]
    a(f"""
    s_lshr_b32 s81, s2, 3
    s_and_b32 {SR}, {SX}, {8//RX-1}
    s_mul_i32 {SR}, {SR}, {RX}
    s_and_b32 s82, s81, {RX-1}
    s_add_u32 {SR}, {SR}, s82
    s_lshr_b32 {SH}, {SX}, {(8//RX).bit_length()-1}
    s_mul_i32 {SH}, {SH}, {32//RX}
    s_lshr_b32 s81, s81, {RX.bit_length()-1}
    s_add_u32 {SH}, {SH}, s81
    s_and_b32 s68, {SH}, 3
    s_mul_i32 s68, s68, 5
    s_lshr_b32 s81, {SH}, 2
    s_add_u32 s68, s68, s81
    s_cmp_ge_u32 s68, 20
    s_cselect_b32 s81, 20, 0
    s_sub_u32 s68, s68, s81
    """)

def qkv_bload_setup(a, NT):
    qkv_rot(a)
    a(f"""
    s_mul_i32 s48, {SH}, 102400
    s_add_u32 s48, s48, {WQF}
    s_add_u32 s51, s48, 102400
    """)
    if NT==4:
        a(f"s_mul_i32 s49, s61, 5120\n s_lshl_b32 s50, s60, 10\n s_add_u32 s49, s49, s50")
        step, n = 10240, 10
    else:
        a(f"s_lshl_b32 s49, {SW}, 10")
        step, n = 8192, 13
    a(f"""
    s_mul_i32 s50, s68, 5120
    s_add_u32 s50, s50, s49
    s_add_u32 s50, s50, s48
    s_lshl_b32 s49, {SW}, 10
    """)
    def chunk(i):
        def f():
            L=None
            if NT==5 and i==12:
                L=a.newlabel("qb"); a(f"s_cmp_ge_u32 {SW}, 4\n s_cbranch_scc1 {L}")
            a(f"""
            s_cmp_ge_u32 s50, s51
            s_cselect_b32 s48, 102400, 0
            s_sub_u32 s50, s50, s48
            s_add_u32 m0, s49, {QB+8192*i}
            s_nop 0
            buffer_load_dwordx4 {VL16}, {R_WS}, s50 offen sc1 lds
            s_add_u32 s50, s50, {step}
            """)
            if L: a.label(L)
        return f
    return [chunk(i) for i in range(n)]

def qkv_bload(a, NT):
    for c in qkv_bload_setup(a, NT): c()

def qkv_prep(a, layer):
    qkv_rot(a)
    a(f"""
    s_lshl_b32 s64, {SR}, 3
    s_add_u32 s64, s64, {SW}
    s_mul_i32 s65, {SW}, {2048*NRS(layer)}
    s_add_u32 s65, s65, {QAb(layer)}
    v_lshrrev_b32 v112, 5, {VL}
    v_lshlrev_b32 v112, 5, v112
    {'v_mov_b32 v112, v4' if 'noswz' in EXP else 'v_xor_b32 v112, v112, v4'}
    v_lshrrev_b32 v113, 2, {VN}
    v_lshl_add_u32 v113, {VG}, 3, v113
    v_lshlrev_b32 v113, 6, v113
    v_and_b32 v114, 3, {VN}
    v_lshl_add_u32 v113, v114, 3, v113
    v_and_b32 v114, 1, {VG}
    v_lshl_add_u32 v113, v114, 5, v113
    v_add_u32 v113, s65, v113
    v_xor_b32 v114, 32, v113
    v_add_u32 v115, {10*BST(layer)}, {VL16}
    s_cmp_eq_u32 {SH}, 19
    s_cselect_b32 s40, 3, 99
    v_mov_b32 v116, 0xffff
    v_cmp_ne_u32 vcc, s40, {VG}
    v_cndmask_b32 v116, v116, -1, vcc
    v_lshrrev_b32 v117, 1, {VG}
    v_lshl_add_u32 v117, v117, 4, {VN}
    v_lshlrev_b32 v117, 2, v117
    v_lshrrev_b32 v8, 2, v0
    v_mul_u32_u24 v9, 781, v8
    v_lshrrev_b32 v9, 14, v9          ; dq
    v_mul_u32_u24 v10, 21, v9
    v_sub_u32 v8, v8, v10             ; rho
    v_lshlrev_b32 v10, 4, v9
    v_subrev_u32 v11, 12, v8
    v_cmp_eq_u32 vcc, 20, v8
    v_cndmask_b32 v11, v11, 0, vcc
    v_add_u32 v11, 128, v11
    v_cmp_gt_u32 vcc, 16, v8
    v_cndmask_b32 v11, v11, v8, vcc
    v_add_u32 v10, v10, v11
    v_and_b32 v11, 3, v0
    v_lshl_add_u32 v10, v10, 2, v11
    v_lshlrev_b32 v10, 2, v10
    v_min_u32 v10, 4092, v10
    v_add_u32 v118, {QAb(layer)}, v10
    v_lshrrev_b32 v8, 2, {VN}
    v_and_b32 v9, 1, v8
    v_cmp_eq_u32 vcc, 1, v9
    v_mov_b32 v10, {f2u(1e-6)}
    v_mov_b32 v11, 0xff800000
    v_cndmask_b32 v119, v10, 0, vcc
    v_cndmask_b32 v120, v10, v11, vcc
    v_cndmask_b32 v121, 1.0, 0, vcc
    v_cmp_eq_u32 vcc, 3, v8
    v_mov_b32 v10, {f2u(2.0/640)}
    v_cndmask_b32 v122, 1.0, 0, vcc
    v_cndmask_b32 v123, 0, v10, vcc
    v_lshlrev_b32 v8, 2, {VG}
    v_sub_u32 v8, {VN}, v8
    v_mov_b32 v10, 0x3f80
    v_mov_b32 v11, 0x3f800000
    v_cmp_eq_u32 vcc, 0, v8
    v_cndmask_b32 v124, 0, v10, vcc
    v_cmp_eq_u32 vcc, 1, v8
    v_cndmask_b32 v124, v124, v11, vcc
    v_cmp_eq_u32 vcc, 2, v8
    v_cndmask_b32 v125, 0, v10, vcc
    v_cmp_eq_u32 vcc, 3, v8
    v_cndmask_b32 v125, v125, v11, vcc
    v_mov_b32 v126, 0
    v_mov_b32 v127, 0
    v_mov_b32 v128, 0
    v_mov_b32 v129, 0
    v_mov_b32 v130, v124
    v_mov_b32 v131, v125
    v_lshrrev_b32 v8, 3, {VL}
    v_mul_u32_u24 v8, 1792, v8
    v_and_b32 v9, 7, {VL}
    v_lshl_add_u32 v132, v9, 4, v8
    s_lshl_b32 s40, {SW}, 8
    v_add_u32 v132, s40, v132
    v_lshrrev_b32 v8, 5, {VL}
    v_lshl_add_u32 v8, v8, 3, v9
    s_lshl_b32 s40, {SW}, 4
    v_add_u32 v8, s40, v8
    v_mul_u32_u24 v9, 781, v8
    v_lshrrev_b32 v9, 14, v9          ; dq
    v_mul_u32_u24 v10, 21, v9
    v_sub_u32 v8, v8, v10             ; rho
    v_add_u32 v10, 48, v8
    v_cmp_gt_u32 vcc, 16, v8
    v_cndmask_b32 v8, v10, v8, vcc
    v_lshlrev_b32 v8, 4, v8
    v_lshlrev_b32 v10, 8, v9
    v_mov_b32 v11, {2*256+8}
    v_cmp_eq_u32 vcc, 4, v9
    v_cndmask_b32 v10, v10, v11, vcc
    v_mov_b32 v11, 2048
    v_cmp_lt_u32 vcc, 4, v9
    v_cndmask_b32 v10, v10, v11, vcc
    v_add_u32 v8, v8, v10
    v_and_b32 v9, 1, {VG}
    v_lshl_add_u32 v8, v9, 2, v8
    v_add_u32 v133, {KVF}, v8
    v_add_u32 v134, {KVF}, {VL16}
    v_min_u32 v8, 4, {VN}
    v_lshl_add_u32 v8, {VG}, 4, v8
    v_lshlrev_b32 v8, 4, v8
    v_add_u32 v135, {KVF+1024}, v8
    v_mov_b32 v8, 0
    v_lshlrev_b32 v9, 2, v0
    v_add_u32 v9, {KVF}, v9
    ds_write_b32 v9, v8
    v_bfe_u32 v8, {VN}, 2, 1
    v_mul_u32_u24 v8, 20480, v8
    v_lshrrev_b32 v9, 3, {VN}
    v_lshl_add_u32 v8, v9, 6, v8
    v_and_b32 v9, 3, {VN}
    v_lshl_add_u32 v8, v9, 4, v8
    s_mul_i32 s40, {SH}, 5
    v_add_u32 v9, s40, {VG}
    v_lshrrev_b32 v10, 1, v9
    v_lshl_add_u32 v136, v10, 8, v8
    v_and_b32 v10, 1, v9
    v_lshl_add_u32 v136, v10, 3, v136
    s_add_u32 s40, s40, 4
    s_lshr_b32 s41, s40, 1
    s_lshl_b32 s41, s41, 8
    s_and_b32 s40, s40, 1
    s_lshl_b32 s40, s40, 3
    s_add_u32 s40, s40, s41
    v_add_u32 v137, s40, v8
    v_lshlrev_b32 v138, 3, {VN}
    v_lshl_add_u32 v138, {VG}, 8, v138
    """)

def qkv_main(a, layer):
    last = layer==1
    NT = 5 if last else 4
    NR = NRS(layer); BS = BST(layer)
    xin = X3 if last else X1; var = VAR3 if last else VAR1
    a(f"""
    s_mul_i32 s52, s64, 40960
    s_add_u32 s52, s52, {xin}
    s_add_u32 s54, s52, 40960
    s_lshl_b32 s53, s68, 11
    s_add_u32 s53, s53, s52
    """)
    def dma0(j):
        a(f"s_add_u32 m0, s65, {(j%NR)*2048}")
        a("s_nop 0")
        a(f"buffer_load_dwordx4 v112, {R_WS}, s53 offen {'' if 'nosc' in EXP else 'sc1'} lds")
    def dma1(j):
        a(f"""
        buffer_load_dwordx4 v112, {R_WS}, s53 offen offset:1024 {'' if 'nosc' in EXP else 'sc1'} lds
        s_add_u32 s53, s53, 2048
        s_cmp_ge_u32 s53, s54
        s_cselect_b32 s53, s52, s53
        """)
    q=LQ(a)
    def rdA(j,k):
        aa,h=k>>1,k&1
        q.op(f"ds_read_b64_tr_b16 {v(QAF+8*(j%3)+4*aa+2*h,2)}, v{113+aa} offset:{(j%NR)*2048+256*h}", ("A",j,aa))
    def rdB(j,t):
        base,off=(VL16,j*BS) if j<10 else ("v115",(j-10)*BS)
        q.op(f"ds_read_b128 {v(QBF+20*(j&1)+4*t,4)}, {base} offset:{QB+off+1024*t}", ("B",j,t))
    for j in range(NR): dma0(j); dma1(j)
    for t in range(NT): rdB(0,t)
    a(f"""
    s_lshl_b32 s55, s64, 7
    s_add_u32 s55, s55, {var}
    s_lshl_b32 s56, s64, 8
    s_add_u32 s56, s56, {LSS + layer*16384}
    s_waitcnt vmcnt({2*NR-2})
    """)
    for k in range(4): rdA(0,k)
    a(f"s_waitcnt vmcnt({2*NR-4})")
    for k in range(4): rdA(1,k)
    q.need(("A",0,0),("A",0,1))
    dma0(NR); dma1(NR)
    JC = 16-NR
    for j in range(20):
        aux=[]
        if j+1<20: aux+= [(lambda t=t: (None if ("nob" in EXP and j>0) else rdB(j+1,t))) for t in range(NT)]
        if j+2<20:
            def first():
                a(f"s_waitcnt vmcnt({min(2*NR-2,2*(17-j)) if j<17 else 4})"); rdA(j+2,0)
            aux+= [first, lambda: rdA(j+2,1), lambda: (rdA(j+2,2), rdA(j+2,3))]
        pos_dma = 2
        for m in range(2*NT):
            t,aa=m>>1,m&1
            q.need(("A",j,aa),("B",j,t))
            d=v(QACC+8*t+4*aa,4); bf=v(QBF+20*(j&1)+4*t,4); af=v(QAF+8*(j%3)+4*aa,4); c=d if j else 0
            if "nomm" in EXP and j>0 and m>0: pass
            elif t>=3: a(f"{M16} {d}, {bf}, {af}, {c}")
            else: a(f"{M16} {d}, {af}, {bf}, {c}")
            if m<len(aux): aux[m]()
            if j+NR+1<20 and "nodma" not in EXP:
                if m==pos_dma:
                    q.need(("A",j+1,0),("A",j+1,1)); dma0(j+NR+1)
                if m==pos_dma+1: dma1(j+NR+1)
        if j==0:
            L=a.newlabel("ssq")
            a(f"""
            s_cmp_ge_u32 {SH}, 20
            s_cbranch_scc1 {L}
            v_mov_b32 v5, 0
            v_mov_b32 v6, 0
            v_and_b32 v7, v116, v{QAF+3}
            v_and_b32 v139, v116, v{QAF+7}
            """)
            for k in range(3):
                a(f"v_dot2c_f32_bf16 v5, v{QAF+k}, v{QAF+k}")
                a(f"v_dot2c_f32_bf16 v6, v{QAF+4+k}, v{QAF+4+k}")
            a(f"""
            v_dot2c_f32_bf16 v5, v7, v7
            v_dot2c_f32_bf16 v6, v139, v139
            v_permlane32_swap_b32 v5, v6
            v_add_f32 v5, v5, v6
            v_mov_b32 v6, v5
            v_permlane16_swap_b32 v5, v6
            v_add_f32 v5, v5, v6
            s_mov_b32 exec_lo, 0xffff
            s_mov_b32 exec_hi, 0xffff
            buffer_atomic_add_f32 v5, v117, {R_WS}, s55 offen
            s_mov_b64 exec, -1
            {L}:
            """)
        if j==JC:
            a(f"v_mov_b32 v5, 0\n buffer_load_dword v140, v5, {R_WS}, s56 offen sc1")
        if j==13:
            if not last:
                L=a.newlabel("w5c")
                a(f"""
                s_cmp_lg_u32 {SW}, 7
                s_cbranch_scc1 {L}
                """)
                bar_target(a, 5)
                a(f"""
                v_cmp_gt_u32 vcc, v253, v151
                s_cmp_eq_u64 vcc, 0
                s_cbranch_scc1 {L}
                """)
                wait(a, 5, bar=False)
                a.label(L)
            a("s_barrier")
        if j==8:
            if not last:
                L=a.newlabel("w5")
                a(f"""
                s_cmp_lg_u32 {SW}, 7
                s_cbranch_scc1 {L}
                s_and_b32 s59, s2, 3
                s_lshl_b32 s59, s59, 12
                s_add_u32 s59, s59, {CNTB(5)}
                v_lshlrev_b32 v255, 8, {VN}
                buffer_load_dword v151, v255, {R_WS}, s59 offen sc1
                {L}:
                """)
        if j==16:
            L=a.newlabel("ssp")
            a(f"""
            v_cmp_gt_u32 vcc, 20, v140
            s_cmp_eq_u64 vcc, 0
            s_cbranch_scc1 {L}
            v_mov_b32 v255, 0
            """)
            poll(a, R_WS, "s56", "v255", 20, 20+layer)
            a(f"""
            {L}:
            v_lshlrev_b32 v5, 4, {VG}
            v_lshlrev_b32 v6, 2, {VN}
            buffer_load_dwordx4 v[140:143], v5, {R_WS}, s55 offen sc1
            buffer_load_dwordx4 v[144:147], v5, {R_WS}, s55 offen offset:64 sc1
            buffer_load_dword v148, v6, {R_WS}, s55 offen sc1
            buffer_load_dword v149, v6, {R_WS}, s55 offen offset:64 sc1
            """)
        if j==18:
            a(f"s_mov_b32 s40, {f2u(2.0/(640*640))}\n v_mov_b32 v7, {f2u(1e-5)}\n s_waitcnt vmcnt(0)")
            for i in range(10): a(f"v_fma_f32 v{140+i}, v{140+i}, s40, v7")
            for i in range(10): a(f"v_rsq_f32 v{140+i}, v{140+i}")
        if j==NR+1:
            L=a.newlabel("ssf")
            a(f"s_cmp_ge_u32 {SH}, 20\n s_cbranch_scc1 {L}")
            larrive(a, "s56")
            a.label(L)

def qkv_tail(a, layer):
    last = layer==1
    ob = O4 if last else O2
    A=lambda t,aa,i=0: QACC+8*t+4*aa+i
    RR=140; RL=148; S2=64; E=72; P0_,P1_,P2_,P2o=80,84,88,92; QP=96
    ao_wload(a, WOR if last else WOF, 1)
    a(f"""
    v_mov_b32 v58, {f2u(1e-6)}
    s_mov_b32 s41, {f2u(math.log2(math.e))}
    """)
    if last:
        a(f"""
        s_mul_i32 s42, s64, 40960
        s_mul_i32 s43, {SH}, 1280
        s_add_u32 s42, s42, s43
        s_add_u32 s42, s42, {Y3}
        s_mov_b32 s43, {f2u(2.0/640)}
        """)
        for i in range(8): a(f"v_mul_f32 v{A(4,0,i)}, s43, v{A(4,0,i)}")
        for q in range(4): a(f"v_cvt_pk_bf16_f32 v{60+q}, v{A(4,0,2*q)}, v{A(4,0,2*q+1)}")
        for q in range(4): a(f"v_max_u32 v{60+q}, 1, v{60+q}")
        a(f"buffer_store_dwordx2 v[60:61], v138, {R_WS}, s42 offen sc1")
        a(f"buffer_store_dwordx2 v[62:63], v138, {R_WS}, s42 offen offset:128 sc1")
    def phi(t, scale, eps, lo, sel):
        for i in range(8): a(f"v_fma_f32 v{A(t,0,i)}, v{A(t,0,i)}, {scale(i)}, {eps}")
        for i in range(8): a(f"v_mul_f32 v{E+i}, s41, v{A(t,0,i)}")
        for i in range(8): a(f"v_exp_f32_e64 v{E+i}, v{E+i} clamp")
        for i in range(8): a(f"v_max_f32 v{A(t,0,i)}, v{A(t,0,i)}, {lo}")
        for i in range(8):
            if sel: a(f"v_fma_f32 v{A(t,0,i)}, v{E+i}, {sel}, v{A(t,0,i)}")
            else: a(f"v_add_f32 v{A(t,0,i)}, v{A(t,0,i)}, v{E+i}")
    def pack(t, dst):
        for q in range(4): a(f"v_cvt_pk_bf16_f32 v{dst+q}, v{A(t,0,2*q)}, v{A(t,0,2*q+1)}")
    for i in range(8): a(f"v_mul_f32 v{A(1,0,i)}, v{A(1,0,i)}, v{RR+i}")
    pack(1,P1_)
    for i in range(8): a(f"v_fma_f32 v{S2+i}, v{RR+i}, v122, v123")
    phi(0, lambda i:f"v{RR+i}", "v58", "v58", None); pack(0,P0_)
    phi(2, lambda i:f"v{S2+i}", "v119", "v120", "v121"); pack(2,P2_)
    if not last:
        a(f"v_cmp_gt_u32 vcc, 12, {VN}")
        for q in range(4): a(f"v_cndmask_b32 v{P2_+q}, 0, v{P2_+q}, vcc")
    a(f"v_mov_b32 v5, 0x3f803f80\n v_cmp_gt_u32 vcc, 4, {VN}")
    for q in range(4): a(f"v_cndmask_b32 v{P2o+q}, v{P2_+q}, v5, vcc")
    a(f"""
    {M16} v[8:11], {v(P0_,4)}, {v(P1_,4)}, 0
    {M16} v[12:15], {v(P2_,4)}, {v(P1_,4)}, 0
    {M16} v[16:19], {v(P0_,4)}, {v(P2o,4)}, 0
    {M16} v[20:23], {v(P2_,4)}, {v(P2o,4)}, 0
    {M16} v[24:27], {v(P2_,4)}, v[124:127], 0
    {M16} v[28:31], {v(P2_,4)}, v[128:131], 0
    v_add_u32 v6, s65, {VL16}
    """)
    for q in range(4): a(f"ds_write_b128 v6, {v(8+4*q,4)} offset:{1024*q}")
    if not last:
        zfill(a, O4, 5120, 3, 60)
        a(f"s_mov_b32 s41, {f2u(math.log2(math.e))}")
    a("s_waitcnt lgkmcnt(0)\n s_barrier")
    L7=a.newlabel("kv7"); LJ=a.newlabel("kvj"); L=a.newlabel("kvs")
    a(f"""
    s_mul_i32 s57, {SH}, {8*1792}
    s_add_u32 s57, s57, {KVP + layer*256*1792}
    s_cmp_eq_u32 {SW}, 7
    s_cbranch_scc1 {L}
    """)
    for w in range(8): a(f"ds_read_b32 v{8+w}, v118 offset:{w*2048*NRS(layer)}")
    a(f"""
    v_lshlrev_b32 v6, 2, v0
    s_mul_i32 s40, {SR}, 1792
    s_add_u32 s40, s40, s57
    s_waitcnt lgkmcnt(0)
    v_add_f32 v8, v8, v9
    v_add_f32 v10, v10, v11
    v_add_f32 v12, v12, v13
    v_add_f32 v14, v14, v15
    v_add_f32 v8, v8, v10
    v_add_f32 v12, v12, v14
    v_add_f32 v8, v8, v12
    v_max_u32 v8, 1, v8
    buffer_store_dword v8, v6, {R_WS}, s40 offen sc1
    {L}:
    """)
    phi(3, lambda i:f"v{RL+(i>>2)}", "v58", "v58", None)
    for aa in range(2):
        a(f"v_cvt_pk_bf16_f32 v{QP+4*aa}, v{A(3,aa,0)}, v{A(3,aa,1)}")
        a(f"v_cvt_pk_bf16_f32 v{QP+4*aa+1}, v{A(3,aa,2)}, v{A(3,aa,3)}")
        a(f"v_cvt_pk_bf16_f32 v{QP+4*aa+2}, v{24+4*aa}, v{25+4*aa}")
        a(f"v_cvt_pk_bf16_f32 v{QP+4*aa+3}, v{26+4*aa}, v{27+4*aa}")
    a(f"""
    s_mul_i32 s44, s64, 40960
    s_add_u32 s44, s44, {ob}
    """)
    pst(a,3)
    LP=a.newlabel("kvp"); LD=a.newlabel("kvd")
    a(f"""
    s_cmp_eq_u32 {SW}, 7
    s_cbranch_scc1 {L7}
    s_mov_b32 s58, {SPIN}
    {LP}:
    buffer_load_dwordx4 v[8:11], v132, {R_WS}, s57 offen sc1
    buffer_load_dwordx4 v[12:15], v132, {R_WS}, s57 offen offset:128 sc1
    s_waitcnt vmcnt(0)
    v_min3_u32 v16, v8, v9, v10
    v_min3_u32 v17, v11, v12, v13
    v_min3_u32 v16, v16, v14, v15
    v_min_u32 v16, v16, v17
    v_cmp_eq_u32 vcc, 0, v16
    s_cmp_eq_u64 vcc, 0
    s_cbranch_scc1 {LD}
    """)
    retry_check(a, None, LP, LD, 30+layer)
    a.label(LD)
    for i in range(4): a(f"v_permlane32_swap_b32 v{8+i}, v{12+i}")
    for i in range(4): a(f"v_add_f32 v{8+i}, v{8+i}, v{12+i}")
    a(f"""
    v_permlane16_swap_b32 v8, v10
    v_permlane16_swap_b32 v9, v11
    v_add_f32 v8, v8, v10
    v_add_f32 v9, v9, v11
    v_add_f32_dpp v8, v8, v8 row_ror:8 row_mask:0xf bank_mask:0xf
    v_add_f32_dpp v9, v9, v9 row_ror:8 row_mask:0xf bank_mask:0xf
    v_cvt_pk_bf16_f32 v8, v8, v9
    ds_write_b32 v133, v8
    s_waitcnt lgkmcnt(0)
    s_branch {LJ}
    {L7}:
    """)
    ao_wload(a, WOR if last else WOF, 0)
    a(f"""
    {LJ}:
    s_barrier
    ds_read_b128 v[28:31], v135
    ds_read_b128 v[24:27], v134
    """)
    pst(a,4)
    a("s_waitcnt lgkmcnt(0)")
    for aa in range(2):
        a(f"{M16} {v(36+8*aa,4)}, v[28:31], {v(QP+4*aa,4)}, 0")
    for aa in range(2):
        a(f"{M16} {v(32+8*aa,4)}, v[24:27], {v(QP+4*aa,4)}, 0")
    for aa in range(2):
        D=32+8*aa
        a(f"""
        v_mov_b32 v{8+2*aa}, v{D+4}
        v_mov_b32 v{9+2*aa}, v{D+4}
        """)
    for aa in range(2): a(f"v_permlane16_swap_b32 v{8+2*aa}, v{9+2*aa}")
    for aa in range(2): a(f"v_add_f32 v{9+2*aa}, v{9+2*aa}, v58")
    for aa in range(2): a(f"v_rcp_f32 v{9+2*aa}, v{9+2*aa}")
    for aa in range(2):
        D=32+8*aa
        for i in range(8): a(f"v_mul_f32 v{D+i}, v{D+i}, v{9+2*aa}")
        for q in range(4): a(f"v_cvt_pk_bf16_f32 v{12+4*aa+q}, v{D+2*q}, v{D+2*q+1}")
        for q in range(4): a(f"v_max_u32 v{12+4*aa+q}, 1, v{12+4*aa+q}")
        a(f"buffer_store_dwordx2 {v(12+4*aa,2)}, v136, {R_WS}, s44 offen offset:{128*aa} sc1")
    a(f"""
    s_mov_b64 exec, 0xffff
    buffer_store_dwordx2 v[14:15], v137, {R_WS}, s44 offen sc1
    buffer_store_dwordx2 v[18:19], v137, {R_WS}, s44 offen offset:128 sc1
    s_mov_b64 exec, -1
    """)
    if last:
        for r in (QP+2,QP+3,QP+6,QP+7): a(f"v_max_u32 v{r}, 1, v{r}")
        a(f"""
        s_mov_b32 exec_lo, 0
        s_mov_b32 exec_hi, 0xffff0000
        buffer_store_dwordx2 {v(QP+2,2)}, v138, {R_WS}, s42 offen offset:256 sc1
        buffer_store_dwordx2 {v(QP+6,2)}, v138, {R_WS}, s42 offen offset:384 sc1
        s_mov_b64 exec, -1
        """)

def ao_wload(a, wt, part):
    a(f"""
    s_mul_i32 s40, {ST}, 102400
    s_add_u32 s40, s40, {wt}
    """)
    if part==0:
        for f in range(48,100):
            if f%4==0: a(f"s_add_u32 s41, s40, {f*1024}\n s_mov_b32 m0, {FT+f*1024}")
            a(f"buffer_load_dwordx4 {VL16}, {R_WS}, s41 offen offset:{1024*(f%4)} sc1 lds")
    else:
        a(f"""
        s_mul_i32 s41, {SW}, 6144
        s_add_u32 s40, s40, s41
        """)
        for j in range(6):
            if j%4==0: a(f"s_add_u32 s45, s40, {j*1024}\n s_add_u32 m0, s41, {FT+j*1024}")
            a(f"buffer_load_dwordx4 {VL16}, {R_WS}, s45 offen offset:{1024*(j%4)} sc1 lds")

def ao_main(a, layer):
    ob = O4 if layer else O2
    a(f"""
    s_lshl_b32 s48, {SI}, 2
    s_add_u32 s48, s48, s60
    s_mul_i32 s48, s48, 20480
    s_mul_i32 s41, s61, 10240
    s_add_u32 s48, s48, s41
    s_add_u32 s48, s48, {ob}
    s_add_u32 s49, s48, 4096
    s_add_u32 s50, s48, 8192
    s_mov_b32 s58, {SPIN}
    """)
    ld=lambda j: a(f"buffer_load_dwordx4 {v(PF+4*j,4)}, {VL16}, {R_WS}, s{48+j//4} offen offset:{1024*(j%4)} sc1")
    a("s_waitcnt vmcnt(0)\n s_barrier")
    pst(a,7)
    if layer:
        L=a.newlabel("p6l")
        a(f"s_cmp_lg_u32 s61, 0\n s_cbranch_scc1 {L}")
        p6_resload(a)
        a.label(L)
    for j in range(10): ld(j)
    blocks=[]
    def chk(j):
        a(f"""
        v_min3_u32 v5, v{PF+4*j}, v{PF+4*j+1}, v{PF+4*j+2}
        v_min_u32 v5, v5, v{PF+4*j+3}
        v_cmp_eq_u32 vcc, 0, v5
        s_cmp_lg_u64 vcc, 0
        """)
    def wp(j):
        R=a.newlabel("aor"); B=a.newlabel("aob")
        a(f"s_waitcnt vmcnt({9-j})")
        chk(j)
        a(f"s_cbranch_scc1 {R}")
        a.label(B)
        blocks.append((j,R,B))
    g640_core(a, layer==1, "v21", wait_priv=wp)
    def emit_blocks():
        for j,R,B in blocks:
            OK=a.newlabel("aok")
            a.label(R)
            ld(j)
            a("s_waitcnt vmcnt(0)")
            chk(j)
            a(f"s_cbranch_scc0 {OK}")
            retry_check(a, None, R, B, 40+layer)
            a.label(OK)
            for k in range(j+1,10): ld(k)
            a(f"s_branch {B}")
    a.late.append(emit_blocks)

def p6_prep(a):
    mu_pos(a, "v10", "s62", "v11")
    a(f"""
    v_mul_u32_u24 v22, 1280, {VG}
    v_lshl_add_u32 v22, v10, 3, v22
    s_lshl_b32 s74, {SI}, 1
    s_add_u32 s74, s74, s63
    s_mul_i32 s74, s74, 40960
    s_mul_i32 s41, {ST}, 5120
    s_add_u32 s74, s74, s41
    s_add_u32 s74, s74, {Y3}
    """)
    tok_row(a)("v10", VN)
    a(f"""
    s_movk_i32 s41, 1280
    v_mul_lo_u32 v10, v10, s41
    v_mul_u32_u24 v12, 40, {VG}
    v_add_u32 v23, v10, v12
    s_mul_i32 s75, {ST}, 160
    s_mul_i32 s40, s60, 5120
    s_add_u32 s40, s40, {RS}
    v_add_u32 v9, s40, {VL16}
    """)

def p6_resload(a):
    for nt in range(5): a(f"buffer_load_dwordx2 {v(10+2*nt,2)}, v22, {R_WS}, s74 offen offset:{256*nt} sc1")

def p6_epilogue(a):
    L1=a.newlabel("p6a"); L2=a.newlabel("p6b"); LR=a.newlabel("p6r"); LK=a.newlabel("p6k")
    a(f"s_cmp_eq_u32 s61, 0\n s_cbranch_scc1 {L1}")
    for nt in range(5): a(f"ds_write_b128 v9, {v(AC+4*nt,4)} offset:{nt*1024}")
    a(f"""
    s_waitcnt lgkmcnt(0)
    s_barrier
    s_branch {L2}
    {LR}:
    """)
    p6_resload(a)
    a("s_waitcnt vmcnt(0)")
    retry_check(a, None, L1, LK, 50)
    a(f"""
    {L1}:
    v_min3_u32 v6, v10, v11, v12
    v_min3_u32 v7, v13, v14, v15
    v_min3_u32 v6, v6, v16, v17
    v_min3_u32 v7, v7, v18, v19
    v_min_u32 v6, v6, v7
    v_cmp_eq_u32 vcc, 0, v6
    s_cmp_lg_u64 vcc, 0
    s_cbranch_scc1 {LR}
    {LK}:
    """)
    for q in range(10):
        a(f"""
        v_lshlrev_b32 v6, 16, v{10+q}
        v_and_b32 v7, 0xffff0000, v{10+q}
        v_add_f32 v{AC+2*q}, v{AC+2*q}, v6
        v_add_f32 v{AC+2*q+1}, v{AC+2*q+1}, v7
        """)
    a("s_barrier")
    for nt in range(5): a(f"ds_read_b128 {v(SB+4*nt,4)}, v9 offset:{nt*1024}")
    a("s_waitcnt lgkmcnt(0)")
    for q in range(10):
        a(f"""
        v_add_f32 v{AC+2*q}, v{AC+2*q}, v{SB+2*q}
        v_add_f32 v{AC+2*q+1}, v{AC+2*q+1}, v{SB+2*q+1}
        v_cvt_pk_bf16_f32 v{64+q}, v{AC+2*q}, v{AC+2*q+1}
        """)
    a(f"""
    buffer_store_dwordx4 v[64:67], v23, {R_OUT}, s75 offen
    buffer_store_dwordx4 v[68:71], v23, {R_OUT}, s75 offen offset:16
    buffer_store_dwordx2 v[72:73], v23, {R_OUT}, s75 offen offset:32
    {L2}:
    """)

def body(a):
    pst(a,0)
    l2_touch(a)
    wt_loads(a)
    zero_issue(a)
    pst(a,1)
    gen_ftile(a)
    zero_signal(a)
    pst(a,2)
    rows_dma(a, R_X, tok_row(a))
    L=a.newlabel("nc")
    a(f"s_cmp_ge_u32 s72, 20\n s_cbranch_scc1 {L}")
    fft_consts(a)
    a.label(L)
    wq_loads(a)
    side_job(a, False, 20)
    pst(a,3)
    xe_prep(a, False, sign="v5")
    rows_read(a, 10)
    L6=a.newlabel("w6")
    a(f"""
    s_cmp_lt_u32 {SW}, 3
    s_cbranch_scc1 {L6}
    s_waitcnt vmcnt(0)
    {L6}:
    s_waitcnt vmcnt(4) lgkmcnt(0)
    """)
    wq_stage(a)
    zfill(a, KVP, (ZCEND-KVP)//1024, 1, 12)
    pst(a,4)
    xq_core(a)
    pst(a,5)
    init_probe(a)
    xtile_base(a, "s64")
    a(f"s_mov_b32 s65, {VAR0}")
    xtype_epilogue(a, "s64", False, "s65", vm1="v5", pre_bar=lambda: (a("s_waitcnt vmcnt(3)"), init_wait(a)), AC=ACX, T=PF,
                   extra_write=lambda: wq_write(a), extra_work=lambda: wq_fin(a))
    pst(a,6)
    pflush(a,0)
    def fft_phase(layer, k):
        first = layer==0
        xin,xout,var,bw,ba = (X0,X1,VAR0,0,2) if first else (X2,X3,VAR2,3,4)
        S=a.newlabel("side"); J=a.newlabel("join"); S2=a.newlabel("side2")
        qkv_roles(a, layer)
        a(f"s_cmp_ge_u32 s72, 20\n s_cbranch_scc1 {S}")
        fft_prep(a, first)
        drain(a); arrive(a, bw)
        pst(a,1)
        wait(a, bw)
        pst(a,2)
        bg=fft_main(a, xin, xout, var, first)
        pst(a,3)
        if "fd" in EXP and not first: pflush(a,6)
        qkv_prep(a, layer)
        drain(a); arrive(a, ba)
        for c in bg: c()
        pst(a,4)
        a(f"s_branch {J}")
        a.label(S)
        drain(a); arrive(a, bw)
        pst(a,1)
        if first:
            pass
            a(f"s_sub_u32 s66, s72, 20\n s_cmp_ge_u32 s66, 10\n s_cbranch_scc1 {S2}")
            wo_job(a, False)
            drain(a)
            S3=a.newlabel("side3")
            a(f"s_branch {S3}")
            a.label(S2)
            gcol_job(a)
            a.label(S3)
            wait(a, 0)
            arrive(a, 5)
        qkv_bload(a, 4 if first else 5)
        if first:
            wor_loads(a)
            side_job(a, True, 0)
        qkv_prep(a, layer)
        a.label(J)
        a("s_waitcnt vmcnt(0)")
        pst(a,5)
        pflush(a,k)
    def attn_phase(layer, k):
        last = layer==1
        pst(a,0)
        wait(a, 4 if last else 2)
        pst(a,1)
        if "clk" in EXP: a("s_memtime s[84:85]")
        qkv_main(a, layer)
        pst(a,2)
        if "clk" in EXP: a("s_memtime s[98:99]")
        qkv_tail(a, layer)
        pst(a,5)
        a(f"s_mul_i32 s40, s61, 51200\n v_add_u32 v21, s40, {VL16}")
        if last:
            p6_prep(a)
        else:
            xtile_base(a, "s64")
            a(f"s_add_u32 s66, s64, {X1}\n s_add_u32 s64, s64, {X2}\n s_mov_b32 s65, {VAR2}")
            xe_prep(a, False, "s66")
        pst(a,6)
        pflush(a,k)
        ao_main(a, layer)
        pst(a,0)
        if last:
            p6_epilogue(a)
            pst(a,1)
            if STAMPS: a("s_waitcnt vmcnt(0)")
            pst(a,2)
            pflush(a,k+1)
        else:
            xtype_epilogue(a, "s64", True, "s65")
            pst(a,6)
            if "xe" in EXP: pflush(a,6)
    fft_phase(0,1)
    attn_phase(0,2)
    fft_phase(1,3)
    attn_phase(1,4)

def build(path):
    n=NAME+"_kernel"
    a=Asm(); a.late=[]
    a.l.append(f".globl {n}\n.p2align 8\n.type {n},@function")
    a.label(n)
    prologue(a)
    if STAMPS:
        for i in range(84,100): a(f"s_mov_b32 s{i}, 0")
    body(a)
    a.label("kexit")
    a("s_endpgm")
    for f in a.late: f()
    hdr=open("cdna_kernels/"+NAME+".s.ref").read().split("; Override")[0]
    txt=hdr+"; @launch grid=(256,1,1) block=(512,1,1) lds=163840\n"+'.amdgcn_target "amdgcn-amd-amdhsa--gfx950"\n.text\n'+a.text()
    txt+=f""".section .rodata,"a"
.p2align 6
.amdhsa_kernel {n}
  .amdhsa_next_free_vgpr 256
  .amdhsa_next_free_sgpr 102
  .amdhsa_accum_offset 256
  .amdhsa_group_segment_fixed_size 0
  .amdhsa_kernarg_size 72
  .amdhsa_user_sgpr_count 2
  .amdhsa_user_sgpr_kernarg_segment_ptr 1
  .amdhsa_system_sgpr_workgroup_id_x 1
.end_amdhsa_kernel
"""
    open(path,"w").write(txt)

if __name__=="__main__":
    if len(sys.argv)>2 and sys.argv[2]=='1': STAMPS=True
    if len(sys.argv)>3: EXP=set(sys.argv[3].split(","))
    for e in EXP:
        if e.startswith("rx"): RXS=[int(e[2]),int(e[3])]
    build(sys.argv[1])
```

```python
import sys, math
sys.path.insert(0, "gen")
from asmlib import *

NAME = "interleave_layers__spectral_gfnet__linear_attn_block__prompt"
XB = 2621440
X0, X2, X3 = 0, 2*XB, 3*XB
X1 = 13*XB
O4 = 5*XB
O2 = 4*XB
KVP = 14*XB
Y3 = 6*XB
WT = 11*XB
WQF = 8*XB
WOF = WQF + 32*102400
WOR = WOF + 819200
ZA = 10*XB
CNT0 = ZA
PV0 = ZA + 65536
ZC = KVP + 2*256*1792
PV2 = ZC; VAR1 = PV2 + 32768; VAR3 = VAR1 + 8192
LSS = VAR3 + 8192
CNT1 = LSS + 32768
ZCEND = CNT1 + 5*16384
def CNTB(b): return CNT0 + b*16384 if b<2 else CNT1 + (b-1)*16384
RXS = [4,2]
DBGW = 10*XB + 1048576
WS_SIZE = 15*XB
OOB = 0x7ff00000

SW,SX,SA,ST,SI = "s3","s4","s5","s6","s7"
SH = "s71"
SR = "s80"
SROT = "s68"
R_X,R_WR,R_WI,R_WQKV,R_WO,R_OUT,R_WS,R_DBG = ["s[%d:%d]"%(8+4*i,11+4*i) for i in range(8)]
VL,VN,VG,VL16 = "v1","v2","v3","v4"
M16 = "v_mfma_f32_16x16x32_bf16"
STAMPS = False
EXP = set()
DEF = {'early','wtouch'}

def pst(a, i):
    if STAMPS: a(f"s_memrealtime s[{84+2*i}:{85+2*i}]")
def pflush(a, k):
    if not STAMPS: return
    a("s_waitcnt lgkmcnt(0)")
    a(f"""
    s_lshl_b32 s58, s2, 3
    s_add_u32 s58, s58, {SW}
    s_lshl_b32 s58, s58, 5
    s_add_u32 s58, s58, {DBGW + k*65536}
    v_lshlrev_b32 v255, 2, {VL}
    """)
    for i in range(8): a(f"v_writelane_b32 v254, s{84+2*i}, {i}")
    a(f"""
    s_mov_b64 exec, 0xff
    buffer_store_dword v254, v255, {R_WS}, s58 offen
    s_mov_b64 exec, -1
    """)
    for i in range(84,100): a(f"s_mov_b32 s{i}, 0")

def prologue(a):
    a(f"""
    s_cmp_ge_u32 s2, 256
    s_cbranch_scc1 kexit
    s_load_dwordx16 s[40:55], s[0:1], 0
    s_load_dwordx2 s[56:57], s[0:1], 64
    v_and_b32 {VL}, 63, v0
    v_lshrrev_b32 v5, 6, v0
    v_and_b32 {VN}, 15, v0
    v_bfe_u32 {VG}, v0, 4, 2
    v_readfirstlane_b32 {SW}, v5
    v_lshlrev_b32 {VL16}, 4, {VL}
    s_and_b32 {SX}, s2, 7
    s_bfe_u32 {SA}, s2, 0x20003
    s_lshr_b32 {ST}, s2, 5
    s_lshl_b32 {SI}, {SX}, 2
    s_add_u32 {SI}, {SI}, {SA}
    s_mov_b32 s83, 0
    s_mov_b32 s79, 0
    s_mov_b32 s69, 0
    s_mov_b32 s70, 0
    v_mov_b32 v252, 0
    v_mov_b32 v244, 0
    s_and_b32 s60, {SW}, 3
    s_lshr_b32 s61, {SW}, 2
    s_and_b32 s62, {SW}, 1
    s_lshl_b32 s62, s62, 2
    s_bfe_u32 s63, {SW}, 0x10001
    s_and_b32 s72, {ST}, 1
    s_lshl_b32 s72, s72, 2
    s_add_u32 s72, s72, {SX}
    s_and_b32 s72, s72, 7
    s_lshl_b32 s73, {SA}, 3
    s_add_u32 s72, s72, s73
    s_mul_i32 s73, {ST}, 20
    s_add_u32 s73, s73, s72
    s_waitcnt lgkmcnt(0)
    """)
    for srd, src, size in ((8,40,2621440),(32,56,WS_SIZE),(20,48,2457600),(12,42,1314816),(16,44,1314816),(24,50,819200),(28,52,2621440),(36,54,256)):
        a(f"""
        s_mov_b32 s{srd}, s{src}
        s_and_b32 s{srd+1}, s{src+1}, 0xffff
        s_mov_b32 s{srd+2}, {size}
        s_mov_b32 s{srd+3}, 0x20000
        """)

def zero_issue(a):
    L = a.newlabel("zi")
    a(f"""
    s_cmp_lg_u32 s2, 0
    s_cbranch_scc1 {L}
    s_cmp_lg_u32 {SW}, 6
    s_cbranch_scc1 {L}
    v_mov_b32 v8, 0
    v_mov_b32 v9, 0
    v_mov_b32 v10, 0
    v_mov_b32 v11, 0
    s_mov_b32 s42, {CNT0}
    v_lshlrev_b32 v12, 8, {VL}
    buffer_store_dword v8, v12, {R_WS}, s42 offen sc1
    s_mov_b32 s42, {CNT0+16384}
    buffer_store_dword v8, v12, {R_WS}, s42 offen sc1
    """)
    a.label(L)

def zero_signal(a):
    L = a.newlabel("zs")
    a(f"""
    s_cmp_lg_u32 s2, 0
    s_cbranch_scc1 {L}
    s_cmp_lg_u32 {SW}, 6
    s_cbranch_scc1 {L}
    s_waitcnt vmcnt(0)
    v_mov_b32 v254, 1
    v_mov_b32 v255, 0
    s_mov_b64 exec, 1
    buffer_store_dword v254, v255, {R_DBG}, 0 offen sc1
    s_mov_b64 exec, -1
    {L}:
    """)

def zfill(a, base, nchunks, rounds, zr):
    for k in range(4): a(f"v_mov_b32 v{zr+k}, 0")
    a(f"""
    s_lshl_b32 s40, {SW}, 8
    s_add_u32 s40, s40, s2
    s_lshl_b32 s41, s40, 10
    s_add_u32 s41, s41, {base}
    """)
    L=a.newlabel("zf")
    for i in range(rounds):
        if (i+1)*2048>nchunks: a(f"s_cmp_ge_u32 s40, {nchunks-i*2048}\n s_cbranch_scc1 {L}")
        a(f"buffer_store_dwordx4 {v(zr,4)}, {VL16}, {R_WS}, s41 offen sc1")
        if i<rounds-1: a(f"s_add_u32 s41, s41, {2048*1024}")
    a.label(L)

SPIN = 40000
def retry_check(a, Lfail_tag, Lback, Ldone, tag):
    a(f"""
    s_cmp_lg_u32 s83, 0
    s_cbranch_scc1 {Ldone}
    {'s_sleep 4' if 'sleep' in EXP else ''}
    s_sub_u32 s58, s58, 1
    s_cmp_lg_u32 s58, 0
    s_cbranch_scc1 {Lback}
    s_mov_b32 s83, {tag}
    v_mov_b32 v254, {tag}
    v_mov_b32 v255, 16
    buffer_store_dword v254, v255, {R_DBG}, 0 offen
    s_branch {Ldone}
    """)

def poll(a, srd, soff, vaddr, target, tag):
    Lp=a.newlabel("poll"); Ld=a.newlabel("polld")
    a(f"""
    s_mov_b32 s58, {SPIN}
    s_cmp_lg_u32 s83, 0
    s_cbranch_scc1 {Ld}
    {Lp}:
    buffer_load_dword v254, {vaddr}, {srd}, {soff} offen sc1
    s_waitcnt vmcnt(0)
    v_cmp_gt_u32 vcc, {target}, v254
    s_cmp_eq_u64 vcc, 0
    s_cbranch_scc1 {Ld}
    s_sub_u32 s58, s58, 1
    s_cmp_lg_u32 s58, 0
    s_cbranch_scc1 {Lp}
    s_mov_b32 s83, {tag}
    v_mov_b32 v254, {tag}
    v_mov_b32 v255, 16
    buffer_store_dword v254, v255, {R_DBG}, 0 offen
    {Ld}:
    """)

def init_probe(a):
    L=a.newlabel("ip")
    a(f"""
    s_cmp_lg_u32 {SW}, 6
    s_cbranch_scc1 {L}
    v_mov_b32 v255, 0
    buffer_load_dword v253, v255, {R_DBG}, 0 offen sc1
    {L}:
    """)

def init_wait(a):
    L=a.newlabel("iw")
    a(f"""
    v_cmp_gt_u32 vcc, 1, v253
    s_cmp_eq_u64 vcc, 0
    s_cbranch_scc1 {L}
    v_mov_b32 v255, 0
    """)
    poll(a, R_DBG, 0, "v255", 1, 100)
    a.label(L)

def drain(a): a("s_waitcnt vmcnt(0) lgkmcnt(0)\n s_barrier")

def arrive(a, beta):
    L=a.newlabel("arr")
    a(f"""
    s_cmp_lg_u32 {SW}, 6
    s_cbranch_scc1 {L}
    s_and_b32 s59, s2, 15
    s_lshl_b32 s59, s59, 8
    s_add_u32 s59, s59, {CNTB(beta)}
    v_lshlrev_b32 v255, 12, {VL}
    v_mov_b32 v254, 1
    s_mov_b64 exec, 15
    buffer_atomic_add v254, v255, {R_WS}, s59 offen sc1
    s_mov_b64 exec, -1
    {L}:
    """)

def bar_target(a, beta):
    lo = 4 if beta in (3,5) else 12
    a(f"v_cmp_gt_u32 vcc, 8, {VN}\n v_mov_b32 v253, {lo}\n v_cndmask_b32 v253, 8, v253, vcc")

def wait(a, beta, bar=True, target=16):
    L=a.newlabel("wt")
    a(f"""
    s_cmp_lg_u32 {SW}, 7
    s_cbranch_scc1 {L}
    s_and_b32 s59, s2, 3
    s_lshl_b32 s59, s59, 12
    s_add_u32 s59, s59, {CNTB(beta)}
    v_lshlrev_b32 v255, 8, {VN}
    """)
    if beta in (2,3,4,5):
        bar_target(a, beta); target="v253"
    poll(a, R_WS, "s59", "v255", target, beta+1)
    a.label(L)
    if bar: a("s_barrier")

def larrive(a, soff):
    a(f"""
    v_mov_b32 v255, 0
    v_mov_b32 v254, 1
    s_mov_b64 exec, 1
    buffer_atomic_add v254, v255, {R_WS}, {soff} offen sc1
    s_mov_b64 exec, -1
    """)

FT = 0
AL = 51200
RS = 102400
VARL = 147456
def gen_ftile(a, selector=False, mid=None):
    Lp=a.newlabel("ft")
    a(f"s_mov_b32 s40, {SW}")
    if not selector:
        a(f"""
        v_and_b32 v8, 1, {VN}
        v_cvt_f32_u32 v8, v8
        v_mul_f32 v8, 0.25, v8
        v_lshrrev_b32 v9, 1, {VN}
        s_mul_i32 s44, {ST}, 40
        s_add_u32 s44, s44, 1
        v_add_u32 v9, s44, v9
        v_lshlrev_b32 v10, 3, {VG}
        s_mov_b32 s45, {f2u(1.0/640)}
        v_mov_b32 v28, 0.125
        v_sub_f32 v29, 0.5, v8
        v_sub_f32 v29, v29, v8
        """)
    else:
        a(f"""
        v_lshrrev_b32 v9, 2, {VN}
        v_mul_u32_u24 v9, 20, v9
        v_and_b32 v8, 3, {VN}
        v_add_u32 v9, v9, v8
        s_and_b32 s44, {ST}, 3
        s_mul_i32 s44, s44, 80
        v_add_u32 v9, s44, v9
        v_lshlrev_b32 v10, 3, {VG}
        v_sub_u32 v9, v9, v10
        v_mov_b32 v28, 0x3f80
        v_mov_b32 v29, 0x3f800000
        """)
    a.label(Lp)
    a(f"""
    s_mul_i32 s41, s40, 52
    s_lshr_b32 s41, s41, 8
    s_mul_i32 s42, s41, 5
    s_sub_u32 s42, s40, s42
    s_lshl_b32 s43, s40, 10
    v_add_u32 v30, s43, {VL16}
    """)
    if not selector:
        a(f"""
        s_lshl_b32 s42, s42, 3
        s_lshl_b32 s41, s41, 5
        v_add_u32 v11, s42, v9
        v_add_u32 v12, s41, v10
        v_cmp_eq_u32 vcc, 0x140, v11
        v_cvt_f32_u32 v13, v11
        v_cvt_f32_u32 v12, v12
        v_mul_f32 v13, s45, v13
        v_cndmask_b32 v14, v8, v28, vcc
        v_cndmask_b32 v13, v13, v29, vcc
        v_fma_f32 v16, v12, v13, v14
        v_cos_f32 v15, v13
        v_add_f32 v17, v16, v13
        v_cos_f32 v16, v16
        v_cos_f32 v17, v17
        v_add_f32 v15, v15, v15
        """)
        for i in range(2,8): a(f"v_fma_f32 v{16+i}, v15, v{15+i}, -v{14+i}")
        for i in range(4): a(f"v_cvt_pk_bf16_f32 v{24+i}, v{16+2*i}, v{17+2*i}")
    else:
        a(f"""
        s_lshl_b32 s42, s42, 2
        s_lshl_b32 s41, s41, 5
        s_sub_u32 s42, s42, s41
        v_add_u32 v11, s42, v9
        """)
        for q in range(4):
            a(f"""
            v_cmp_eq_u32 vcc, {2*q}, v11
            v_cndmask_b32 v{24+q}, 0, v28, vcc
            v_cmp_eq_u32 vcc, {2*q+1}, v11
            v_cndmask_b32 v{24+q}, v{24+q}, v29, vcc
            """)
    a(f"""
    ds_write_b128 v30, v[24:27] offset:{FT}
    s_add_u32 s40, s40, 8
    s_cmp_lt_u32 s40, 50
    s_cbranch_scc1 {Lp}
    """)

def l2_touch(a):
    L1=a.newlabel("tc1"); L2=a.newlabel("tc2"); L3=a.newlabel("tc3"); L4=a.newlabel("tc4")
    a(f"""
    s_cmp_ge_u32 {SW}, 4
    s_cbranch_scc1 {L3}
    v_lshlrev_b32 v8, 7, {VL}
    s_cmp_eq_u32 {SW}, 3
    s_cbranch_scc1 {L4}
    s_cmp_eq_u32 {SW}, {99 if 'wtouch' not in EXP else 2}
    s_cbranch_scc0 {L2}
    s_mul_i32 s40, s2, {41*128}
    v_min_u32 v9, {40*128}, v8
    buffer_load_dword v254, v9, {R_WR}, s40 offen
    buffer_load_dword v254, v9, {R_WI}, s40 offen
    s_branch {L2}
    {L4}:
    s_mul_i32 s40, s2, 3200
    v_min_u32 v9, {24*128}, v8
    buffer_load_dword v254, v9, {R_WO}, s40 offen
    s_branch {L2}
    {L3}:
    s_and_b32 s40, {SW}, 1
    s_lshl_b32 s40, s40, 6
    v_add_u32 v8, s40, {VL}
    v_min_u32 v8, 79, v8
    s_cmp_ge_u32 {SW}, 6
    s_cbranch_scc1 {L1}
    v_mul_u32_u24 v9, 205, v8
    v_lshrrev_b32 v9, 11, v9
    v_mul_u32_u24 v10, 10, v9
    v_sub_u32 v10, v8, v10            ; line
    v_and_b32 v11, 3, v9              ; s2&3
    v_lshrrev_b32 v9, 2, v9
    s_lshl_b32 s40, {SA}, 4
    s_lshl_b32 s41, {ST}, 1
    s_add_u32 s40, s40, s41
    v_add_u32 v9, s40, v9             ; s1
    v_lshl_add_u32 v9, v9, 5, v11
    s_lshl_b32 s40, {SX}, 2
    v_add_u32 v9, s40, v9
    v_mul_u32_u24 v9, 1280, v9
    v_lshl_add_u32 v9, v10, 7, v9
    buffer_load_dword v254, v9, {R_X}, 0 offen
    s_branch {L2}
    {L1}:
    s_mul_i32 s40, {ST}, 80
    v_add_u32 v8, s40, v8
    v_mul_u32_u24 v8, 3840, v8
    s_lshl_b32 s40, {SI}, 7
    s_cmp_ge_u32 {SI}, 30
    s_cselect_b32 s40, {OOB}, s40
    buffer_load_dword v254, v8, {R_WQKV}, s40 offen
    {L2}:
    """)

class LQ:
    def __init__(s,a): s.a=a; s.q=[]
    def op(s,text,tag): s.a(text); s.q.append(tag)
    def need(s,*tags):
        idx=[i for i,t in enumerate(s.q) if t in tags]
        if not idx: return
        n=len(s.q)-1-max(idx)
        s.a(f"s_waitcnt lgkmcnt({min(n,15)})")
        s.q=s.q[len(s.q)-min(n,15):] if n else []

AC = 24
SB = 44
PF = 84
WQR = 124
def g640_core(a, swapped, vbase, wait_priv=None):
    def rd(j):
        for nt in range(5):
            a(f"ds_read_b128 {v(SB+20*(j&1)+4*nt,4)}, {vbase} offset:{(j*5+nt)*1024}")
    rd(0)
    for j in range(10):
        if j<9: rd(j+1)
        if wait_priv: wait_priv(j)
        a(f"s_waitcnt lgkmcnt({5 if j<9 else 0})")
        for nt in range(5):
            p=v(PF+4*j,4); s=v(SB+20*(j&1)+4*nt,4); d=v(AC+4*nt,4)
            c = d if j else "0"
            if swapped: a(f"{M16} {d}, {s}, {p}, {c}")
            else:       a(f"{M16} {d}, {p}, {s}, {c}")

def xe_prep(a, fraglin, s_res=None, sign=None):
    a(f"""
    v_lshrrev_b32 v10, 3, {VL}
    v_and_b32 v11, 7, {VL}
    s_lshl_b32 s42, s60, 3
    """)
    if sign: a(f"v_and_b32 {sign}, 2, v10\n v_cvt_f32_u32 {sign}, {sign}\n v_subrev_f32 {sign}, 1.0, {sign}")
    if fraglin:
        a(f"""
        v_lshrrev_b32 v9, 1, v11
        v_lshlrev_b32 v9, 8, v9
        v_lshl_add_u32 v9, v10, 4, v9
        v_and_b32 v8, 1, v11
        v_lshl_add_u32 v9, v8, 3, v9
        s_mul_i32 s43, s61, 5120
        s_lshl_b32 s44, s63, 10
        s_add_u32 s43, s43, s44
        s_lshl_b32 s44, s62, 5
        s_add_u32 s43, s43, s44
        v_add_u32 v9, s43, v9
        """)
    else:
        a(f"""
        s_mul_i32 s43, s61, 40960
        s_lshl_b32 s44, s60, 9
        s_add_u32 s43, s43, s44
        v_lshlrev_b32 v9, 3, {VL}
        v_add_u32 v9, s43, v9
        """)
    a(f"""
    v_xor_b32 v11, v11, v10
    v_lshlrev_b32 v11, 4, v11
    v_lshl_add_u32 v10, v10, 7, v11
    s_mul_i32 s43, s61, 10240
    s_lshl_b32 s44, s60, 10
    s_add_u32 s43, s43, s44
    s_add_u32 s43, s43, {RS}
    v_add_u32 v10, s43, v10
    v_lshlrev_b32 v8, 1, {VG}
    s_lshr_b32 s44, s62, 2
    v_add_u32 v8, s44, v8
    v_and_b32 v11, 7, {VN}
    v_xor_b32 v8, v8, v11
    v_lshlrev_b32 v8, 4, v8
    v_lshl_add_u32 v8, {VN}, 7, v8
    s_mul_i32 s43, s61, 20480
    s_mul_i32 s44, s63, 10240
    s_add_u32 s43, s43, s44
    s_add_u32 s43, s43, {RS}
    v_add_u32 v8, s43, v8
    """)
    if s_res:
        a(f"""
        s_add_u32 s46, {s_res}, 4096
        s_cmp_ge_u32 s60, 2
        s_cselect_b32 s46, {OOB}, s46
        buffer_load_dwordx2 v[12:13], v9, {R_WS}, {s_res} offen sc1
        buffer_load_dwordx2 v[14:15], v9, {R_WS}, {s_res} offen offset:2048 sc1
        buffer_load_dwordx2 v[16:17], v9, {R_WS}, s46 offen sc1
        """)

def xtype_epilogue(a, s_dst, res=False, s_var=None, vm0=None, vm1=None, pre_bar=None, AC=AC, T=SB, extra_write=None, extra_work=None):
    for nt in range(5): a(f"ds_write_b128 v8, {v(AC+4*nt,4)} offset:{nt*2048}")
    if s_var:
        a(f"""
        """)
    if extra_write: extra_write()
    a(f"""
    s_add_u32 s46, {s_dst}, 4096
    s_cmp_ge_u32 s60, 2
    s_cselect_b32 s46, {OOB}, s46
    s_cselect_b32 s47, 0, 1.0
    """)
    if res:
        a("s_waitcnt vmcnt(0)")
        for q in range(6):
            a(f"v_lshlrev_b32 v{T+24+2*q}, 16, v{12+q}")
            a(f"v_and_b32 v{T+25+2*q}, 0xffff0000, v{12+q}")
    if s_var:
        a(f"""
        v_mov_b32 v18, s47
        s_cmp_eq_u32 {ST}, 7
        s_cselect_b32 s47, 1, 99
        s_cmp_eq_u32 s60, s47
        s_cselect_b32 s47, 7, 99
        v_lshrrev_b32 v19, 3, {VL}
        v_cmp_ne_u32 vcc, s47, v19
        v_cndmask_b32 v18, 0, v18, vcc
        v_and_b32 v20, 7, {VL}
        v_lshlrev_b32 v20, 4, v20
        v_lshl_add_u32 v20, {VG}, 2, v20
        s_lshl_b32 s47, s61, 7
        s_lshl_b32 s45, s60, 8
        s_add_u32 s47, s47, s45
        s_add_u32 s47, s47, {VARL}
        v_add_u32 v20, s47, v20
        """)
    D = ("xe" in EXP and res)
    if D: pst(a,1)
    a("s_waitcnt lgkmcnt(0)")
    if D: pst(a,2)
    a("s_barrier")
    if D: pst(a,3)
    for k in range(3):
        a(f"ds_read_b128 {v(T+4*k,4)}, v10 offset:{4096*k}")
        a(f"ds_read_b128 {v(T+12+4*k,4)}, v10 offset:{20480+4096*k}")
    for k in range(3):
        a(f"s_waitcnt lgkmcnt({4-2*k})")
        for i in range(4*k,4*k+4):
            if vm0: a(f"v_mul_f32 v{T+i}, {vm0}, v{T+i}")
            if vm1: a(f"v_fma_f32 v{T+i}, {vm1}, v{T+12+i}, v{T+i}")
            else: a(f"v_add_f32 v{T+i}, v{T+i}, v{T+12+i}")
            if res: a(f"v_add_f32 v{T+i}, v{T+i}, v{T+24+i}")
        a(f"v_cvt_pk_bf16_f32 v{12+2*k}, v{T+4*k}, v{T+4*k+1}")
        a(f"v_cvt_pk_bf16_f32 v{13+2*k}, v{T+4*k+2}, v{T+4*k+3}")
        if s_var: a(f"v_max_u32 v{12+2*k}, 1, v{12+2*k}\n v_max_u32 v{13+2*k}, 1, v{13+2*k}")
        if k<2: a(f"buffer_store_dwordx2 {v(12+2*k,2)}, v9, {R_WS}, {s_dst} offen offset:{2048*k} sc1")
        else: a(f"buffer_store_dwordx2 {v(12+2*k,2)}, v9, {R_WS}, s46 offen sc1")
    if D: pst(a,4)
    if s_var:
        a("v_cmp_lt_f32 vcc, 0, v18")
        for i in range(4): a(f"v_mul_f32 v{T+i}, v{T+i}, v{T+i}")
        for i in range(4): a(f"v_cndmask_b32 v{T+8+i}, 0, v{T+8+i}, vcc")
        for i in range(4): a(f"v_fmac_f32 v{T+i}, v{T+4+i}, v{T+4+i}")
        for i in range(4): a(f"v_fmac_f32 v{T+i}, v{T+8+i}, v{T+8+i}")
        a(f"""
        v_permlane32_swap_b32 v{T}, v{T+2}
        v_permlane32_swap_b32 v{T+1}, v{T+3}
        v_add_f32 v{T}, v{T}, v{T+2}
        v_add_f32 v{T+1}, v{T+1}, v{T+3}
        v_permlane16_swap_b32 v{T}, v{T+1}
        v_add_f32 v{T}, v{T}, v{T+1}
        v_add_f32_dpp v{T}, v{T}, v{T} row_ror:8 row_mask:0xf bank_mask:0xf
        ds_write_b32 v20, v{T}
        """)
        Ls=a.newlabel("xv")
        if pre_bar: pre_bar()
        a(f"""
        v_lshlrev_b32 v18, 3, {VL}
        v_add_u32 v18, {VARL}, v18
        v_lshlrev_b32 v11, 2, {VL}
        s_lshl_b32 s47, {ST}, 12
        s_lshl_b32 s46, {SI}, 7
        s_add_u32 s47, s47, s46
        s_add_u32 s47, s47, {s_var}
        s_waitcnt lgkmcnt(0)
        s_barrier
        s_cmp_lg_u32 {SW}, 6
        s_cbranch_scc1 {Ls}
        ds_read_b64 {v(T,2)}, v18
        ds_read_b64 {v(T+2,2)}, v18 offset:256
        ds_read_b64 {v(T+4,2)}, v18 offset:512
        ds_read_b64 {v(T+6,2)}, v18 offset:768
        s_waitcnt lgkmcnt(0)
        v_add_f32 v{T}, v{T}, v{T+2}
        v_add_f32 v{T+1}, v{T+1}, v{T+3}
        v_add_f32 v{T+4}, v{T+4}, v{T+6}
        v_add_f32 v{T+5}, v{T+5}, v{T+7}
        v_add_f32 v{T}, v{T}, v{T+4}
        v_add_f32 v{T+1}, v{T+1}, v{T+5}
        v_cvt_pk_bf16_f32 v10, v{T}, v{T+1}
        v_max_u32 v10, 1, v10
        s_mov_b32 exec_hi, 0
        buffer_store_dword v10, v11, {R_WS}, s47 offen sc1
        s_mov_b32 exec_hi, -1
        {Ls}:
        """)
    if extra_work: extra_work()

def mu_pos(a, dst, s_a, tmp, src=VN):
    a(f"""
    v_lshrrev_b32 {tmp}, 2, {src}
    v_and_b32 {dst}, 3, {src}
    v_lshl_add_u32 {dst}, {tmp}, 3, {dst}
    v_add_u32 {dst}, {s_a}, {dst}
    """)

def vsign(a, dst):
    a(f"""
    v_and_b32 {dst}, 2, {VN}
    v_cvt_f32_u32 {dst}, {dst}
    v_subrev_f32 {dst}, 1.0, {dst}
    """)

def rows_dma(a, srd, rowfn, defer=False):
    a(f"""
    v_lshrrev_b32 v8, 3, {VL}
    v_add_u32 v9, 8, v8
    """)
    rowfn("v6","v8"); rowfn("v7","v9")
    a(f"""
    s_movk_i32 s41, 1280
    v_mul_lo_u32 v6, v6, s41
    v_mul_lo_u32 v7, v7, s41
    v_and_b32 v9, 6, v8
    v_and_b32 v10, 7, {VL}
    v_xor_b32 v9, v9, v10
    v_lshl_add_u32 v6, v9, 4, v6
    v_lshl_add_u32 v7, v9, 4, v7
    s_mul_i32 s52, s61, 640
    s_mul_i32 s53, {SW}, 10240
    s_add_u32 s53, s53, {AL}
    """)
    def ch(c):
        for hf in range(2):
            a(f"s_add_u32 m0, s53, {2048*c+1024*hf-128*c}")
            a(f"buffer_load_dwordx4 v{6+hf}, {srd}, s52 offen offset:{128*c} lds")
    if defer: return ch
    for c in range(5): ch(c)

def rows_read(a, later_vm):
    a(f"""
    v_and_b32 v6, 6, {VN}
    v_xor_b32 v6, v6, {VG}
    v_lshlrev_b32 v6, 4, v6
    v_lshl_add_u32 v6, {VN}, 7, v6
    s_mul_i32 s41, {SW}, 10240
    s_add_u32 s41, s41, {AL}
    v_add_u32 v6, s41, v6
    v_xor_b32 v7, 64, v6
    s_waitcnt vmcnt({later_vm})
    """)
    for j in range(10):
        a(f"ds_read_b128 {v(PF+4*j,4)}, v{6+(j&1)} offset:{2048*(j>>1)}")

def tok_row(a):
    def fn(dst, m):
        a(f"""
        s_lshl_b32 s42, {SA}, 1
        s_add_u32 s42, s42, s63
        s_lshl_b32 s42, s42, 3
        s_add_u32 s42, s42, s62
        s_lshl_b32 s42, s42, 5
        s_lshl_b32 s43, {SX}, 2
        s_add_u32 s42, s42, s43
        v_and_b32 {dst}, 3, {m}
        v_lshlrev_b32 {dst}, 5, {dst}
        v_lshrrev_b32 v11, 2, {m}
        v_add3_u32 {dst}, {dst}, v11, s42
        """)
    return fn

def xtile_base(a, dst):
    a(f"""
    s_mul_i32 {dst}, {SI}, 81920
    s_mul_i32 s40, {ST}, 5120
    s_add_u32 {dst}, {dst}, s40
    """)

def wo_job(a, selector):
    def fn(dst, m):
        a(f"""
        s_lshl_b32 s40, s66, 1
        s_add_u32 s40, s40, s63
        s_lshl_b32 s40, s40, 5
        s_add_u32 s40, s40, s62
        """)
        mu_pos(a, dst, "s40", "v11", m)
    rows_dma(a, R_WO, fn)
    if selector: gen_ftile(a, True)
    xe_prep(a, True, sign="v22")
    rows_read(a, 0)
    a("s_waitcnt lgkmcnt(0)\n s_barrier")
    g640_core(a, False, VL16)
    a(f"""
    s_mul_i32 s64, {ST}, 102400
    s_mul_i32 s65, s66, 10240
    s_add_u32 s64, s64, s65
    s_add_u32 s64, s64, {WOR if selector else WOF}
    """)
    if selector:
        a(f"""
        s_cmp_ge_u32 {ST}, 4
        s_cselect_b32 s40, 0, 1.0
        s_cselect_b32 s41, 1.0, 0
        v_mov_b32 v22, s40
        v_mov_b32 v23, s41
        """)
        xtype_epilogue(a, "s64", vm0="v22", vm1="v23")
    else:
        xtype_epilogue(a, "s64", vm1="v22")

WQL = AL
def wq_loads(a):
    a(f"""
    v_lshrrev_b32 v6, 3, {VL}
    v_and_b32 v7, 2, v6
    v_and_b32 v8, 7, {VL}
    v_xor_b32 v7, v7, v8
    s_movk_i32 s41, 3840
    v_mul_lo_u32 v6, v6, s41
    v_lshl_add_u32 v6, v7, 4, v6
    v_xor_b32 v7, 64, v6
    s_mul_i32 s40, {SW}, {80*3840}
    s_lshl_b32 s41, {SI}, 7
    s_add_u32 s40, s40, s41
    s_cmp_ge_u32 {SI}, 30
    s_cselect_b32 s40, {OOB}, s40
    """)
    for j in range(10):
        a(f"buffer_load_dwordx4 {v(WQR+4*j,4)}, v{6+(j&1)}, {R_WQKV}, s40 offen")
        if j<9: a(f"s_add_u32 s40, s40, {8*3840}")

def wq_stage(a):
    a(f"""
    s_mul_i32 s41, {SW}, 10240
    s_add_u32 s41, s41, {WQL}
    v_add_u32 v6, s41, {VL16}
    """)
    for j in range(10): a(f"ds_write_b128 v6, {v(WQR+4*j,4)} offset:{1024*j}")

ACX, ACQ, SBM = 12, 32, 52
RS2 = 51200
def xq_core(a):
    a(f"""
    v_lshrrev_b32 v7, 2, {VN}
    v_lshl_add_u32 v6, {VG}, 3, v7
    v_lshlrev_b32 v6, 7, v6
    v_lshrrev_b32 v7, 1, v7
    v_and_b32 v11, 1, {VG}
    v_lshl_add_u32 v7, v11, 1, v7
    v_xor_b32 v7, s60, v7
    v_lshl_add_u32 v6, v7, 5, v6
    v_and_b32 v7, 3, {VN}
    v_lshl_add_u32 v7, v7, 3, v6
    s_mul_i32 s40, s61, 40960
    s_add_u32 s40, s40, {WQL}
    v_add_u32 v7, s40, v7
    s_waitcnt lgkmcnt(0)
    s_barrier
    """)
    q=LQ(a)
    def rq(j):
        q.op(f"ds_read_b64_tr_b16 {v(WQR+4*j,2)}, v7 offset:{4096*j}", ("Q",j))
        q.op(f"ds_read_b64_tr_b16 {v(WQR+4*j+2,2)}, v7 offset:{4096*j+512}", ("Q",j))
    def rf(f): q.op(f"ds_read_b128 {v(SBM+4*(f%8),4)}, {VL16} offset:{f*1024}", ("F",f))
    for f in range(4): rf(f)
    rq(0)
    for f in range(4,7): rf(f)
    rq(1)
    for f in range(50):
        j,nt=divmod(f,5)
        q.need(("F",f))
        sb=v(SBM+4*(f%8),4)
        a(f"{M16} {v(ACX+4*nt,4)}, {v(PF+4*j,4)}, {sb}, {v(ACX+4*nt,4) if j else 0}")
        if f+7<50: rf(f+7)
        q.need(("Q",j))
        a(f"{M16} {v(ACQ+4*nt,4)}, {sb}, {v(WQR+4*j,4)}, {v(ACQ+4*nt,4) if j else 0}")
        if f<16 and f%2==0 and 2+f//2<10: rq(2+f//2)
        if f==24:
            a("s_waitcnt vmcnt(0)")
            L=a.newlabel("bz")
            a(f"s_cmp_lg_u32 {SW}, 6\n s_cbranch_scc1 {L}")
            init_wait(a)
            a.label(L)
            a("s_barrier")
            arrive(a, 0)
            zfill(a, KVP, (ZCEND-KVP)//1024, 1, PF)

def wq_write(a):
    L1=a.newlabel("wq1")
    a(f"""
    s_mul_i32 s40, s60, 5120
    s_add_u32 s40, s40, {RS2}
    v_add_u32 v7, s40, {VL16}
    s_cmp_eq_u32 s61, 0
    s_cbranch_scc1 {L1}
    """)
    for nt in range(5): a(f"ds_write_b128 v7, {v(ACQ+4*nt,4)} offset:{nt*1024}")
    a.label(L1)

def wq_fin(a):
    L2=a.newlabel("wq2"); LZ=a.newlabel("wqz")
    AC=ACQ; SB=WQR
    a(f"""
    s_cmp_ge_u32 {SI}, 30
    s_cbranch_scc1 {L2}
    s_cmp_lg_u32 s61, 0
    s_cbranch_scc1 {L2}
    """)
    for nt in range(5): a(f"ds_read_b128 {v(SB+4*nt,4)}, v7 offset:{nt*1024}")
    a(f"""
    v_lshrrev_b32 v12, 1, {VG}
    v_mul_u32_u24 v10, 40960, v12
    v_lshl_add_u32 v10, {VN}, 4, v10
    v_and_b32 v12, 1, {VG}
    v_lshl_add_u32 v10, v12, 3, v10
    s_mul_i32 s40, {ST}, {5*81920}
    s_lshl_b32 s41, {SI}, 10
    s_add_u32 s40, s40, s41
    s_lshl_b32 s41, s60, 8
    s_add_u32 s40, s40, s41
    s_add_u32 s40, s40, {WQF}
    s_mov_b32 s42, {f2u(2.0/640)}
    v_mov_b32 v12, s42
    s_cmp_eq_u32 {ST}, 7
    s_cselect_b32 s43, 3, 99
    v_cmp_ne_u32 vcc, s43, {VG}
    v_cndmask_b32 v12, 0, v12, vcc
    s_mul_i32 s44, {ST}, 5
    s_waitcnt lgkmcnt(0)
    """)
    for nt in range(5):
        if nt: a("s_add_u32 s40, s40, 81920")
        for i in range(4):
            op = "v_sub_f32" if i<2 else "v_add_f32"
            a(f"{op} v{16+i}, v{AC+4*nt+i}, v{SB+4*nt+i}")
            a(f"v_mul_f32 v{16+i}, {'v12' if (nt==4 and i==3) else 's42'}, v{16+i}")
        a(f"v_cvt_pk_bf16_f32 v{20+2*(nt&1)}, v16, v17")
        a(f"v_cvt_pk_bf16_f32 v{21+2*(nt&1)}, v18, v19")
        a(f"buffer_store_dwordx2 {v(20+2*(nt&1),2)}, v10, {R_WS}, s40 offen sc1")
    a.label(L2)

def gcol_job(a):
    Lp=a.newlabel("gc")
    a(f"""
    s_sub_u32 s42, s66, 10
    s_lshl_b32 s42, s42, 3
    s_add_u32 s42, s42, {ST}
    s_lshl_b32 s42, s42, 3
    s_add_u32 s42, s42, {SW}
    v_lshl_add_u32 v10, {VG}, 2, 1
    v_mul_u32_u24 v9, 40960, {VG}
    v_lshl_add_u32 v9, {VN}, 4, v9
    v_mov_b32 v29, 0x3f353f35
    {Lp}:
    s_mul_i32 s40, s42, 1639
    s_lshr_b32 s40, s40, 16           ; kstep
    s_mul_i32 s41, s40, 40
    s_sub_u32 s41, s42, s41           ; dtile
    s_lshl_b32 s43, s41, 4
    v_add_u32 v8, s43, {VN}
    v_cvt_f32_u32 v8, v8
    v_mul_f32 v8, {f2u(1/640)}, v8
    s_lshl_b32 s43, s40, 4
    v_add_u32 v11, s43, v10
    v_cvt_f32_u32 v12, v11
    v_cmp_eq_u32 vcc, 0x13d, v11
    s_mul_i32 s43, s40, {4*40960}
    s_lshl_b32 s41, s41, 8
    s_add_u32 s43, s43, s41
    s_add_u32 s43, s43, {WQF+1920*16}
    v_mul_f32 v16, v12, v8
    v_fract_f32 v16, v16
    v_add_f32 v17, v16, v8
    v_fma_f32 v18, 2.0, v8, v16
    v_add_f32 v19, v18, v8
    """)
    for i in range(4): a(f"v_sin_f32 v{20+i}, -v{16+i}")
    for i in range(4): a(f"v_cos_f32 v{16+i}, v{16+i}")
    for i in range(4): a(f"v_cvt_pk_bf16_f32 v{32+i}, v{16+i}, v{20+i}")
    a(f"""
    v_and_b32 v28, 0x8000, v35
    v_or_b32 v28, v28, v29
    v_cndmask_b32 v35, v35, v28, vcc
    buffer_store_dwordx4 v[32:35], v9, {R_WS}, s43 offen sc1
    s_add_u32 s42, s42, 128
    s_cmp_lt_u32 s42, 800
    s_cbranch_scc1 {Lp}
    """)

WTR = 164
WTX = 84
def wt_loads(a):
    L=a.newlabel("wtl")
    a(f"""
    s_cmp_ge_u32 {SW}, 3
    s_cbranch_scc1 {L}
    s_mul_i32 s79, s2, 3
    s_add_u32 s79, s79, {SW}
    s_mul_i32 s69, s79, 5462
    s_lshr_b32 s69, s69, 16           ; j1 = task/12
    s_mul_i32 s40, s69, 12
    s_sub_u32 s70, s79, s40
    v_bfe_u32 v6, {VL}, 3, 1
    v_lshrrev_b32 v7, 4, {VL}
    v_lshl_add_u32 v5, v6, 2, v7
    s_mov_b32 s41, {64*642}
    v_mul_lo_u32 v6, v5, s41
    v_and_b32 v7, 7, {VL}
    v_lshl_add_u32 v6, v7, 4, v6
    s_mul_i32 s40, s69, 642
    s_andn2_b32 s40, s40, 127
    s_lshr_b32 s41, s70, 1
    s_lshl_b32 s41, s41, 7
    s_add_u32 s40, s40, s41
    s_and_b32 s41, s70, 1
    s_mul_i32 s41, s41, {16*64*642}
    s_add_u32 s40, s40, s41
    s_add_u32 s41, s40, {8*64*642}
    buffer_load_dwordx4 {v(WTX,4)}, v6, {R_WR}, s40 offen
    buffer_load_dwordx4 {v(WTX+4,4)}, v6, {R_WI}, s40 offen
    buffer_load_dwordx4 {v(WTX+8,4)}, v6, {R_WR}, s41 offen
    buffer_load_dwordx4 {v(WTX+12,4)}, v6, {R_WI}, s41 offen
    {L}:
    """)

def wor_loads(a):
    L=a.newlabel("wol")
    a(f"""
    s_sub_u32 s67, s72, 20
    s_lshl_b32 s67, s67, 3
    s_add_u32 s67, s67, {ST}
    s_lshl_b32 s67, s67, 3
    s_add_u32 s67, s67, {SW}
    v_and_b32 v7, 7, {VL}
    ; WoR: task = (R16 = task/10 (16 rows), lam = task%10): rows hd = 16R + 8*(rho&1) + 4*ld + (rho>>1)
    s_mul_i32 s42, s67, 6554
    s_lshr_b32 s42, s42, 16
    s_mul_i32 s43, s42, 10
    s_sub_u32 s43, s67, s43
    v_bfe_u32 v6, {VL}, 3, 1
    v_lshrrev_b32 v8, 4, {VL}
    v_lshl_add_u32 v6, v6, 3, v8
    v_mul_u32_u24 v6, 1280, v6
    v_lshl_add_u32 v6, v7, 4, v6
    s_mul_i32 s40, s42, {16*1280}
    s_lshl_b32 s41, s43, 7
    s_add_u32 s40, s40, s41
    s_add_u32 s41, s40, {4*1280}
    buffer_load_dwordx4 {v(WTR+16,4)}, v6, {R_WO}, s40 offen
    buffer_load_dwordx4 {v(WTR+20,4)}, v6, {R_WO}, s41 offen
    {L}:
    """)

def side_job(a, wor, vm):
    L=a.newlabel("wtskip"); L2=a.newlabel("wos")
    if not wor: a(f"s_cmp_ge_u32 {SW}, 3\n s_cbranch_scc1 {L}")
    a(f"""
    v_and_b32 v6, 3, {VN}
    v_cmp_eq_u32 vcc, v6, {VG}
    v_lshrrev_b32 v6, 2, {VN}
    v_cndmask_b32 v6, 7, v6, vcc
    v_mov_b32 v28, 0x3f80
    v_mov_b32 v29, 0x3f800000
    v_cmp_eq_u32 vcc, 0, v6
    v_cndmask_b32 v8, 0, v28, vcc
    v_cmp_eq_u32 vcc, 1, v6
    v_cndmask_b32 v8, v8, v29, vcc
    v_cmp_eq_u32 vcc, 2, v6
    v_cndmask_b32 v9, 0, v28, vcc
    v_cmp_eq_u32 vcc, 3, v6
    v_cndmask_b32 v9, v9, v29, vcc
    v_mov_b32 v10, 0
    v_mov_b32 v11, 0
    v_mov_b32 v12, 0
    v_mov_b32 v13, 0
    v_mov_b32 v14, v8
    v_mov_b32 v15, v9
    v_and_b32 v7, 7, {VN}
    v_lshrrev_b32 v17, 3, {VN}
    s_lshr_b32 s40, s70, 1
    s_lshl_b32 s40, s40, 6
    s_sub_u32 s40, s40, s69
    s_sub_u32 s40, s40, 1
    v_lshl_add_u32 v18, v7, 3, {VG}
    v_add_u32 v18, s40, v18
    v_add_u32 v19, 4, v18
    v_and_b32 v20, 1, v18
    v_lshlrev_b32 v20, 5, v20
    v_lshl_add_u32 v20, v17, 4, v20
    v_mov_b32 v21, {OOB}
    v_lshrrev_b32 v16, 1, v18
    v_lshl_add_u32 v16, v16, 14, v20
    v_cmp_gt_u32 vcc, 0x140, v18
    v_cndmask_b32 v16, v21, v16, vcc
    v_lshrrev_b32 v22, 1, v19
    v_lshl_add_u32 v22, v22, 14, v20
    v_cmp_gt_u32 vcc, 0x140, v19
    v_cndmask_b32 v22, v21, v22, vcc
    s_lshl_b32 s40, s69, 8
    s_and_b32 s41, s70, 1
    s_lshl_b32 s41, s41, 7
    s_add_u32 s40, s40, s41
    s_add_u32 s40, s40, {WT}
    s_waitcnt vmcnt({vm})
    """)
    for G in range(2):
        if wor: break
        for mf in range(2):
            for ri in range(2):
                a(f"{M16} {v(32+16*G+8*mf+4*ri,4)}, {v(8+4*mf,4)}, {v(WTX+8*G+4*ri,4)}, 0")
    for mf in range(2):
        if not wor: break
        for ld in range(2):
            a(f"{M16} {v(64+8*mf+4*ld,4)}, {v(8+4*mf,4)}, {v(WTR+16+4*ld,4)}, 0")
    for G in range(2):
        if wor: break
        for mf in range(2):
            b=32+16*G+8*mf; d=64+8*G+4*mf
            for i in range(4): a(f"v_cvt_pk_bf16_f32 v{d+i}, v{b+i}, v{b+4+i}")
            a(f"buffer_store_dwordx4 {v(d,4)}, {'v22' if mf else 'v16'}, {R_WS}, s40 offen offset:{64*G} sc1")
    if not wor:
        a.label(L); return
    a(f"""
    s_cmp_ge_u32 s67, 400
    s_cbranch_scc1 {L}
    s_mul_i32 s42, s67, 6554
    s_lshr_b32 s42, s42, 16
    s_mul_i32 s43, s42, 10
    s_sub_u32 s43, s67, s43
    s_lshl_b32 s43, s43, 4
    s_lshr_b32 s40, s42, 1
    s_mul_i32 s40, s40, 5120
    s_and_b32 s42, s42, 1
    s_lshl_b32 s42, s42, 9
    s_add_u32 s40, s40, s42
    s_add_u32 s40, s40, {WOR}
    s_mov_b32 s41, 102400
    v_lshlrev_b32 v18, 8, v17
    v_lshl_add_u32 v18, {VG}, 4, v18
    """)
    for mf in range(2):
        a(f"""
        v_lshl_add_u32 v19, v7, 1, s43
        v_add_u32 v19, {mf}, v19          ; dq
        v_mul_u32_u24 v20, 205, v19
        v_lshrrev_b32 v20, 10, v20        ; dq/5
        v_mul_u32_u24 v21, 5, v20
        v_sub_u32 v19, v19, v21           ; nt
        v_lshrrev_b32 v21, 2, v20         ; t
        v_and_b32 v20, 3, v20
        v_mul_lo_u32 v21, v21, s41
        v_lshl_add_u32 v21, v19, 10, v21
        v_lshl_add_u32 v21, v20, 6, v21
        v_add_u32 v21, v21, v18
        """)
        d=WTR+40+4*mf
        for q in range(4): a(f"v_cvt_pk_bf16_f32 v{d+q}, v{64+8*mf+2*q}, v{65+8*mf+2*q}")
        a(f"buffer_store_dwordx4 {v(d,4)}, v21, {R_WS}, s40 offen sc1")
    a.label(L)

C64, S64, C32, S32 = 164, 180, 196, 204
TW1C, TW1S, TW2C, TW2S = 212, 220, 228, 236
WP = 244
WL = 81920
N64, N32, WRE, WIM, UP, DA = 64, 80, 88, 96, 104, 120
FSC, FRW, FX1 = 102400, 118784, 135168
def ang8(a, base, step, dst):
    a(f"""
    v_mov_b32 v{dst}, {base}
    v_add_f32 v{dst+1}, {base}, {step}
    v_fma_f32 v{dst+2}, 2.0, {step}, {base}
    v_fma_f32 v{dst+4}, 4.0, {step}, {base}
    v_add_f32 v{dst+3}, v{dst+2}, {step}
    v_add_f32 v{dst+5}, v{dst+4}, {step}
    v_fma_f32 v{dst+6}, 2.0, {step}, v{dst+4}
    v_add_f32 v{dst+7}, v{dst+6}, {step}
    """)

def fft_consts(a):
    a("s_mov_b32 s40, 0")
    mu_pos(a, "v6", "s40", "v7")
    a(f"""
    v_cvt_f32_u32 v6, v6
    v_lshlrev_b32 v7, 3, {VG}
    v_cvt_f32_u32 v7, v7
    s_lshl_b32 s40, s63, 5
    v_cvt_f32_u32 v8, s40
    s_xor_b32 s40, s40, 32
    v_cvt_f32_u32 v9, s40
    v_cvt_f32_u32 v10, s62
    """)
    def cs(step, base, c, s):
        a(f"""
        v_cos_f32 v14, {step}
        v_add_f32 v17, {base}, {step}
        v_sin_f32 v24, {base}
        v_cos_f32 v16, {base}
        v_sin_f32 v25, v17
        v_cos_f32 v17, v17
        v_add_f32 v14, v14, v14
        """)
        for i in range(2,8):
            a(f"v_fma_f32 v{24+i}, v14, v{23+i}, -v{22+i}")
            a(f"v_fma_f32 v{16+i}, v14, v{15+i}, -v{14+i}")
        for i in range(4): a(f"v_cvt_pk_bf16_f32 v{s+i}, v{24+2*i}, v{25+2*i}")
        for i in range(4): a(f"v_cvt_pk_bf16_f32 v{c+i}, v{16+2*i}, v{17+2*i}")
    for aa in range(2):
        a(f"v_add_f32 v11, v8, v6")
        if aa: a("v_add_f32 v11, 4.0, v11")
        a(f"v_mul_f32 v12, {f2u(1/64)}, v11")
        for kk in range(2):
            a(f"v_add_f32 v13, v{8+kk}, v7")
            a(f"v_mul_f32 v13, v13, v12")
            o=8*aa+4*kk
            cs("v12","v13",C64+o,S64+o)
        a(f"""
        v_mul_f32 v12, {f2u(1/2048)}, v11
        v_add_f32 v13, v7, v10
        v_mul_f32 v16, v13, v12
        v_add_f32 v17, v16, v12
        v_fma_f32 v18, 2.0, v12, v16
        v_add_f32 v19, v18, v12
        """)
        for i in range(4): a(f"v_sin_f32 v{TW1S+4*aa+i}, v{16+i}")
        for i in range(4): a(f"v_cos_f32 v{TW1C+4*aa+i}, v{16+i}")
        a(f"v_mov_b32 v11, v6")
        if aa: a("v_add_f32 v11, 4.0, v11")
        a(f"""
        v_mul_f32 v12, {f2u(1/32)}, v11
        v_mul_f32 v13, v7, v12
        """)
        cs("v12","v13",C32+4*aa,S32+4*aa)
        a(f"""
        v_mul_f32 v12, {f2u(1/2048)}, v11
        v_add_f32 v13, v7, v10
        v_add_f32 v13, v13, v8
        v_mul_f32 v16, v13, v12
        v_add_f32 v17, v16, v12
        v_fma_f32 v18, 2.0, v12, v16
        v_add_f32 v19, v18, v12
        """)
        for i in range(4): a(f"v_sin_f32 v{TW2S+4*aa+i}, v{16+i}")
        for i in range(4): a(f"v_cos_f32 v{TW2C+4*aa+i}, v{16+i}")
    for i in range(16): a(f"v_mul_f32 v{TW2C+i}, {f2u(1/2048)}, v{TW2C+i}")
    mu_pos(a, "v8", "s62", "v9")
    a(f"""
    s_lshl_b32 s40, s63, 5
    v_add_u32 v8, s40, v8             ; j1
    s_lshl_b32 s40, s61, 1
    v_lshl_add_u32 v9, {VG}, 2, s40
    v_and_b32 v10, 15, v8
    v_xor_b32 v9, v9, v10
    v_lshlrev_b32 v9, 4, v9
    v_lshl_add_u32 v244, v8, 8, v9
    v_add_u32 v244, {WL}, v244
    v_xor_b32 v248, 16, v244
    """)

def fft_prep(a, first):
    mu_pos(a, "v141", "s62", "v140")
    a(f"""
    v_lshrrev_b32 v136, 3, v0
    s_mov_b32 s41, 40960
    v_mul_lo_u32 v136, v136, s41
    v_bfe_u32 v138, v0, 2, 1
    v_mul_u32_u24 v139, 3, v138
    v_xor_b32 v139, v139, {VL}
    v_and_b32 v137, 7, v139
    v_lshl_add_u32 v136, v137, 4, v136
    v_and_b32 v137, 3, v139
    v_lshlrev_b32 v137, 4, v137
    v_lshl_add_u32 v137, v138, 14, v137
    v_lshrrev_b32 v138, 3, v0
    v_lshl_add_u32 v137, v138, 6, v137
    s_lshl_b32 s40, {SW}, 10
    s_lshr_b32 s42, {SW}, 1
    s_lshr_b32 s43, {SW}, 2
    s_xor_b32 s42, s42, s43
    s_lshl_b32 s42, s42, 6
    v_lshlrev_b32 v138, 4, v139
    v_xor_b32 v138, s42, v138
    s_add_u32 s40, s40, {FSC}
    v_add_u32 v138, s40, v138
    v_lshrrev_b32 v141, 2, v141
    s_lshl_b32 s40, s63, 2
    v_add_u32 v140, s40, {VG}
    v_lshl_add_u32 v141, v141, 3, v140
    v_and_b32 v143, 3, {VN}
    v_lshl_add_u32 v139, v141, 3, v143
    v_lshrrev_b32 v144, 2, {VN}
    v_lshrrev_b32 v145, 3, {VN}
    v_xor_b32 v144, v144, v145
    v_lshlrev_b32 v144, 2, v144
    v_xor_b32 v139, v139, v144
    s_lshl_b32 s40, s61, 13
    s_add_u32 s42, s40, {FSC}
    v_lshl_add_u32 v139, v139, 4, s42
    v_xor_b32 v140, 512, v139
    v_mul_lo_u32 v141, v141, s41
    v_lshl_add_u32 v141, v143, 4, v141
    s_lshl_b32 s43, s63, 12
    s_add_u32 s43, s43, s40
    s_add_u32 s43, s43, {FX1}
    s_lshl_b32 s44, s62, 1
    s_add_u32 s45, s44, s43
    v_add_u32 v143, s45, {VL16}
    s_lshl_b32 s45, s62, 9
    s_add_u32 s45, s45, s43
    v_add_u32 v144, s45, {VL16}
    s_lshl_b32 s43, s63, 11
    s_add_u32 s43, s43, s42
    s_add_u32 s45, s44, s43
    v_add_u32 v145, s45, {VL16}
    s_lshl_b32 s45, s62, 10
    s_add_u32 s45, s45, s43
    v_add_u32 v146, s45, {VL16}
    v_xor_b32 v147, 2048, v146
    s_cmp_eq_u32 s73, 159
    s_cselect_b32 s40, 4, 99
    v_and_b32 v148, 4, v0
    v_cmp_ne_u32 vcc, s40, v148
    v_cndmask_b32 v148, 0, -1, vcc
    """)

def fft_prep2(a, first):
    a("s_mov_b32 s41, 0x80008000")
    for i in range(16): a(f"v_xor_b32 v{N64+i}, s41, v{S64+i}")
    for i in range(8): a(f"v_xor_b32 v{N32+i}, s41, v{S32+i}")
    if not first: fft_w_unpack(a)

def fft_w_load(a):
    a(f"""
    s_lshl_b32 s40, s62, 1
    v_add_u32 v8, s40, {VG}
    v_xor_b32 v9, v8, {VN}
    v_lshlrev_b32 v9, 4, v9
    v_lshl_add_u32 v9, {VG}, 8, v9
    v_xor_b32 v10, 64, v9
    s_lshl_b32 s40, s73, 14
    s_lshl_b32 s41, {SW}, 11
    s_add_u32 s40, s40, s41
    s_add_u32 s40, s40, {WT}
    s_add_u32 m0, s41, {WL}
    s_nop 0
    buffer_load_dwordx4 v9, {R_WS}, s40 offen sc1 lds
    buffer_load_dwordx4 v10, {R_WS}, s40 offen offset:1024 sc1 lds
    """)

def fft_w_read(a):
    a(f"ds_read_b128 {v(WP,4)}, v244\n ds_read_b128 {v(WP+4,4)}, v248")

def fft_w_unpack(a):
    for i in range(8):
        a(f"v_lshlrev_b32 v{WRE+i}, 16, v{WP+i}")
        a(f"v_and_b32 v{WIM+i}, 0xffff0000, v{WP+i}")

def cmul(a, xr, xi, cr, ci, outr, outi, conj, n=8):
    for i in range(n):
        a(f"v_mul_f32 v{outr+i}, v{xr+i}, v{cr+i}")
        a(f"v_mul_f32 v{outi+i}, v{xi+i}, v{cr+i}")
    for i in range(n):
        if conj:
            a(f"v_fma_f32 v{outr+i}, -v{xi+i}, v{ci+i}, v{outr+i}")
            a(f"v_fma_f32 v{outi+i}, v{xr+i}, v{ci+i}, v{outi+i}")
        else:
            a(f"v_fma_f32 v{outr+i}, v{xi+i}, v{ci+i}, v{outr+i}")
            a(f"v_fma_f32 v{outi+i}, -v{xr+i}, v{ci+i}, v{outi+i}")

def fft_main(a, xin, xout, var, first):
    DR, DI = DA, DA+8
    a(f"""
    s_lshl_b32 s46, s73, 8
    s_add_u32 s47, s46, {xout}
    s_add_u32 s46, s46, {xin}
    s_mov_b32 s42, {var}
    s_mov_b32 s43, {var+4096}
    s_mov_b32 s44, {var+8192}
    s_mov_b32 s45, {var+12288}
    s_mov_b32 s58, {SPIN}
    """)
    def ldv():
        for k in range(4): a(f"buffer_load_dwordx4 {v(16+4*k,4)}, v137, {R_WS}, s{42+k} offen sc1")
    def ldd():
        a(f"buffer_load_dwordx4 v[48:51], v136, {R_WS}, s46 offen sc1")
        a(f"buffer_load_dwordx4 v[52:55], v136, {R_WS}, s46 offen offset:128 sc1")
    def mn(base,n,t):
        a(f"v_min3_u32 {t}, v{base}, v{base+1}, v{base+2}")
        for k in range(3,n-1,2): a(f"v_min3_u32 {t}, {t}, v{base+k}, v{base+k+1}")
        a(f"v_min_u32 {t}, {t}, v{base+n-1}")
        a(f"v_cmp_eq_u32 vcc, 0, {t}\n s_cmp_lg_u64 vcc, 0")
    fft_prep2(a, first)
    bg = qkv_bload_setup(a, 4 if first else 5)
    a("s_barrier")
    ldv(); ldd()
    ex = 0
    def tick(n=1):
        if "notick" in EXP or first: return
        for _ in range(n):
            if bg: bg.pop(0)()
    RV=a.newlabel("fvr"); BV=a.newlabel("fvb"); RD=a.newlabel("fdr"); BD=a.newlabel("fdb")
    a(f"""
    s_lshl_b32 s41, s61, 7
    s_add_u32 s47, s47, s41
    s_mov_b32 s40, {f2u(2.0/(640*640))}
    v_mov_b32 v8, {f2u(1e-5)}
    s_waitcnt vmcnt({2+ex})
    """)
    mn(16,16,"v9")
    a(f"s_cbranch_scc1 {RV}")
    a.label(BV)
    for q in range(4):
        a(f"v_lshlrev_b32 v{40+2*q}, 16, v{16+q}")
        a(f"v_and_b32 v{41+2*q}, 0xffff0000, v{16+q}")
    for k in range(1,4):
        for q in range(4):
            a(f"v_lshlrev_b32 v{32+2*q}, 16, v{16+4*k+q}")
            a(f"v_and_b32 v{33+2*q}, 0xffff0000, v{16+4*k+q}")
        for i in range(8): a(f"v_add_f32 v{40+i}, v{40+i}, v{32+i}")
    for i in range(8): a(f"v_add_f32_dpp v{40+i}, v{40+i}, v{40+i} row_half_mirror row_mask:0xf bank_mask:0xf")
    for i in range(8): a(f"v_fma_f32 v{40+i}, v{40+i}, s40, v8")
    for i in range(8): a(f"v_rsq_f32 v{40+i}, v{40+i}")
    a(f"s_waitcnt vmcnt({ex})")
    mn(48,8,"v9")
    a(f"s_cbranch_scc1 {RD}")
    a.label(BD)
    def late():
        OK=a.newlabel("fvo")
        a.label(RV); ldv(); a("s_waitcnt vmcnt(0)"); mn(16,16,"v9")
        a(f"s_cbranch_scc0 {OK}")
        retry_check(a, None, RV, BV, 60)
        a.label(OK); ldd()
        a(f"s_branch {BV}")
        a.label(RD); ldd(); a("s_waitcnt vmcnt(0)"); mn(48,8,"v9")
        a(f"s_cbranch_scc0 {BD}")
        retry_check(a, None, RD, BD, 61)
    a.late.append(late)
    for c in range(2):
        a(f"ds_write_b128 v138, {v(48+4*c,4)} offset:{FRW-FSC+8192*c}")
        for q in range(4):
            a(f"v_lshlrev_b32 v{16+2*q}, 16, v{48+4*c+q}")
            a(f"v_and_b32 v{17+2*q}, 0xffff0000, v{48+4*c+q}")
        for i in range(8): a(f"v_mul_f32 v{16+i}, v{16+i}, v{40+i}")
        for q in range(4): a(f"v_cvt_pk_bf16_f32 v{56+4*c+q}, v{16+2*q}, v{17+2*q}")
        if c==1:
            for q in range(4): a(f"v_and_b32 v{60+q}, v{60+q}, v148")
        a(f"ds_write_b128 v138, {v(56+4*c,4)} offset:{8192*c}")
    FD = ("fd" in EXP and not first) or ("fd1" in EXP and first)
    if FD: pflush(a,7); pst(a,0)
    tick()
    a(f"""
    v_xor_b32 v8, 64, v139
    v_xor_b32 v9, 64, v140
    s_waitcnt lgkmcnt(0)
    s_barrier
    ds_read_b128 {v(UP,4)}, v139
    ds_read_b128 {v(UP+4,4)}, v8
    ds_read_b128 {v(UP+8,4)}, v140
    ds_read_b128 {v(UP+12,4)}, v9
    ds_read_b128 v[48:51], v139 offset:{FRW-FSC}
    ds_read_b128 v[52:55], v8 offset:{FRW-FSC}
    """)
    if FD: pst(a,1)
    if first:
        fft_w_read(a); arrive(a, 1)
    tick()
    ur=lambda kk: v(UP+8*kk,4); ui=lambda kk: v(UP+8*kk+4,4)
    for kk in range(2):
        a(f"s_waitcnt lgkmcnt({4-2*kk+(2 if first else 0)})")
        for aa in range(2):
            dr=v(DR+4*aa,4); di=v(DI+4*aa,4); o=8*aa+4*kk
            a(f"{M16} {dr}, {ur(kk)}, {v(C64+o,4)}, {dr if kk else 0}")
            a(f"{M16} {di}, {ui(kk)}, {v(C64+o,4)}, {di if kk else 0}")
            a(f"{M16} {dr}, {ui(kk)}, {v(S64+o,4)}, {dr}")
            a(f"{M16} {di}, {ur(kk)}, {v(N64+o,4)}, {di}")
        tick()
    def exch(vw, stride):
        for aa in range(2):
            for ri in range(2):
                b=16+8*ri+4*aa; d=32+4*aa+2*ri
                a(f"v_cvt_pk_bf16_f32 v{d}, v{b}, v{b+1}")
                a(f"v_cvt_pk_bf16_f32 v{d+1}, v{b+2}, v{b+3}")
                a(f"ds_write_b64 {vw}, {v(d,2)} offset:{stride*aa+1024*ri}")
    if FD: pst(a,2)
    cmul(a, DR, DI, TW1C, TW1S, 16, 24, False)
    tick()
    exch("v143", 2048)
    tick()
    if FD: pst(a,7)
    a(f"""
    s_waitcnt lgkmcnt(0)
    s_barrier
    ds_read_b128 {v(UP,4)}, v144
    ds_read_b128 {v(UP+4,4)}, v144 offset:1024
    """)
    tick()
    a("s_waitcnt lgkmcnt(0)")
    if FD: pst(a,4)
    tr=v(UP,4); ti=v(UP+4,4)
    for aa in range(2):
        dr=v(DR+4*aa,4); di=v(DI+4*aa,4)
        a(f"{M16} {dr}, {v(C32+4*aa,4)}, {tr}, 0")
        a(f"{M16} {di}, {v(C32+4*aa,4)}, {ti}, 0")
        a(f"{M16} {dr}, {v(S32+4*aa,4)}, {ti}, {dr}")
        a(f"{M16} {di}, {v(N32+4*aa,4)}, {tr}, {di}")
    if first:
        fft_w_unpack(a)
        a(f"""
        v_mov_b32 v32, 0
        v_mov_b32 v33, 0
        v_mov_b32 v34, 0
        v_mov_b32 v35, 0
        s_lshl_b32 s40, s73, 3
        s_add_u32 s40, s40, {SW}
        s_lshl_b32 s40, s40, 11
        s_add_u32 s40, s40, {O2}
        buffer_store_dwordx4 v[32:35], {VL16}, {R_WS}, s40 offen sc1
        buffer_store_dwordx4 v[32:35], {VL16}, {R_WS}, s40 offen offset:1024 sc1
        """)
        L=a.newlabel("p1")
        a(f"""
        s_cmp_lg_u32 {SW}, 7
        s_cbranch_scc1 {L}
        s_and_b32 s59, s2, 3
        s_lshl_b32 s59, s59, 12
        s_add_u32 s59, s59, {CNTB(1)}
        v_lshlrev_b32 v255, 8, {VN}
        buffer_load_dword v252, v255, {R_WS}, s59 offen sc1
        {L}:
        """)
    tick()
    cmul(a, DR, DI, WRE, WIM, 16, 24, True)
    tick()
    for q in range(4): a(f"v_cvt_pk_bf16_f32 v{UP+8+q}, v{16+2*q}, v{17+2*q}")
    for q in range(4): a(f"v_cvt_pk_bf16_f32 v{UP+12+q}, v{24+2*q}, v{25+2*q}")
    yr=v(UP+8,4); yi=v(UP+12,4)
    for aa in range(2):
        dr=v(DR+4*aa,4); di=v(DI+4*aa,4)
        a(f"{M16} {dr}, {yr}, {v(C32+4*aa,4)}, 0")
        a(f"{M16} {di}, {yi}, {v(C32+4*aa,4)}, 0")
        a(f"{M16} {dr}, {yi}, {v(N32+4*aa,4)}, {dr}")
        a(f"{M16} {di}, {yr}, {v(S32+4*aa,4)}, {di}")
    tick()
    cmul(a, DR, DI, TW2C, TW2S, 16, 24, True)
    tick()
    exch("v145", 4096)
    tick(2)
    if first:
        L=a.newlabel("p1c")
        a(f"""
        s_cmp_lg_u32 {SW}, 7
        s_cbranch_scc1 {L}
        s_waitcnt vmcnt(0)
        v_cmp_gt_u32 vcc, {0 if 'nob1' in EXP else 16}, v252
        s_cmp_eq_u64 vcc, 0
        s_cbranch_scc1 {L}
        """)
        wait(a, 1, bar=False)
        a.label(L)
    if FD: pst(a,5)
    for ri in range(2):
        for q in range(4):
            a(f"v_lshlrev_b32 v{16+8*ri+2*q}, 16, v{48+4*ri+q}")
            a(f"v_and_b32 v{17+8*ri+2*q}, 0xffff0000, v{48+4*ri+q}")
    a(f"""
    s_waitcnt lgkmcnt(0)
    s_barrier
    ds_read_b128 {v(UP,4)}, v146
    ds_read_b128 {v(UP+4,4)}, v146 offset:1024
    ds_read_b128 {v(UP+8,4)}, v147
    ds_read_b128 {v(UP+12,4)}, v147 offset:1024
    """)
    if FD: pst(a,6)
    for kk in range(2):
        a(f"s_waitcnt lgkmcnt({2-2*kk})")
        for aa in range(2):
            dr=v(DR+4*aa,4); di=v(DI+4*aa,4); o=8*aa+4*kk
            a(f"{M16} {dr}, {v(C64+o,4)}, {ur(kk)}, {dr if kk else v(16+4*aa,4)}")
            a(f"{M16} {di}, {v(C64+o,4)}, {ui(kk)}, {di if kk else v(24+4*aa,4)}")
            a(f"{M16} {dr}, {v(N64+o,4)}, {ui(kk)}, {dr}")
            a(f"{M16} {di}, {v(S64+o,4)}, {ur(kk)}, {di}")
            if first and kk+aa<2: bg.pop(0)()
    for q in range(4): a(f"v_cvt_pk_bf16_f32 v{32+q}, v{DR+2*q}, v{DR+2*q+1}")
    for q in range(4): a(f"v_cvt_pk_bf16_f32 v{36+q}, v{DI+2*q}, v{DI+2*q+1}")
    L=a.newlabel("nyq2")
    a(f"""
    s_lshl_b32 s40, s73, 1
    s_add_u32 s40, s40, s61
    s_cmp_lg_u32 s40, 319
    s_cbranch_scc1 {L}
    """)
    for q in range(4): a(f"v_mov_b32 v{36+q}, v{52+q}")
    a.label(L)
    for q in range(8): a(f"v_max_u32 v{32+q}, 1, v{32+q}")
    if first: a("s_waitcnt vmcnt(3)")
    a(f"""
    buffer_store_dwordx4 v[32:35], v141, {R_WS}, s47 offen sc1
    buffer_store_dwordx4 v[36:39], v141, {R_WS}, s47 offen offset:64 sc1
    """)
    return bg

QB = 0
def QAb(layer): return 102400
def NRS(layer): return 3
def BST(layer): return 5120 if layer else 4096
KVF = 151552
QACC = 8
QAF = 48
QBF = 72
def qkv_rot(a): pass
def qkv_roles(a, layer):
    RX=RXS[layer]
    a(f"""
    s_lshr_b32 s81, s2, 3
    s_and_b32 {SR}, {SX}, {8//RX-1}
    s_mul_i32 {SR}, {SR}, {RX}
    s_and_b32 s82, s81, {RX-1}
    s_add_u32 {SR}, {SR}, s82
    s_lshr_b32 {SH}, {SX}, {(8//RX).bit_length()-1}
    s_mul_i32 {SH}, {SH}, {32//RX}
    s_lshr_b32 s81, s81, {RX.bit_length()-1}
    s_add_u32 {SH}, {SH}, s81
    s_and_b32 s68, {SH}, 3
    s_mul_i32 s68, s68, 5
    s_lshr_b32 s81, {SH}, 2
    s_add_u32 s68, s68, s81
    s_cmp_ge_u32 s68, 20
    s_cselect_b32 s81, 20, 0
    s_sub_u32 s68, s68, s81
    """)

def qkv_bload_setup(a, NT):
    BS=BST(0 if NT==4 else 1)
    a(f"""
    v_lshrrev_b32 v149, 2, {VN}
    v_add_u32 v150, 1, v149
    v_cmp_eq_u32 vcc, 2, v149
    v_cndmask_b32 v150, v150, 0, vcc
    v_min_u32 v150, 3, v150
    v_mul_u32_u24 v150, 640, v150
    v_and_b32 v149, 3, {VN}
    v_add3_u32 v150, v150, v149, 16
    s_add_u32 s48, s60, 1
    s_and_b32 s48, s48, 3
    s_mul_i32 s48, s48, 640
    v_add_u32 v149, s48, {VN}
    s_cmp_eq_u32 s60, 2
    s_cselect_b64 vcc, -1, 0
    v_cndmask_b32 v149, v149, v150, vcc
    v_mul_u32_u24 v150, 2560, {VG}
    s_mul_i32 s48, {SH}, 20
    v_add3_u32 v149, v149, v150, s48
    v_lshlrev_b32 v149, 4, v149
    s_add_u32 s48, s48, 1920
    v_add3_u32 v150, {VN}, v150, s48
    v_lshlrev_b32 v150, 4, v150
    s_mov_b32 s51, {WQF+20*163840}
    s_add_u32 s50, s68, s61
    s_mul_i32 s50, s50, 163840
    s_add_u32 s50, s50, {WQF}
    s_add_u32 s76, s68, {SW}
    s_mul_i32 s76, s76, 163840
    s_add_u32 s76, s76, {WQF}
    s_mul_i32 s49, s61, {BS}
    s_lshl_b32 s48, s60, 10
    s_add_u32 s49, s49, s48
    s_mul_i32 s77, {SW}, {BS}
    """)
    def chunk(i):
        def f():
            L=None
            if i<10: src,vo,m,step = "s50","v149",f"s_add_u32 m0, s49, {QB+2*BS*i}",2
            else:    src,vo,m,step = "s76","v150",f"s_add_u32 m0, s77, {QB+8*BS*(i-10)+4096}",8
            if i==12:
                L=a.newlabel("qb"); a(f"s_cmp_ge_u32 {SW}, 4\n s_cbranch_scc1 {L}")
            a(f"""
            s_cmp_ge_u32 {src}, s51
            s_cselect_b32 s48, {20*163840}, 0
            s_sub_u32 {src}, {src}, s48
            {m}
            s_nop 0
            buffer_load_dwordx4 {vo}, {R_WS}, {src} offen sc1 lds
            s_add_u32 {src}, {src}, {step*163840}
            """)
            if L: a.label(L)
        return f
    return [chunk(i) for i in range(10 if NT==4 else 13)]

def qkv_bload(a, NT):
    for c in qkv_bload_setup(a, NT): c()

def qkv_prep(a, layer, bg=None):
    def tk(n=1):
        for _ in range(n):
            if bg: bg.pop(0)()
    tk()
    a(f"""
    s_lshl_b32 s64, {SR}, 3
    s_add_u32 s64, s64, {SW}
    s_mul_i32 s65, {SW}, {2048*NRS(layer)}
    s_add_u32 s65, s65, {QAb(layer)}
    v_lshrrev_b32 v112, 5, {VL}
    v_lshlrev_b32 v112, 5, v112
    {'v_mov_b32 v112, v4' if 'noswz' in EXP else 'v_xor_b32 v112, v112, v4'}
    v_lshrrev_b32 v113, 2, {VN}
    v_lshl_add_u32 v113, {VG}, 3, v113
    v_lshlrev_b32 v113, 6, v113
    v_and_b32 v114, 3, {VN}
    v_lshl_add_u32 v113, v114, 3, v113
    v_and_b32 v114, 1, {VG}
    v_lshl_add_u32 v113, v114, 5, v113
    v_add_u32 v113, s65, v113
    v_xor_b32 v114, 32, v113
    v_add_u32 v115, {10*BST(layer)}, {VL16}
    s_cmp_eq_u32 {SH}, 19
    s_cselect_b32 s40, 3, 99
    v_mov_b32 v116, 0xffff
    v_cmp_ne_u32 vcc, s40, {VG}
    v_cndmask_b32 v116, v116, -1, vcc
    v_lshrrev_b32 v117, 1, {VG}
    v_lshl_add_u32 v117, v117, 4, {VN}
    v_lshlrev_b32 v117, 2, v117
    """)
    tk()
    a(f"""
    v_lshrrev_b32 v8, 2, v0
    v_mul_u32_u24 v9, 781, v8
    v_lshrrev_b32 v9, 14, v9          ; dq
    v_mul_u32_u24 v10, 21, v9
    v_sub_u32 v8, v8, v10             ; rho
    v_lshlrev_b32 v10, 4, v9
    v_subrev_u32 v11, 12, v8
    v_cmp_eq_u32 vcc, 20, v8
    v_cndmask_b32 v11, v11, 0, vcc
    v_add_u32 v11, 128, v11
    v_cmp_gt_u32 vcc, 16, v8
    v_cndmask_b32 v11, v11, v8, vcc
    v_add_u32 v10, v10, v11
    v_and_b32 v11, 3, v0
    v_lshl_add_u32 v10, v10, 2, v11
    v_lshlrev_b32 v10, 2, v10
    v_min_u32 v10, 4092, v10
    v_add_u32 v118, {QAb(layer)}, v10
    """)
    tk()
    a(f"""
    v_lshrrev_b32 v8, 2, {VN}
    v_and_b32 v9, 1, v8
    v_cmp_eq_u32 vcc, 1, v9
    v_mov_b32 v10, {f2u(1e-6)}
    v_mov_b32 v11, 0xff800000
    v_cndmask_b32 v119, v10, 0, vcc
    v_cndmask_b32 v120, v10, v11, vcc
    v_cndmask_b32 v121, 1.0, 0, vcc
    v_cmp_eq_u32 vcc, 3, v8
    v_mov_b32 v10, {f2u(2.0/640)}
    v_cndmask_b32 v122, 1.0, 0, vcc
    v_cndmask_b32 v123, 0, v10, vcc
    """)
    tk()
    a(f"""
    v_lshlrev_b32 v8, 2, {VG}
    v_sub_u32 v8, {VN}, v8
    v_mov_b32 v10, 0x3f80
    v_mov_b32 v11, 0x3f800000
    v_cmp_eq_u32 vcc, 0, v8
    v_cndmask_b32 v124, 0, v10, vcc
    v_cmp_eq_u32 vcc, 1, v8
    v_cndmask_b32 v124, v124, v11, vcc
    v_cmp_eq_u32 vcc, 2, v8
    v_cndmask_b32 v125, 0, v10, vcc
    v_cmp_eq_u32 vcc, 3, v8
    v_cndmask_b32 v125, v125, v11, vcc
    v_mov_b32 v126, 0
    v_mov_b32 v127, 0
    v_mov_b32 v128, 0
    v_mov_b32 v129, 0
    v_mov_b32 v130, v124
    v_mov_b32 v131, v125
    """)
    tk()
    a(f"""
    v_lshrrev_b32 v8, 3, {VL}
    v_mul_u32_u24 v8, 1792, v8
    v_and_b32 v9, 7, {VL}
    v_lshl_add_u32 v132, v9, 4, v8
    s_lshl_b32 s40, {SW}, 8
    v_add_u32 v132, s40, v132
    """)
    tk()
    a(f"""
    v_lshrrev_b32 v8, 5, {VL}
    v_lshl_add_u32 v8, v8, 3, v9
    s_lshl_b32 s40, {SW}, 4
    v_add_u32 v8, s40, v8
    v_mul_u32_u24 v9, 781, v8
    v_lshrrev_b32 v9, 14, v9          ; dq
    v_mul_u32_u24 v10, 21, v9
    v_sub_u32 v8, v8, v10             ; rho
    v_add_u32 v10, 48, v8
    v_cmp_gt_u32 vcc, 16, v8
    v_cndmask_b32 v8, v10, v8, vcc
    v_lshlrev_b32 v8, 4, v8
    v_lshlrev_b32 v10, 8, v9
    v_mov_b32 v11, {2*256+8}
    v_cmp_eq_u32 vcc, 4, v9
    v_cndmask_b32 v10, v10, v11, vcc
    v_mov_b32 v11, 2048
    v_cmp_lt_u32 vcc, 4, v9
    v_cndmask_b32 v10, v10, v11, vcc
    v_add_u32 v8, v8, v10
    v_and_b32 v9, 1, {VG}
    v_lshl_add_u32 v8, v9, 2, v8
    v_add_u32 v133, {KVF}, v8
    v_add_u32 v134, {KVF}, {VL16}
    v_min_u32 v8, 4, {VN}
    v_lshl_add_u32 v8, {VG}, 4, v8
    v_lshlrev_b32 v8, 4, v8
    v_add_u32 v135, {KVF+1024}, v8
    v_mov_b32 v8, 0
    v_lshlrev_b32 v9, 2, v0
    v_add_u32 v9, {KVF}, v9
    ds_write_b32 v9, v8
    """)
    tk()
    a(f"""
    v_bfe_u32 v8, {VN}, 2, 1
    v_mul_u32_u24 v8, 20480, v8
    v_lshrrev_b32 v9, 3, {VN}
    v_lshl_add_u32 v8, v9, 6, v8
    v_and_b32 v9, 3, {VN}
    v_lshl_add_u32 v8, v9, 4, v8
    s_mul_i32 s40, {SH}, 5
    v_add_u32 v9, s40, {VG}
    v_lshrrev_b32 v10, 1, v9
    v_lshl_add_u32 v136, v10, 8, v8
    v_and_b32 v10, 1, v9
    v_lshl_add_u32 v136, v10, 3, v136
    s_add_u32 s40, s40, 4
    s_lshr_b32 s41, s40, 1
    s_lshl_b32 s41, s41, 8
    s_and_b32 s40, s40, 1
    s_lshl_b32 s40, s40, 3
    s_add_u32 s40, s40, s41
    v_add_u32 v137, s40, v8
    v_lshlrev_b32 v138, 3, {VN}
    v_lshl_add_u32 v138, {VG}, 8, v138
    """)
    tk(20)

def qkv_main(a, layer):
    last = layer==1
    NT = 5 if last else 4
    NR = NRS(layer); BS = BST(layer)
    xin = X3 if last else X1; var = VAR3 if last else VAR1
    a(f"""
    s_mul_i32 s52, s64, 40960
    s_add_u32 s52, s52, {xin}
    s_add_u32 s54, s52, 40960
    s_lshl_b32 s53, s68, 11
    s_add_u32 s53, s53, s52
    """)
    def dma0(j):
        a(f"s_add_u32 m0, s65, {(j%NR)*2048}")
        a("s_nop 0")
        a(f"buffer_load_dwordx4 v112, {R_WS}, s53 offen {'' if 'nosc' in EXP else 'sc1'} lds")
    def dma1(j):
        a(f"""
        buffer_load_dwordx4 v112, {R_WS}, s53 offen offset:1024 {'' if 'nosc' in EXP else 'sc1'} lds
        s_add_u32 s53, s53, 2048
        s_cmp_ge_u32 s53, s54
        s_cselect_b32 s53, s52, s53
        """)
    q=LQ(a)
    def rdA(j,k):
        aa,h=k>>1,k&1
        q.op(f"ds_read_b64_tr_b16 {v(QAF+8*(j%3)+4*aa+2*h,2)}, v{113+aa} offset:{(j%NR)*2048+256*h}", ("A",j,aa))
    def rdB(j,t):
        base,off=(VL16,j*BS) if j<10 else ("v115",(j-10)*BS)
        q.op(f"ds_read_b128 {v(QBF+20*(j&1)+4*t,4)}, {base} offset:{QB+off+1024*t}", ("B",j,t))
    for j in range(NR): dma0(j); dma1(j)
    for t in range(NT): rdB(0,t)
    a(f"""
    s_lshl_b32 s55, s64, 7
    s_add_u32 s55, s55, {var}
    s_lshl_b32 s56, s64, 8
    s_add_u32 s56, s56, {LSS + layer*16384}
    s_waitcnt vmcnt({2*NR-2})
    """)
    for k in range(4): rdA(0,k)
    a(f"s_waitcnt vmcnt({2*NR-4})")
    for k in range(4): rdA(1,k)
    q.need(("A",0,0),("A",0,1))
    dma0(NR); dma1(NR)
    JC = 16-NR
    for j in range(20):
        aux=[]
        if j+1<20: aux+= [(lambda t=t: (None if ("nob" in EXP and j>0) else rdB(j+1,t))) for t in range(NT)]
        if j+2<20:
            def first():
                a(f"s_waitcnt vmcnt({min(2*NR-2,2*(17-j)) if j<17 else 4})"); rdA(j+2,0)
            aux+= [first, lambda: rdA(j+2,1), lambda: (rdA(j+2,2), rdA(j+2,3))]
        pos_dma = 2
        for m in range(2*NT):
            t,aa=m>>1,m&1
            q.need(("A",j,aa),("B",j,t))
            d=v(QACC+8*t+4*aa,4); bf=v(QBF+20*(j&1)+4*t,4); af=v(QAF+8*(j%3)+4*aa,4); c=d if j else 0
            if "nomm" in EXP and j>0 and m>0: pass
            elif t>=3: a(f"{M16} {d}, {bf}, {af}, {c}")
            else: a(f"{M16} {d}, {af}, {bf}, {c}")
            if m<len(aux): aux[m]()
            if j+NR+1<20 and "nodma" not in EXP:
                if m==pos_dma:
                    q.need(("A",j+1,0),("A",j+1,1)); dma0(j+NR+1)
                if m==pos_dma+1: dma1(j+NR+1)
        if j==0 and 'nossq' not in EXP:
            L=a.newlabel("ssq")
            a(f"""
            s_cmp_ge_u32 {SH}, 20
            s_cbranch_scc1 {L}
            v_mov_b32 v5, 0
            v_mov_b32 v6, 0
            v_and_b32 v7, v116, v{QAF+3}
            v_and_b32 v139, v116, v{QAF+7}
            """)
            for k in range(3):
                a(f"v_dot2c_f32_bf16 v5, v{QAF+k}, v{QAF+k}")
                a(f"v_dot2c_f32_bf16 v6, v{QAF+4+k}, v{QAF+4+k}")
            a(f"""
            v_dot2c_f32_bf16 v5, v7, v7
            v_dot2c_f32_bf16 v6, v139, v139
            v_permlane32_swap_b32 v5, v6
            v_add_f32 v5, v5, v6
            v_mov_b32 v6, v5
            v_permlane16_swap_b32 v5, v6
            v_add_f32 v5, v5, v6
            s_mov_b32 exec_lo, 0xffff
            s_mov_b32 exec_hi, 0xffff
            buffer_atomic_add_f32 v5, v117, {R_WS}, s55 offen
            s_mov_b64 exec, -1
            {L}:
            """)
        if j==JC:
            a(f"v_mov_b32 v5, 0\n buffer_load_dword v140, v5, {R_WS}, s56 offen sc1")
        if j==13:
            WB = 3 if last else 5
            L=a.newlabel("w5c")
            a(f"s_cmp_lg_u32 {SW}, 7\n s_cbranch_scc1 {L}")
            bar_target(a, WB)
            a(f"""
            v_cmp_gt_u32 vcc, v253, v151
            s_cmp_eq_u64 vcc, 0
            s_cbranch_scc1 {L}
            """)
            wait(a, WB, bar=False)
            a.label(L)
            a("s_barrier")
        if j in (9,10) and not last:
            L=a.newlabel("zf")
            i=j-9
            if i==0:
                a(f"""
                v_mov_b32 v152, 0
                v_mov_b32 v153, 0
                v_mov_b32 v154, 0
                v_mov_b32 v155, 0
                s_lshl_b32 s40, {SW}, 8
                s_add_u32 s40, s40, s2
                s_lshl_b32 s41, s40, 10
                s_add_u32 s41, s41, {X2}
                """)
            if i==1: a(f"s_cmp_ge_u32 s40, 512\n s_cbranch_scc1 {L}")
            a(f"buffer_store_dwordx4 v[152:155], {VL16}, {R_WS}, s41 offen sc1\n s_add_u32 s41, s41, {2048*1024}")
            a.label(L)
        if j==8: probe(a, 3 if last else 5, "v151")
        if j==16:
            L=a.newlabel("ssp")
            a(f"""
            v_cmp_gt_u32 vcc, {0 if 'nossq' in EXP else 20}, v140
            s_cmp_eq_u64 vcc, 0
            s_cbranch_scc1 {L}
            v_mov_b32 v255, 0
            """)
            poll(a, R_WS, "s56", "v255", 20, 20+layer)
            a(f"""
            {L}:
            v_lshlrev_b32 v5, 4, {VG}
            v_lshlrev_b32 v6, 2, {VN}
            buffer_load_dwordx4 v[140:143], v5, {R_WS}, s55 offen sc1
            buffer_load_dwordx4 v[144:147], v5, {R_WS}, s55 offen offset:64 sc1
            buffer_load_dword v148, v6, {R_WS}, s55 offen sc1
            buffer_load_dword v149, v6, {R_WS}, s55 offen offset:64 sc1
            """)
        if j==18:
            a(f"s_mov_b32 s40, {f2u(2.0/(640*640))}\n v_mov_b32 v7, {f2u(1e-5)}\n s_waitcnt vmcnt(0)")
            for i in range(10): a(f"v_fma_f32 v{140+i}, v{140+i}, s40, v7")
            for i in range(10): a(f"v_rsq_f32 v{140+i}, v{140+i}")
        if j==NR+1 and 'nossq' not in EXP:
            L=a.newlabel("ssf")
            a(f"s_cmp_ge_u32 {SH}, 20\n s_cbranch_scc1 {L}")
            larrive(a, "s56")
            a.label(L)

def qkv_tail(a, layer):
    last = layer==1
    ob = O4 if last else O2
    A=lambda t,aa,i=0: QACC+8*t+4*aa+i
    RR=140; RL=148; S2=64; E=72; P0_,P1_,P2_,P2o=80,84,88,92; QP=96
    a(f"""
    v_mov_b32 v58, {f2u(1e-6)}
    s_mov_b32 s41, {f2u(math.log2(math.e))}
    """)
    def phi(t, scale, eps, lo, sel):
        for i in range(8): a(f"v_fma_f32 v{A(t,0,i)}, v{A(t,0,i)}, {scale(i)}, {eps}")
        for i in range(8): a(f"v_mul_f32 v{E+i}, s41, v{A(t,0,i)}")
        for i in range(8): a(f"v_exp_f32_e64 v{E+i}, v{E+i} clamp")
        for i in range(8): a(f"v_max_f32 v{A(t,0,i)}, v{A(t,0,i)}, {lo}")
        for i in range(8):
            if sel: a(f"v_fma_f32 v{A(t,0,i)}, v{E+i}, {sel}, v{A(t,0,i)}")
            else: a(f"v_add_f32 v{A(t,0,i)}, v{A(t,0,i)}, v{E+i}")
    def pack(t, dst):
        for q in range(4): a(f"v_cvt_pk_bf16_f32 v{dst+q}, v{A(t,0,2*q)}, v{A(t,0,2*q+1)}")
    for i in range(8): a(f"v_mul_f32 v{A(1,0,i)}, v{A(1,0,i)}, v{RR+i}")
    pack(1,P1_)
    for i in range(8): a(f"v_fma_f32 v{S2+i}, v{RR+i}, v122, v123")
    phi(0, lambda i:f"v{RR+i}", "v58", "v58", None); pack(0,P0_)
    phi(2, lambda i:f"v{S2+i}", "v119", "v120", "v121"); pack(2,P2_)
    if not last:
        a(f"v_cmp_gt_u32 vcc, 12, {VN}")
        for q in range(4): a(f"v_cndmask_b32 v{P2_+q}, 0, v{P2_+q}, vcc")
    a(f"v_mov_b32 v5, 0x3f803f80\n v_cmp_gt_u32 vcc, 4, {VN}")
    for q in range(4): a(f"v_cndmask_b32 v{P2o+q}, v{P2_+q}, v5, vcc")
    a(f"""
    {M16} v[8:11], {v(P0_,4)}, {v(P1_,4)}, 0
    {M16} v[12:15], {v(P2_,4)}, {v(P1_,4)}, 0
    {M16} v[16:19], {v(P0_,4)}, {v(P2o,4)}, 0
    {M16} v[20:23], {v(P2_,4)}, {v(P2o,4)}, 0
    {M16} v[24:27], {v(P2_,4)}, v[124:127], 0
    {M16} v[28:31], {v(P2_,4)}, v[128:131], 0
    v_add_u32 v6, s65, {VL16}
    """)
    for q in range(4): a(f"ds_write_b128 v6, {v(8+4*q,4)} offset:{1024*q}")
    L03=a.newlabel("lead")
    a(f"s_cmp_ge_u32 {SW}, 4\n s_cbranch_scc1 {L03}")
    ao_wload(a, WOR if last else WOF, 1, layer)
    a(f"s_mov_b32 s41, {f2u(math.log2(math.e))}")
    a.label(L03)
    a("s_waitcnt lgkmcnt(0)\n s_barrier")
    L7=a.newlabel("kv7"); LJ=a.newlabel("kvj"); L=a.newlabel("kvs")
    a(f"""
    s_mul_i32 s57, {SH}, {8*1792}
    s_add_u32 s57, s57, {KVP + layer*256*1792}
    s_cmp_eq_u32 {SW}, 7
    s_cbranch_scc1 {L}
    """)
    for w in range(8): a(f"ds_read_b32 v{8+w}, v118 offset:{w*2048*NRS(layer)}")
    a(f"""
    v_lshlrev_b32 v6, 2, v0
    s_mul_i32 s40, {SR}, 1792
    s_add_u32 s40, s40, s57
    s_waitcnt lgkmcnt(0)
    v_add_f32 v8, v8, v9
    v_add_f32 v10, v10, v11
    v_add_f32 v12, v12, v13
    v_add_f32 v14, v14, v15
    v_add_f32 v8, v8, v10
    v_add_f32 v12, v12, v14
    v_add_f32 v8, v8, v12
    v_max_u32 v8, 1, v8
    buffer_store_dword v8, v6, {R_WS}, s40 offen sc1
    {L}:
    """)
    if last:
        a(f"""
        s_mul_i32 s42, s64, 40960
        s_mul_i32 s43, {SH}, 1280
        s_add_u32 s42, s42, s43
        s_add_u32 s42, s42, {Y3}
        s_mov_b32 s43, {f2u(2.0/640)}
        """)
        for i in range(8): a(f"v_mul_f32 v{A(4,0,i)}, s43, v{A(4,0,i)}")
        for q in range(4): a(f"v_cvt_pk_bf16_f32 v{60+q}, v{A(4,0,2*q)}, v{A(4,0,2*q+1)}")
        for q in range(4): a(f"v_max_u32 v{60+q}, 1, v{60+q}")
        a(f"buffer_store_dwordx2 v[60:61], v138, {R_WS}, s42 offen sc1")
        a(f"buffer_store_dwordx2 v[62:63], v138, {R_WS}, s42 offen offset:128 sc1")
    phi(3, lambda i:f"v{RL+(i>>2)}", "v58", "v58", None)
    for aa in range(2):
        a(f"v_cvt_pk_bf16_f32 v{QP+4*aa}, v{A(3,aa,0)}, v{A(3,aa,1)}")
        a(f"v_cvt_pk_bf16_f32 v{QP+4*aa+1}, v{A(3,aa,2)}, v{A(3,aa,3)}")
        a(f"v_cvt_pk_bf16_f32 v{QP+4*aa+2}, v{24+4*aa}, v{25+4*aa}")
        a(f"v_cvt_pk_bf16_f32 v{QP+4*aa+3}, v{26+4*aa}, v{27+4*aa}")
    a(f"""
    s_mul_i32 s44, s64, 40960
    s_add_u32 s44, s44, {ob}
    """)
    pst(a,3)
    LP=a.newlabel("kvp"); LD=a.newlabel("kvd")
    a(f"""
    s_cmp_eq_u32 {SW}, 7
    s_cbranch_scc1 {L7}
    s_mov_b32 s58, {SPIN}
    {LP}:
    buffer_load_dwordx4 v[8:11], v132, {R_WS}, s57 offen sc1
    buffer_load_dwordx4 v[12:15], v132, {R_WS}, s57 offen offset:128 sc1
    s_waitcnt vmcnt(0)
    v_min3_u32 v16, v8, v9, v10
    v_min3_u32 v17, v11, v12, v13
    v_min3_u32 v16, v16, v14, v15
    v_min_u32 v16, v16, v17
    v_cmp_eq_u32 vcc, 0, v16
    s_cmp_eq_u64 vcc, 0
    s_cbranch_scc1 {LD}
    """)
    retry_check(a, None, LP, LD, 30+layer)
    a.label(LD)
    for i in range(4): a(f"v_permlane32_swap_b32 v{8+i}, v{12+i}")
    for i in range(4): a(f"v_add_f32 v{8+i}, v{8+i}, v{12+i}")
    a(f"""
    v_permlane16_swap_b32 v8, v10
    v_permlane16_swap_b32 v9, v11
    v_add_f32 v8, v8, v10
    v_add_f32 v9, v9, v11
    v_add_f32_dpp v8, v8, v8 row_ror:8 row_mask:0xf bank_mask:0xf
    v_add_f32_dpp v9, v9, v9 row_ror:8 row_mask:0xf bank_mask:0xf
    v_cvt_pk_bf16_f32 v8, v8, v9
    ds_write_b32 v133, v8
    s_waitcnt lgkmcnt(0)
    s_branch {LJ}
    {L7}:
    """)
    ao_wload(a, WOR if last else WOF, 0, layer)
    a(f"""
    {LJ}:
    s_barrier
    ds_read_b128 v[28:31], v135
    ds_read_b128 v[24:27], v134
    """)
    pst(a,4)
    a("s_waitcnt lgkmcnt(0)")
    for aa in range(2):
        a(f"{M16} {v(36+8*aa,4)}, v[28:31], {v(QP+4*aa,4)}, 0")
    for aa in range(2):
        a(f"{M16} {v(32+8*aa,4)}, v[24:27], {v(QP+4*aa,4)}, 0")
    for aa in range(2):
        D=32+8*aa
        a(f"""
        v_mov_b32 v{8+2*aa}, v{D+4}
        v_mov_b32 v{9+2*aa}, v{D+4}
        """)
    for aa in range(2): a(f"v_permlane16_swap_b32 v{8+2*aa}, v{9+2*aa}")
    for aa in range(2): a(f"v_add_f32 v{9+2*aa}, v{9+2*aa}, v58")
    for aa in range(2): a(f"v_rcp_f32 v{9+2*aa}, v{9+2*aa}")
    for aa in range(2):
        D=32+8*aa
        for i in range(8): a(f"v_mul_f32 v{D+i}, v{D+i}, v{9+2*aa}")
        for q in range(4): a(f"v_cvt_pk_bf16_f32 v{12+4*aa+q}, v{D+2*q}, v{D+2*q+1}")
        for q in range(4): a(f"v_max_u32 v{12+4*aa+q}, 1, v{12+4*aa+q}")
        a(f"buffer_store_dwordx2 {v(12+4*aa,2)}, v136, {R_WS}, s44 offen offset:{128*aa} sc1")
    a(f"""
    s_mov_b64 exec, 0xffff
    buffer_store_dwordx2 v[14:15], v137, {R_WS}, s44 offen sc1
    buffer_store_dwordx2 v[18:19], v137, {R_WS}, s44 offen offset:128 sc1
    s_mov_b64 exec, -1
    """)
    if last:
        for r in (QP+2,QP+3,QP+6,QP+7): a(f"v_max_u32 v{r}, 1, v{r}")
        a(f"""
        s_mov_b32 exec_lo, 0
        s_mov_b32 exec_hi, 0xffff0000
        buffer_store_dwordx2 {v(QP+2,2)}, v138, {R_WS}, s42 offen offset:256 sc1
        buffer_store_dwordx2 {v(QP+6,2)}, v138, {R_WS}, s42 offen offset:384 sc1
        s_mov_b64 exec, -1
        """)

def ao_wload(a, wt, part, layer):
    a(f"""
    s_mul_i32 s40, {ST}, 102400
    s_add_u32 s40, s40, {wt}
    """)
    if part==0:
        lo = 64 if layer else 48
        for f in range(lo,lo+36):
            if f%4==0: a(f"s_add_u32 s41, s40, {f*1024}\n s_mov_b32 m0, {FT+f*1024}")
            a(f"buffer_load_dwordx4 {VL16}, {R_WS}, s41 offen offset:{1024*(f%4)} sc1 lds")
    else:
        a(f"s_lshl_b32 s41, {SW}, 14")
        if not layer: a(f"s_cmp_eq_u32 {SW}, 3\n s_cselect_b32 s41, {84*1024}, s41")
        a("s_add_u32 s40, s40, s41")
        for j in range(16):
            if j%4==0: a(f"s_add_u32 s45, s40, {j*1024}\n s_add_u32 m0, s41, {FT+j*1024}")
            a(f"buffer_load_dwordx4 {VL16}, {R_WS}, s45 offen offset:{1024*(j%4)} sc1 lds")

def ao_main(a, layer):
    ob = O4 if layer else O2
    a(f"""
    s_lshl_b32 s48, {SI}, 2
    s_add_u32 s48, s48, s60
    s_mul_i32 s48, s48, 20480
    s_mul_i32 s41, s61, 10240
    s_add_u32 s48, s48, s41
    s_add_u32 s48, s48, {ob}
    s_add_u32 s49, s48, 4096
    s_add_u32 s50, s48, 8192
    s_mov_b32 s58, {SPIN}
    """)
    ld=lambda j: a(f"buffer_load_dwordx4 {v(PF+4*j,4)}, {VL16}, {R_WS}, s{48+j//4} offen offset:{1024*(j%4)} sc1")
    a(f"s_waitcnt vmcnt({0 if 'noodrain' not in EXP else (6 if layer else 7)})\n s_barrier")
    if "clk" not in EXP: pst(a,7)
    if layer:
        L=a.newlabel("p6l")
        a(f"s_cmp_lg_u32 s61, 0\n s_cbranch_scc1 {L}")
        p6_resload(a)
        a.label(L)
    AHEAD=4
    for j in range(AHEAD): ld(j)
    blocks=[]
    def chk(j):
        a(f"""
        v_min3_u32 v5, v{PF+4*j}, v{PF+4*j+1}, v{PF+4*j+2}
        v_min_u32 v5, v5, v{PF+4*j+3}
        v_cmp_eq_u32 vcc, 0, v5
        s_cmp_lg_u64 vcc, 0
        """)
    def wp(j):
        R=a.newlabel("aor"); B=a.newlabel("aob")
        if j+AHEAD<10: ld(j+AHEAD)
        a(f"s_waitcnt vmcnt({min(AHEAD,9-j)})")
        chk(j)
        a(f"s_cbranch_scc1 {R}")
        a.label(B)
        blocks.append((j,R,B))
    g640_core(a, layer==1, "v21", wait_priv=wp)
    def emit_blocks():
        for j,R,B in blocks:
            OK=a.newlabel("aok")
            a.label(R)
            ld(j)
            a("s_waitcnt vmcnt(0)")
            chk(j)
            a(f"s_cbranch_scc0 {OK}")
            retry_check(a, None, R, B, 40+layer)
            a.label(OK)
            for k in range(j+1,min(10,j+AHEAD+1)): ld(k)
            a(f"s_branch {B}")
    a.late.append(emit_blocks)

def p6_prep(a):
    mu_pos(a, "v10", "s62", "v11")
    a(f"""
    v_mul_u32_u24 v22, 1280, {VG}
    v_lshl_add_u32 v22, v10, 3, v22
    s_lshl_b32 s74, {SI}, 1
    s_add_u32 s74, s74, s63
    s_mul_i32 s74, s74, 40960
    s_mul_i32 s41, {ST}, 5120
    s_add_u32 s74, s74, s41
    s_add_u32 s74, s74, {Y3}
    """)
    tok_row(a)("v10", VN)
    a(f"""
    s_movk_i32 s41, 1280
    v_mul_lo_u32 v10, v10, s41
    v_mul_u32_u24 v12, 40, {VG}
    v_add_u32 v23, v10, v12
    s_mul_i32 s75, {ST}, 160
    s_mul_i32 s40, s60, 5120
    s_add_u32 s40, s40, {RS}
    v_add_u32 v9, s40, {VL16}
    """)

def p6_resload(a):
    for nt in range(5): a(f"buffer_load_dwordx2 {v(10+2*nt,2)}, v22, {R_WS}, s74 offen offset:{256*nt} sc1")

def p6_epilogue(a):
    L1=a.newlabel("p6a"); L2=a.newlabel("p6b"); LR=a.newlabel("p6r"); LK=a.newlabel("p6k")
    a(f"s_cmp_eq_u32 s61, 0\n s_cbranch_scc1 {L1}")
    for nt in range(5): a(f"ds_write_b128 v9, {v(AC+4*nt,4)} offset:{nt*1024}")
    a(f"""
    s_waitcnt lgkmcnt(0)
    s_barrier
    s_branch {L2}
    {LR}:
    """)
    p6_resload(a)
    a("s_waitcnt vmcnt(0)")
    retry_check(a, None, L1, LK, 50)
    a(f"""
    {L1}:
    v_min3_u32 v6, v10, v11, v12
    v_min3_u32 v7, v13, v14, v15
    v_min3_u32 v6, v6, v16, v17
    v_min3_u32 v7, v7, v18, v19
    v_min_u32 v6, v6, v7
    v_cmp_eq_u32 vcc, 0, v6
    s_cmp_lg_u64 vcc, 0
    s_cbranch_scc1 {LR}
    {LK}:
    """)
    for q in range(10):
        a(f"""
        v_lshlrev_b32 v6, 16, v{10+q}
        v_and_b32 v7, 0xffff0000, v{10+q}
        v_add_f32 v{AC+2*q}, v{AC+2*q}, v6
        v_add_f32 v{AC+2*q+1}, v{AC+2*q+1}, v7
        """)
    a("s_barrier")
    for nt in range(5): a(f"ds_read_b128 {v(SB+4*nt,4)}, v9 offset:{nt*1024}")
    a("s_waitcnt lgkmcnt(0)")
    for q in range(10):
        a(f"""
        v_add_f32 v{AC+2*q}, v{AC+2*q}, v{SB+2*q}
        v_add_f32 v{AC+2*q+1}, v{AC+2*q+1}, v{SB+2*q+1}
        v_cvt_pk_bf16_f32 v{64+q}, v{AC+2*q}, v{AC+2*q+1}
        """)
    a(f"""
    buffer_store_dwordx4 v[64:67], v23, {R_OUT}, s75 offen
    buffer_store_dwordx4 v[68:71], v23, {R_OUT}, s75 offen offset:16
    buffer_store_dwordx2 v[72:73], v23, {R_OUT}, s75 offen offset:32
    {L2}:
    """)

def probe(a, beta, dst):
    L=a.newlabel("pb")
    a(f"""
    s_cmp_lg_u32 {SW}, 7
    s_cbranch_scc1 {L}
    s_and_b32 s59, s2, 3
    s_lshl_b32 s59, s59, 12
    s_add_u32 s59, s59, {CNTB(beta)}
    v_lshlrev_b32 v255, 8, {VN}
    buffer_load_dword {dst}, v255, {R_WS}, s59 offen sc1
    {L}:
    """)
def probe_check(a, beta, src, vm):
    L=a.newlabel("pc")
    a(f"""
    s_cmp_lg_u32 {SW}, 7
    s_cbranch_scc1 {L}
    s_waitcnt vmcnt({vm})
    v_cmp_gt_u32 vcc, 16, {src}
    s_cmp_eq_u64 vcc, 0
    s_cbranch_scc1 {L}
    """)
    wait(a, beta, bar=False)
    a.label(L)

def code_touch(a):
    L=a.newlabel("ct")
    a(f"""
    s_cmp_lg_u32 {SW}, 1
    s_cbranch_scc1 {L}
    s_getpc_b64 s[40:41]
    ctbase:
    s_lshr_b32 s42, s2, 3
    s_mul_i32 s42, s42, 12
    v_min_u32 v8, 11, {VL}
    v_add_u32 v8, s42, v8
    v_lshlrev_b32 v8, 7, v8
    v_min_u32 v8, kend-ctbase-4, v8
    v_mov_b32 v9, s41
    v_add_co_u32 v8, vcc, s40, v8
    v_addc_co_u32 v9, vcc, 0, v9, vcc
    global_load_dword v254, v[8:9], off
    {L}:
    """)

def body(a):
    pst(a,0)
    if 'ctouch' in EXP: code_touch(a)
    l2_touch(a)
    if 'wtouch' not in EXP: wt_loads(a)
    zero_issue(a)
    pst(a,1)
    if 'early' in EXP:
        LE=a.newlabel("ea"); LF=a.newlabel("eb")
        a(f"s_cmp_ge_u32 {SW}, 4\n s_cbranch_scc1 {LE}")
        rows_dma(a, R_X, tok_row(a))
        a.label(LE)
    gen_ftile(a)
    zero_signal(a)
    pst(a,2)
    if 'early' in EXP: a(f"s_cmp_lt_u32 {SW}, 4\n s_cbranch_scc1 {LF}")
    rows_dma(a, R_X, tok_row(a))
    if 'early' in EXP: a.label(LF)
    if 'wtouch' in EXP: wt_loads(a)
    xtile_base(a, "s64")
    L=a.newlabel("zx")
    a(f"""
    v_mov_b32 v12, 0
    v_mov_b32 v13, 0
    s_mul_i32 s43, s61, 40960
    s_lshl_b32 s44, s60, 9
    s_add_u32 s43, s43, s44
    v_lshlrev_b32 v6, 3, {VL}
    v_add_u32 v6, s43, v6
    s_add_u32 s46, s64, 4096
    s_cmp_ge_u32 s60, 2
    s_cselect_b32 s46, {OOB}, s46
    buffer_store_dwordx2 v[12:13], v6, {R_WS}, s64 offen sc1
    buffer_store_dwordx2 v[12:13], v6, {R_WS}, s64 offen offset:2048 sc1
    buffer_store_dwordx2 v[12:13], v6, {R_WS}, s46 offen sc1
    s_cmp_lg_u32 {SW}, 6
    s_cbranch_scc1 {L}
    v_lshlrev_b32 v7, 2, {VL}
    s_lshl_b32 s47, {ST}, 12
    s_lshl_b32 s46, {SI}, 7
    s_add_u32 s47, s47, s46
    s_add_u32 s47, s47, {PV0}
    s_mov_b32 exec_hi, 0
    buffer_store_dword v12, v7, {R_WS}, s47 offen sc1
    s_mov_b32 exec_hi, -1
    {L}:
    """)
    L=a.newlabel("nc")
    a(f"s_cmp_ge_u32 s72, 20\n s_cbranch_scc1 {L}")
    fft_consts(a)
    a.label(L)
    wq_loads(a)
    side_job(a, False, 13 if 'wtouch' in EXP else 23)
    pst(a,3)
    xe_prep(a, False, sign="v5")
    rows_read(a, 10)
    L6=a.newlabel("w6")
    a(f"""
    s_cmp_lt_u32 {SW}, 3
    s_cbranch_scc1 {L6}
    s_waitcnt vmcnt(0)
    {L6}:
    s_waitcnt vmcnt(4) lgkmcnt(0)
    """)
    wq_stage(a)
    init_probe(a)
    pst(a,4)
    xq_core(a)
    pst(a,5)
    probe(a, 0, "v252")
    a(f"s_mov_b32 s65, {PV0}")
    xtype_epilogue(a, "s64", False, "s65", vm1="v5", pre_bar=lambda: probe_check(a, 0, "v252", 3), AC=ACX, T=PF,
                   extra_write=lambda: wq_write(a))
    pst(a,6)
    pflush(a,0)
    def fft_phase(layer, k):
        first = layer==0
        xin,xout,var,ba = (X0,X1,PV0,2) if first else (X2,X3,PV2,4)
        S=a.newlabel("side"); J=a.newlabel("join"); S2=a.newlabel("side2")
        qkv_roles(a, layer)
        a(f"s_cmp_ge_u32 s72, 20\n s_cbranch_scc1 {S}")
        if first:
            wq_fin(a); fft_w_load(a)
        if first:
            fft_prep(a, first)
        pst(a,2)
        bg=fft_main(a, xin, xout, var, first)
        pst(a,3)
        if ("fd" in EXP and not first) or ("fd1" in EXP and first): pflush(a,6)
        nb=len(bg)
        qkv_prep(a, layer)
        drain(a); arrive(a, ba)
        J6=a.newlabel("j6")
        if nb:
            a("s_barrier")
            for c in bg: c()
        pst(a,4)
        a(f"s_branch {J if nb else J6}")
        a.label(S)
        if first:
            wq_fin(a)
            drain(a); arrive(a, 1)
            a(f"s_sub_u32 s66, s72, 20\n s_cmp_ge_u32 s66, 10\n s_cbranch_scc1 {S2}")
            wo_job(a, False)
            S3=a.newlabel("side3")
            a(f"s_branch {S3}")
            a.label(S2)
            gcol_job(a)
            a.label(S3)
            a("s_waitcnt lgkmcnt(0)")
            wait(a, 1)
            qkv_bload(a, 4)
            a("s_waitcnt vmcnt(10)\n s_barrier")
            arrive(a, 5)
        else:
            wor_loads(a)
            side_job(a, True, 0)
            drain(a); arrive(a, 3)
            qkv_bload(a, 5)
            L=a.newlabel("z4")
            a(f"""
            v_mov_b32 v8, 0
            v_mov_b32 v9, 0
            v_mov_b32 v10, 0
            v_mov_b32 v11, 0
            s_lshl_b32 s41, s67, 10
            s_add_u32 s41, s41, {O4}
            """)
            for i in range(7):
                if i==6: a(f"s_cmp_ge_u32 s67, {5120-6*768}\n s_cbranch_scc1 {L}")
                a(f"buffer_store_dwordx4 v[8:11], {VL16}, {R_WS}, s41 offen sc1\n s_add_u32 s41, s41, {768*1024}")
            a.label(L)
        qkv_prep(a, layer)
        a.label(J)
        a("s_waitcnt vmcnt(0)")
        a.label(J6)
        pst(a,5)
        pflush(a,k)
    def attn_phase(layer, k):
        last = layer==1
        pst(a,0)
        wait(a, 4 if last else 2)
        pst(a,1)
        if "clk" in EXP: a("s_memtime s[84:85]")
        qkv_main(a, layer)
        pst(a,2)
        if "clk" in EXP: a("s_memtime s[98:99]")
        qkv_tail(a, layer)
        pst(a,5)
        a(f"s_mul_i32 s40, s61, 51200\n v_add_u32 v21, s40, {VL16}")
        if last:
            p6_prep(a)
        else:
            xtile_base(a, "s64")
            a(f"s_add_u32 s66, s64, {X1}\n s_add_u32 s64, s64, {X2}\n s_mov_b32 s65, {PV2}")
            xe_prep(a, False, "s66")
            fft_prep(a, False)
        pst(a,6)
        pflush(a,k)
        ao_main(a, layer)
        pst(a,0)
        if last:
            p6_epilogue(a)
            pst(a,1)
            if STAMPS: a("s_waitcnt vmcnt(0)")
            pst(a,2)
            pflush(a,k+1)
        else:
            xtype_epilogue(a, "s64", True, "s65")
            pst(a,6)
            if "xe" in EXP: pflush(a,6)
    fft_phase(0,1)
    attn_phase(0,2)
    fft_phase(1,3)
    attn_phase(1,4)

def build(path):
    n=NAME+"_kernel"
    a=Asm(); a.late=[]
    a.l.append(f".globl {n}\n.p2align 8\n.type {n},@function")
    a.label(n)
    prologue(a)
    if STAMPS:
        for i in range(84,100): a(f"s_mov_b32 s{i}, 0")
    body(a)
    a.label("kexit")
    a("s_endpgm")
    for f in a.late: f()
    a.label("kend")
    hdr=open("cdna_kernels/"+NAME+".s.ref").read().split("; Override")[0]
    txt=hdr+"; @launch grid=(256,1,1) block=(512,1,1) lds=163840\n"+'.amdgcn_target "amdgcn-amd-amdhsa--gfx950"\n.text\n'+a.text()
    txt+=f""".section .rodata,"a"
.p2align 6
.amdhsa_kernel {n}
  .amdhsa_next_free_vgpr 256
  .amdhsa_next_free_sgpr 102
  .amdhsa_accum_offset 256
  .amdhsa_group_segment_fixed_size 0
  .amdhsa_kernarg_size 72
  .amdhsa_user_sgpr_count 2
  .amdhsa_user_sgpr_kernarg_segment_ptr 1
  .amdhsa_system_sgpr_workgroup_id_x 1
.end_amdhsa_kernel
"""
    open(path,"w").write(txt)

if __name__=="__main__":
    if len(sys.argv)>2 and sys.argv[2]=='1': STAMPS=True
    if len(sys.argv)>3: EXP=set(sys.argv[3].split(","))
    EXP ^= DEF
    for e in EXP:
        if e.startswith("rx"): RXS=[int(e[2]),int(e[3])]
    build(sys.argv[1])
```

```python
import sys, math
sys.path.insert(0, "gen")
from asmlib import *

NAME = "interleave_layers__spectral_gfnet__linear_attn_block__prompt"
XB = 2621440
X0, X2, X3 = 0, 2*XB, 3*XB
X1 = 13*XB
O4 = 5*XB
O2 = 4*XB
KVP = 14*XB
Y3 = 6*XB
WT = 11*XB
WQF = 8*XB
WOF = WQF + 32*102400
WOR = WOF + 819200
ZA = 10*XB
CNT0 = ZA
PV0 = ZA + 65536
ZC = KVP + 2*256*1792
PV2 = ZC; VAR1 = PV2 + 32768; VAR3 = VAR1 + 8192
LSS = VAR3 + 8192
CNT1 = LSS + 32768
ZCEND = CNT1 + 5*16384
def CNTB(b): return CNT0 + b*16384 if b<2 else CNT1 + (b-1)*16384
RXS = [4,2]
DBGW = 10*XB + 1048576
WS_SIZE = 15*XB
OOB = 0x7ff00000

SW,SX,SA,ST,SI = "s3","s4","s5","s6","s7"
SH = "s71"
SR = "s80"
SROT = "s68"
R_X,R_WR,R_WI,R_WQKV,R_WO,R_OUT,R_WS,R_DBG = ["s[%d:%d]"%(8+4*i,11+4*i) for i in range(8)]
VL,VN,VG,VL16 = "v1","v2","v3","v4"
M16 = "v_mfma_f32_16x16x32_bf16"
STAMPS = False
EXP = set()
DEF = {'early','wtouch'}

def pst(a, i):
    if STAMPS: a(f"s_memrealtime s[{84+2*i}:{85+2*i}]")
DSEL = {(0,0):1,(0,3):2,(0,5):3,(0,6):5,(1,3):6,(2,1):7,(2,2):8,(3,7):9,(3,6):10,(3,3):11,(4,1):12,(4,2):13,(5,7):14,(5,2):15}
def pflush(a, k):
    if not STAMPS: return
    if "dbg" in EXP:
        L=a.newlabel("df")
        a(f"s_waitcnt lgkmcnt(0)\n s_cmp_lg_u32 {SW}, 4\n s_cbranch_scc1 {L}\n s_and_b32 s58, s2, 0x38\n s_cmp_lg_u32 s58, 0\n s_cbranch_scc1 {L}\n s_mov_b64 exec, 1")
        for (kk,i),w in DSEL.items():
            if kk!=k: continue
            if w==1: a(f"s_not_b32 s{84+2*i}, s{84+2*i}")
            a(f"v_mov_b32 v254, s{84+2*i}\n v_mov_b32 v255, {4*w}\n buffer_atomic_umax v254, v255, {R_DBG}, 0 offen sc1\n s_nop 1")
        a("s_mov_b64 exec, -1")
        a.label(L)
        for i in range(84,100): a(f"s_mov_b32 s{i}, 0")
        return
    a("s_waitcnt lgkmcnt(0)")
    a(f"""
    s_lshl_b32 s58, s2, 3
    s_add_u32 s58, s58, {SW}
    s_lshl_b32 s58, s58, 5
    s_add_u32 s58, s58, {DBGW + k*65536}
    v_lshlrev_b32 v255, 2, {VL}
    """)
    for i in range(8): a(f"v_writelane_b32 v254, s{84+2*i}, {i}")
    a(f"""
    s_mov_b64 exec, 0xff
    buffer_store_dword v254, v255, {R_WS}, s58 offen
    s_mov_b64 exec, -1
    """)
    for i in range(84,100): a(f"s_mov_b32 s{i}, 0")

def prologue(a):
    a(f"""
    s_cmp_ge_u32 s2, 256
    s_cbranch_scc1 kexit
    s_load_dwordx16 s[40:55], s[0:1], 0
    s_load_dwordx2 s[56:57], s[0:1], 64
    v_and_b32 {VL}, 63, v0
    v_lshrrev_b32 v5, 6, v0
    v_and_b32 {VN}, 15, v0
    v_bfe_u32 {VG}, v0, 4, 2
    v_readfirstlane_b32 {SW}, v5
    v_lshlrev_b32 {VL16}, 4, {VL}
    s_and_b32 {SX}, s2, 7
    s_bfe_u32 {SA}, s2, 0x20003
    s_lshr_b32 {ST}, s2, 5
    s_lshl_b32 {SI}, {SX}, 2
    s_add_u32 {SI}, {SI}, {SA}
    s_mov_b32 s83, 0
    s_mov_b32 s79, 0
    s_mov_b32 s69, 0
    s_mov_b32 s70, 0
    v_mov_b32 v252, 0
    v_mov_b32 v244, 0
    s_and_b32 s60, {SW}, 3
    s_lshr_b32 s61, {SW}, 2
    s_and_b32 s62, {SW}, 1
    s_lshl_b32 s62, s62, 2
    s_bfe_u32 s63, {SW}, 0x10001
    s_and_b32 s72, {ST}, 1
    s_lshl_b32 s72, s72, 2
    s_add_u32 s72, s72, {SX}
    s_and_b32 s72, s72, 7
    s_lshl_b32 s73, {SA}, 3
    s_add_u32 s72, s72, s73
    s_mul_i32 s73, {ST}, 20
    s_add_u32 s73, s73, s72
    s_waitcnt lgkmcnt(0)
    """)
    for srd, src, size in ((8,40,2621440),(32,56,WS_SIZE),(20,48,2457600),(12,42,1314816),(16,44,1314816),(24,50,819200),(28,52,2621440),(36,54,256)):
        a(f"""
        s_mov_b32 s{srd}, s{src}
        s_and_b32 s{srd+1}, s{src+1}, 0xffff
        s_mov_b32 s{srd+2}, {size}
        s_mov_b32 s{srd+3}, 0x20000
        """)

def zero_issue(a):
    L = a.newlabel("zi")
    a(f"""
    s_cmp_lg_u32 s2, 0
    s_cbranch_scc1 {L}
    s_cmp_lg_u32 {SW}, 6
    s_cbranch_scc1 {L}
    v_mov_b32 v8, 0
    v_mov_b32 v9, 0
    v_mov_b32 v10, 0
    v_mov_b32 v11, 0
    s_mov_b32 s42, {CNT0}
    v_lshlrev_b32 v12, 8, {VL}
    buffer_store_dword v8, v12, {R_WS}, s42 offen sc1
    s_mov_b32 s42, {CNT0+16384}
    buffer_store_dword v8, v12, {R_WS}, s42 offen sc1
    """)
    a.label(L)

def zero_signal(a):
    L = a.newlabel("zs")
    a(f"""
    s_cmp_lg_u32 s2, 0
    s_cbranch_scc1 {L}
    s_cmp_lg_u32 {SW}, 6
    s_cbranch_scc1 {L}
    s_waitcnt vmcnt(0)
    v_mov_b32 v254, 1
    v_mov_b32 v255, 0
    s_mov_b64 exec, 1
    buffer_store_dword v254, v255, {R_DBG}, 0 offen sc1
    s_mov_b64 exec, -1
    {L}:
    """)

def zfill(a, base, nchunks, rounds, zr):
    for k in range(4): a(f"v_mov_b32 v{zr+k}, 0")
    a(f"""
    s_lshl_b32 s40, {SW}, 8
    s_add_u32 s40, s40, s2
    s_lshl_b32 s41, s40, 10
    s_add_u32 s41, s41, {base}
    """)
    L=a.newlabel("zf")
    for i in range(rounds):
        if (i+1)*2048>nchunks: a(f"s_cmp_ge_u32 s40, {nchunks-i*2048}\n s_cbranch_scc1 {L}")
        a(f"buffer_store_dwordx4 {v(zr,4)}, {VL16}, {R_WS}, s41 offen sc1")
        if i<rounds-1: a(f"s_add_u32 s41, s41, {2048*1024}")
    a.label(L)

SPIN = 40000
def retry_check(a, Lfail_tag, Lback, Ldone, tag):
    a(f"""
    s_cmp_lg_u32 s83, 0
    s_cbranch_scc1 {Ldone}
    {'s_sleep 4' if 'sleep' in EXP else ''}
    s_sub_u32 s58, s58, 1
    s_cmp_lg_u32 s58, 0
    s_cbranch_scc1 {Lback}
    s_mov_b32 s83, {tag}
    v_mov_b32 v254, {tag}
    v_mov_b32 v255, 16
    buffer_store_dword v254, v255, {R_DBG}, 0 offen
    s_branch {Ldone}
    """)

def poll(a, srd, soff, vaddr, target, tag):
    Lp=a.newlabel("poll"); Ld=a.newlabel("polld")
    a(f"""
    s_mov_b32 s58, {SPIN}
    s_cmp_lg_u32 s83, 0
    s_cbranch_scc1 {Ld}
    {Lp}:
    buffer_load_dword v254, {vaddr}, {srd}, {soff} offen sc1
    s_waitcnt vmcnt(0)
    v_cmp_gt_u32 vcc, {target}, v254
    s_cmp_eq_u64 vcc, 0
    s_cbranch_scc1 {Ld}
    s_sub_u32 s58, s58, 1
    s_cmp_lg_u32 s58, 0
    s_cbranch_scc1 {Lp}
    s_mov_b32 s83, {tag}
    v_mov_b32 v254, {tag}
    v_mov_b32 v255, 16
    buffer_store_dword v254, v255, {R_DBG}, 0 offen
    {Ld}:
    """)

def init_probe(a):
    L=a.newlabel("ip")
    a(f"""
    s_cmp_lg_u32 {SW}, 6
    s_cbranch_scc1 {L}
    v_mov_b32 v255, 0
    buffer_load_dword v253, v255, {R_DBG}, 0 offen sc1
    {L}:
    """)

def init_wait(a):
    L=a.newlabel("iw")
    a(f"""
    v_cmp_gt_u32 vcc, 1, v253
    s_cmp_eq_u64 vcc, 0
    s_cbranch_scc1 {L}
    v_mov_b32 v255, 0
    """)
    poll(a, R_DBG, 0, "v255", 1, 100)
    a.label(L)

def drain(a): a("s_waitcnt vmcnt(0) lgkmcnt(0)\n s_barrier")

def arrive(a, beta):
    L=a.newlabel("arr")
    a(f"""
    s_cmp_lg_u32 {SW}, 6
    s_cbranch_scc1 {L}
    s_and_b32 s59, s2, 15
    s_lshl_b32 s59, s59, 8
    s_add_u32 s59, s59, {CNTB(beta)}
    v_lshlrev_b32 v255, 12, {VL}
    v_mov_b32 v254, 1
    s_mov_b64 exec, 15
    buffer_atomic_add v254, v255, {R_WS}, s59 offen sc1
    s_mov_b64 exec, -1
    {L}:
    """)

def bar_target(a, beta):
    lo = 4 if beta in (3,5) else 12
    a(f"v_cmp_gt_u32 vcc, 8, {VN}\n v_mov_b32 v253, {lo}\n v_cndmask_b32 v253, 8, v253, vcc")

def wait(a, beta, bar=True, target=16):
    L=a.newlabel("wt")
    a(f"""
    s_cmp_lg_u32 {SW}, 7
    s_cbranch_scc1 {L}
    s_and_b32 s59, s2, 3
    s_lshl_b32 s59, s59, 12
    s_add_u32 s59, s59, {CNTB(beta)}
    v_lshlrev_b32 v255, 8, {VN}
    """)
    if beta in (2,3,4,5):
        bar_target(a, beta); target="v253"
    poll(a, R_WS, "s59", "v255", target, beta+1)
    a.label(L)
    if bar: a("s_barrier")

def larrive(a, soff):
    a(f"""
    v_mov_b32 v255, 0
    v_mov_b32 v254, 1
    s_mov_b64 exec, 1
    buffer_atomic_add v254, v255, {R_WS}, {soff} offen sc1
    s_mov_b64 exec, -1
    """)

FT = 0
AL = 51200
RS = 102400
VARL = 147456
def gen_ftile(a, selector=False, mid=None):
    Lp=a.newlabel("ft")
    a(f"s_mov_b32 s40, {SW}")
    if not selector:
        a(f"""
        v_and_b32 v8, 1, {VN}
        v_cvt_f32_u32 v8, v8
        v_mul_f32 v8, 0.25, v8
        v_lshrrev_b32 v9, 1, {VN}
        s_mul_i32 s44, {ST}, 40
        s_add_u32 s44, s44, 1
        v_add_u32 v9, s44, v9
        v_lshlrev_b32 v10, 3, {VG}
        s_mov_b32 s45, {f2u(1.0/640)}
        v_mov_b32 v28, 0.125
        v_sub_f32 v29, 0.5, v8
        v_sub_f32 v29, v29, v8
        """)
    else:
        a(f"""
        v_lshrrev_b32 v9, 2, {VN}
        v_mul_u32_u24 v9, 20, v9
        v_and_b32 v8, 3, {VN}
        v_add_u32 v9, v9, v8
        s_and_b32 s44, {ST}, 3
        s_mul_i32 s44, s44, 80
        v_add_u32 v9, s44, v9
        v_lshlrev_b32 v10, 3, {VG}
        v_sub_u32 v9, v9, v10
        v_mov_b32 v28, 0x3f80
        v_mov_b32 v29, 0x3f800000
        """)
    a.label(Lp)
    a(f"""
    s_mul_i32 s41, s40, 52
    s_lshr_b32 s41, s41, 8
    s_mul_i32 s42, s41, 5
    s_sub_u32 s42, s40, s42
    s_lshl_b32 s43, s40, 10
    v_add_u32 v30, s43, {VL16}
    """)
    if not selector:
        a(f"""
        s_lshl_b32 s42, s42, 3
        s_lshl_b32 s41, s41, 5
        v_add_u32 v11, s42, v9
        v_add_u32 v12, s41, v10
        v_cmp_eq_u32 vcc, 0x140, v11
        v_cvt_f32_u32 v13, v11
        v_cvt_f32_u32 v12, v12
        v_mul_f32 v13, s45, v13
        v_cndmask_b32 v14, v8, v28, vcc
        v_cndmask_b32 v13, v13, v29, vcc
        v_fma_f32 v16, v12, v13, v14
        v_cos_f32 v15, v13
        v_add_f32 v17, v16, v13
        v_cos_f32 v16, v16
        v_cos_f32 v17, v17
        v_add_f32 v15, v15, v15
        """)
        for i in range(2,8): a(f"v_fma_f32 v{16+i}, v15, v{15+i}, -v{14+i}")
        for i in range(4): a(f"v_cvt_pk_bf16_f32 v{24+i}, v{16+2*i}, v{17+2*i}")
    else:
        a(f"""
        s_lshl_b32 s42, s42, 2
        s_lshl_b32 s41, s41, 5
        s_sub_u32 s42, s42, s41
        v_add_u32 v11, s42, v9
        """)
        for q in range(4):
            a(f"""
            v_cmp_eq_u32 vcc, {2*q}, v11
            v_cndmask_b32 v{24+q}, 0, v28, vcc
            v_cmp_eq_u32 vcc, {2*q+1}, v11
            v_cndmask_b32 v{24+q}, v{24+q}, v29, vcc
            """)
    a(f"""
    ds_write_b128 v30, v[24:27] offset:{FT}
    s_add_u32 s40, s40, 8
    s_cmp_lt_u32 s40, 50
    s_cbranch_scc1 {Lp}
    """)

def l2_touch(a):
    L1=a.newlabel("tc1"); L2=a.newlabel("tc2"); L3=a.newlabel("tc3"); L4=a.newlabel("tc4")
    a(f"""
    s_cmp_ge_u32 {SW}, 4
    s_cbranch_scc1 {L3}
    v_lshlrev_b32 v8, 7, {VL}
    s_cmp_eq_u32 {SW}, 3
    s_cbranch_scc1 {L4}
    s_cmp_eq_u32 {SW}, {99 if 'wtouch' not in EXP else 2}
    s_cbranch_scc0 {L2}
    s_mul_i32 s40, s2, {41*128}
    v_min_u32 v9, {40*128}, v8
    buffer_load_dword v254, v9, {R_WR}, s40 offen
    buffer_load_dword v254, v9, {R_WI}, s40 offen
    s_branch {L2}
    {L4}:
    s_mul_i32 s40, s2, 3200
    v_min_u32 v9, {24*128}, v8
    buffer_load_dword v254, v9, {R_WO}, s40 offen
    s_branch {L2}
    {L3}:
    s_and_b32 s40, {SW}, 1
    s_lshl_b32 s40, s40, 6
    v_add_u32 v8, s40, {VL}
    v_min_u32 v8, 79, v8
    s_cmp_ge_u32 {SW}, 6
    s_cbranch_scc1 {L1}
    v_mul_u32_u24 v9, 205, v8
    v_lshrrev_b32 v9, 11, v9
    v_mul_u32_u24 v10, 10, v9
    v_sub_u32 v10, v8, v10            ; line
    v_and_b32 v11, 3, v9              ; s2&3
    v_lshrrev_b32 v9, 2, v9
    s_lshl_b32 s40, {SA}, 4
    s_lshl_b32 s41, {ST}, 1
    s_add_u32 s40, s40, s41
    v_add_u32 v9, s40, v9             ; s1
    v_lshl_add_u32 v9, v9, 5, v11
    s_lshl_b32 s40, {SX}, 2
    v_add_u32 v9, s40, v9
    v_mul_u32_u24 v9, 1280, v9
    v_lshl_add_u32 v9, v10, 7, v9
    buffer_load_dword v254, v9, {R_X}, 0 offen
    s_branch {L2}
    {L1}:
    s_mul_i32 s40, {ST}, 80
    v_add_u32 v8, s40, v8
    v_mul_u32_u24 v8, 3840, v8
    s_lshl_b32 s40, {SI}, 7
    s_cmp_ge_u32 {SI}, 30
    s_cselect_b32 s40, {OOB}, s40
    buffer_load_dword v254, v8, {R_WQKV}, s40 offen
    {L2}:
    """)

class LQ:
    def __init__(s,a): s.a=a; s.q=[]
    def op(s,text,tag): s.a(text); s.q.append(tag)
    def need(s,*tags):
        idx=[i for i,t in enumerate(s.q) if t in tags]
        if not idx: return
        n=len(s.q)-1-max(idx)
        s.a(f"s_waitcnt lgkmcnt({min(n,15)})")
        s.q=s.q[len(s.q)-min(n,15):] if n else []

AC = 24
SB = 44
PF = 84
WQR = 124
def g640_core(a, swapped, vbase, wait_priv=None):
    def rd(j):
        for nt in range(5):
            a(f"ds_read_b128 {v(SB+20*(j&1)+4*nt,4)}, {vbase} offset:{(j*5+nt)*1024}")
    rd(0)
    for j in range(10):
        if j<9: rd(j+1)
        if wait_priv: wait_priv(j)
        a(f"s_waitcnt lgkmcnt({5 if j<9 else 0})")
        for nt in range(5):
            p=v(PF+4*j,4); s=v(SB+20*(j&1)+4*nt,4); d=v(AC+4*nt,4)
            c = d if j else "0"
            if swapped: a(f"{M16} {d}, {s}, {p}, {c}")
            else:       a(f"{M16} {d}, {p}, {s}, {c}")

def xe_prep(a, fraglin, s_res=None, sign=None):
    a(f"""
    v_lshrrev_b32 v10, 3, {VL}
    v_and_b32 v11, 7, {VL}
    s_lshl_b32 s42, s60, 3
    """)
    if sign: a(f"v_and_b32 {sign}, 2, v10\n v_cvt_f32_u32 {sign}, {sign}\n v_subrev_f32 {sign}, 1.0, {sign}")
    if fraglin:
        a(f"""
        v_lshrrev_b32 v9, 1, v11
        v_lshlrev_b32 v9, 8, v9
        v_lshl_add_u32 v9, v10, 4, v9
        v_and_b32 v8, 1, v11
        v_lshl_add_u32 v9, v8, 3, v9
        s_mul_i32 s43, s61, 5120
        s_lshl_b32 s44, s63, 10
        s_add_u32 s43, s43, s44
        s_lshl_b32 s44, s62, 5
        s_add_u32 s43, s43, s44
        v_add_u32 v9, s43, v9
        """)
    else:
        a(f"""
        s_mul_i32 s43, s61, 40960
        s_lshl_b32 s44, s60, 9
        s_add_u32 s43, s43, s44
        v_lshlrev_b32 v9, 3, {VL}
        v_add_u32 v9, s43, v9
        """)
    a(f"""
    v_xor_b32 v11, v11, v10
    v_lshlrev_b32 v11, 4, v11
    v_lshl_add_u32 v10, v10, 7, v11
    s_mul_i32 s43, s61, 10240
    s_lshl_b32 s44, s60, 10
    s_add_u32 s43, s43, s44
    s_add_u32 s43, s43, {RS}
    v_add_u32 v10, s43, v10
    v_lshlrev_b32 v8, 1, {VG}
    s_lshr_b32 s44, s62, 2
    v_add_u32 v8, s44, v8
    v_and_b32 v11, 7, {VN}
    v_xor_b32 v8, v8, v11
    v_lshlrev_b32 v8, 4, v8
    v_lshl_add_u32 v8, {VN}, 7, v8
    s_mul_i32 s43, s61, 20480
    s_mul_i32 s44, s63, 10240
    s_add_u32 s43, s43, s44
    s_add_u32 s43, s43, {RS}
    v_add_u32 v8, s43, v8
    """)
    if s_res:
        a(f"""
        s_add_u32 s46, {s_res}, 4096
        s_cmp_ge_u32 s60, 2
        s_cselect_b32 s46, {OOB}, s46
        buffer_load_dwordx2 v[12:13], v9, {R_WS}, {s_res} offen sc1
        buffer_load_dwordx2 v[14:15], v9, {R_WS}, {s_res} offen offset:2048 sc1
        buffer_load_dwordx2 v[16:17], v9, {R_WS}, s46 offen sc1
        """)

def xtype_epilogue(a, s_dst, res=False, s_var=None, vm0=None, vm1=None, pre_bar=None, AC=AC, T=SB, extra_write=None, extra_work=None):
    for nt in range(5): a(f"ds_write_b128 v8, {v(AC+4*nt,4)} offset:{nt*2048}")
    if s_var:
        a(f"""
        """)
    if extra_write: extra_write()
    a(f"""
    s_add_u32 s46, {s_dst}, 4096
    s_cmp_ge_u32 s60, 2
    s_cselect_b32 s46, {OOB}, s46
    s_cselect_b32 s47, 0, 1.0
    """)
    if res:
        a("s_waitcnt vmcnt(0)")
        for q in range(6):
            a(f"v_lshlrev_b32 v{T+24+2*q}, 16, v{12+q}")
            a(f"v_and_b32 v{T+25+2*q}, 0xffff0000, v{12+q}")
    if s_var:
        a(f"""
        v_mov_b32 v18, s47
        s_cmp_eq_u32 {ST}, 7
        s_cselect_b32 s47, 1, 99
        s_cmp_eq_u32 s60, s47
        s_cselect_b32 s47, 7, 99
        v_lshrrev_b32 v19, 3, {VL}
        v_cmp_ne_u32 vcc, s47, v19
        v_cndmask_b32 v18, 0, v18, vcc
        v_and_b32 v20, 7, {VL}
        v_lshlrev_b32 v20, 4, v20
        v_lshl_add_u32 v20, {VG}, 2, v20
        s_lshl_b32 s47, s61, 7
        s_lshl_b32 s45, s60, 8
        s_add_u32 s47, s47, s45
        s_add_u32 s47, s47, {VARL}
        v_add_u32 v20, s47, v20
        """)
    D = ("xe" in EXP and res)
    if D: pst(a,1)
    a("s_waitcnt lgkmcnt(0)")
    if D: pst(a,2)
    a("s_barrier")
    if D: pst(a,3)
    for k in range(3):
        a(f"ds_read_b128 {v(T+4*k,4)}, v10 offset:{4096*k}")
        a(f"ds_read_b128 {v(T+12+4*k,4)}, v10 offset:{20480+4096*k}")
    for k in range(3):
        a(f"s_waitcnt lgkmcnt({4-2*k})")
        for i in range(4*k,4*k+4):
            if vm0: a(f"v_mul_f32 v{T+i}, {vm0}, v{T+i}")
            if vm1: a(f"v_fma_f32 v{T+i}, {vm1}, v{T+12+i}, v{T+i}")
            else: a(f"v_add_f32 v{T+i}, v{T+i}, v{T+12+i}")
            if res: a(f"v_add_f32 v{T+i}, v{T+i}, v{T+24+i}")
        a(f"v_cvt_pk_bf16_f32 v{12+2*k}, v{T+4*k}, v{T+4*k+1}")
        a(f"v_cvt_pk_bf16_f32 v{13+2*k}, v{T+4*k+2}, v{T+4*k+3}")
        if s_var: a(f"v_max_u32 v{12+2*k}, 1, v{12+2*k}\n v_max_u32 v{13+2*k}, 1, v{13+2*k}")
        if k<2: a(f"buffer_store_dwordx2 {v(12+2*k,2)}, v9, {R_WS}, {s_dst} offen offset:{2048*k} sc1")
        else: a(f"buffer_store_dwordx2 {v(12+2*k,2)}, v9, {R_WS}, s46 offen sc1")
    if D: pst(a,4)
    if s_var:
        a("v_cmp_lt_f32 vcc, 0, v18")
        for i in range(4): a(f"v_mul_f32 v{T+i}, v{T+i}, v{T+i}")
        for i in range(4): a(f"v_cndmask_b32 v{T+8+i}, 0, v{T+8+i}, vcc")
        for i in range(4): a(f"v_fmac_f32 v{T+i}, v{T+4+i}, v{T+4+i}")
        for i in range(4): a(f"v_fmac_f32 v{T+i}, v{T+8+i}, v{T+8+i}")
        a(f"""
        v_permlane32_swap_b32 v{T}, v{T+2}
        v_permlane32_swap_b32 v{T+1}, v{T+3}
        v_add_f32 v{T}, v{T}, v{T+2}
        v_add_f32 v{T+1}, v{T+1}, v{T+3}
        v_permlane16_swap_b32 v{T}, v{T+1}
        v_add_f32 v{T}, v{T}, v{T+1}
        v_add_f32_dpp v{T}, v{T}, v{T} row_ror:8 row_mask:0xf bank_mask:0xf
        ds_write_b32 v20, v{T}
        """)
        Ls=a.newlabel("xv")
        if pre_bar: pre_bar()
        a(f"""
        v_lshlrev_b32 v18, 3, {VL}
        v_add_u32 v18, {VARL}, v18
        v_lshlrev_b32 v11, 2, {VL}
        s_lshl_b32 s47, {ST}, 12
        s_lshl_b32 s46, {SI}, 7
        s_add_u32 s47, s47, s46
        s_add_u32 s47, s47, {s_var}
        s_waitcnt lgkmcnt(0)
        s_barrier
        s_cmp_lg_u32 {SW}, 6
        s_cbranch_scc1 {Ls}
        ds_read_b64 {v(T,2)}, v18
        ds_read_b64 {v(T+2,2)}, v18 offset:256
        ds_read_b64 {v(T+4,2)}, v18 offset:512
        ds_read_b64 {v(T+6,2)}, v18 offset:768
        s_waitcnt lgkmcnt(0)
        v_add_f32 v{T}, v{T}, v{T+2}
        v_add_f32 v{T+1}, v{T+1}, v{T+3}
        v_add_f32 v{T+4}, v{T+4}, v{T+6}
        v_add_f32 v{T+5}, v{T+5}, v{T+7}
        v_add_f32 v{T}, v{T}, v{T+4}
        v_add_f32 v{T+1}, v{T+1}, v{T+5}
        v_cvt_pk_bf16_f32 v10, v{T}, v{T+1}
        v_max_u32 v10, 1, v10
        s_mov_b32 exec_hi, 0
        buffer_store_dword v10, v11, {R_WS}, s47 offen sc1
        s_mov_b32 exec_hi, -1
        {Ls}:
        """)
    if extra_work: extra_work()

def mu_pos(a, dst, s_a, tmp, src=VN):
    a(f"""
    v_lshrrev_b32 {tmp}, 2, {src}
    v_and_b32 {dst}, 3, {src}
    v_lshl_add_u32 {dst}, {tmp}, 3, {dst}
    v_add_u32 {dst}, {s_a}, {dst}
    """)

def vsign(a, dst):
    a(f"""
    v_and_b32 {dst}, 2, {VN}
    v_cvt_f32_u32 {dst}, {dst}
    v_subrev_f32 {dst}, 1.0, {dst}
    """)

def rows_dma(a, srd, rowfn, defer=False):
    a(f"""
    v_lshrrev_b32 v8, 3, {VL}
    v_add_u32 v9, 8, v8
    """)
    rowfn("v6","v8"); rowfn("v7","v9")
    a(f"""
    s_movk_i32 s41, 1280
    v_mul_lo_u32 v6, v6, s41
    v_mul_lo_u32 v7, v7, s41
    v_and_b32 v9, 6, v8
    v_and_b32 v10, 7, {VL}
    v_xor_b32 v9, v9, v10
    v_lshl_add_u32 v6, v9, 4, v6
    v_lshl_add_u32 v7, v9, 4, v7
    s_mul_i32 s52, s61, 640
    s_mul_i32 s53, {SW}, 10240
    s_add_u32 s53, s53, {AL}
    """)
    def ch(c):
        for hf in range(2):
            a(f"s_add_u32 m0, s53, {2048*c+1024*hf-128*c}")
            a(f"buffer_load_dwordx4 v{6+hf}, {srd}, s52 offen offset:{128*c} lds")
    if defer: return ch
    for c in range(5): ch(c)

def rows_read(a, later_vm):
    a(f"""
    v_and_b32 v6, 6, {VN}
    v_xor_b32 v6, v6, {VG}
    v_lshlrev_b32 v6, 4, v6
    v_lshl_add_u32 v6, {VN}, 7, v6
    s_mul_i32 s41, {SW}, 10240
    s_add_u32 s41, s41, {AL}
    v_add_u32 v6, s41, v6
    v_xor_b32 v7, 64, v6
    s_waitcnt vmcnt({later_vm})
    """)
    for j in range(10):
        a(f"ds_read_b128 {v(PF+4*j,4)}, v{6+(j&1)} offset:{2048*(j>>1)}")

def tok_row(a):
    def fn(dst, m):
        a(f"""
        s_lshl_b32 s42, {SA}, 1
        s_add_u32 s42, s42, s63
        s_lshl_b32 s42, s42, 3
        s_add_u32 s42, s42, s62
        s_lshl_b32 s42, s42, 5
        s_lshl_b32 s43, {SX}, 2
        s_add_u32 s42, s42, s43
        v_and_b32 {dst}, 3, {m}
        v_lshlrev_b32 {dst}, 5, {dst}
        v_lshrrev_b32 v11, 2, {m}
        v_add3_u32 {dst}, {dst}, v11, s42
        """)
    return fn

def xtile_base(a, dst):
    a(f"""
    s_mul_i32 {dst}, {SI}, 81920
    s_mul_i32 s40, {ST}, 5120
    s_add_u32 {dst}, {dst}, s40
    """)

def wo_job(a, selector):
    def fn(dst, m):
        a(f"""
        s_lshl_b32 s40, s66, 1
        s_add_u32 s40, s40, s63
        s_lshl_b32 s40, s40, 5
        s_add_u32 s40, s40, s62
        """)
        mu_pos(a, dst, "s40", "v11", m)
    rows_dma(a, R_WO, fn)
    if selector: gen_ftile(a, True)
    xe_prep(a, True, sign="v22")
    rows_read(a, 0)
    a("s_waitcnt lgkmcnt(0)\n s_barrier")
    g640_core(a, False, VL16)
    a(f"""
    s_mul_i32 s64, {ST}, 102400
    s_mul_i32 s65, s66, 10240
    s_add_u32 s64, s64, s65
    s_add_u32 s64, s64, {WOR if selector else WOF}
    """)
    if selector:
        a(f"""
        s_cmp_ge_u32 {ST}, 4
        s_cselect_b32 s40, 0, 1.0
        s_cselect_b32 s41, 1.0, 0
        v_mov_b32 v22, s40
        v_mov_b32 v23, s41
        """)
        xtype_epilogue(a, "s64", vm0="v22", vm1="v23")
    else:
        xtype_epilogue(a, "s64", vm1="v22")

WQL = AL
def wq_loads(a):
    a(f"""
    v_lshrrev_b32 v6, 3, {VL}
    v_and_b32 v7, 2, v6
    v_and_b32 v8, 7, {VL}
    v_xor_b32 v7, v7, v8
    s_movk_i32 s41, 3840
    v_mul_lo_u32 v6, v6, s41
    v_lshl_add_u32 v6, v7, 4, v6
    v_xor_b32 v7, 64, v6
    s_mul_i32 s40, {SW}, {80*3840}
    s_lshl_b32 s41, {SI}, 7
    s_add_u32 s40, s40, s41
    s_cmp_ge_u32 {SI}, 30
    s_cselect_b32 s40, {OOB}, s40
    """)
    for j in range(10):
        a(f"buffer_load_dwordx4 {v(WQR+4*j,4)}, v{6+(j&1)}, {R_WQKV}, s40 offen")
        if j<9: a(f"s_add_u32 s40, s40, {8*3840}")

def wq_stage(a):
    a(f"""
    s_mul_i32 s41, {SW}, 10240
    s_add_u32 s41, s41, {WQL}
    v_add_u32 v6, s41, {VL16}
    """)
    for j in range(10): a(f"ds_write_b128 v6, {v(WQR+4*j,4)} offset:{1024*j}")

ACX, ACQ, SBM = 12, 32, 52
RS2 = 51200
def xq_core(a):
    a(f"""
    v_lshrrev_b32 v7, 2, {VN}
    v_lshl_add_u32 v6, {VG}, 3, v7
    v_lshlrev_b32 v6, 7, v6
    v_lshrrev_b32 v7, 1, v7
    v_and_b32 v11, 1, {VG}
    v_lshl_add_u32 v7, v11, 1, v7
    v_xor_b32 v7, s60, v7
    v_lshl_add_u32 v6, v7, 5, v6
    v_and_b32 v7, 3, {VN}
    v_lshl_add_u32 v7, v7, 3, v6
    s_mul_i32 s40, s61, 40960
    s_add_u32 s40, s40, {WQL}
    v_add_u32 v7, s40, v7
    s_waitcnt lgkmcnt(0)
    s_barrier
    """)
    q=LQ(a)
    def rq(j):
        q.op(f"ds_read_b64_tr_b16 {v(WQR+4*j,2)}, v7 offset:{4096*j}", ("Q",j))
        q.op(f"ds_read_b64_tr_b16 {v(WQR+4*j+2,2)}, v7 offset:{4096*j+512}", ("Q",j))
    def rf(f): q.op(f"ds_read_b128 {v(SBM+4*(f%8),4)}, {VL16} offset:{f*1024}", ("F",f))
    for f in range(4): rf(f)
    rq(0)
    for f in range(4,7): rf(f)
    rq(1)
    for f in range(50):
        j,nt=divmod(f,5)
        q.need(("F",f))
        sb=v(SBM+4*(f%8),4)
        a(f"{M16} {v(ACX+4*nt,4)}, {v(PF+4*j,4)}, {sb}, {v(ACX+4*nt,4) if j else 0}")
        if f+7<50: rf(f+7)
        q.need(("Q",j))
        a(f"{M16} {v(ACQ+4*nt,4)}, {sb}, {v(WQR+4*j,4)}, {v(ACQ+4*nt,4) if j else 0}")
        if f<16 and f%2==0 and 2+f//2<10: rq(2+f//2)
        if f==24:
            a("s_waitcnt vmcnt(0)")
            L=a.newlabel("bz")
            a(f"s_cmp_lg_u32 {SW}, 6\n s_cbranch_scc1 {L}")
            init_wait(a)
            a.label(L)
            a("s_barrier")
            arrive(a, 0)
            zfill(a, KVP, (ZCEND-KVP)//1024, 1, PF)

def wq_write(a):
    L1=a.newlabel("wq1")
    a(f"""
    s_mul_i32 s40, s60, 5120
    s_add_u32 s40, s40, {RS2}
    v_add_u32 v7, s40, {VL16}
    s_cmp_eq_u32 s61, 0
    s_cbranch_scc1 {L1}
    """)
    for nt in range(5): a(f"ds_write_b128 v7, {v(ACQ+4*nt,4)} offset:{nt*1024}")
    a.label(L1)

def wq_fin(a):
    L2=a.newlabel("wq2"); LZ=a.newlabel("wqz")
    AC=ACQ; SB=WQR
    a(f"""
    s_cmp_ge_u32 {SI}, 30
    s_cbranch_scc1 {L2}
    s_cmp_lg_u32 s61, 0
    s_cbranch_scc1 {L2}
    """)
    for nt in range(5): a(f"ds_read_b128 {v(SB+4*nt,4)}, v7 offset:{nt*1024}")
    a(f"""
    v_lshrrev_b32 v12, 1, {VG}
    v_mul_u32_u24 v10, 40960, v12
    v_lshl_add_u32 v10, {VN}, 4, v10
    v_and_b32 v12, 1, {VG}
    v_lshl_add_u32 v10, v12, 3, v10
    s_mul_i32 s40, {ST}, {5*81920}
    s_lshl_b32 s41, {SI}, 10
    s_add_u32 s40, s40, s41
    s_lshl_b32 s41, s60, 8
    s_add_u32 s40, s40, s41
    s_add_u32 s40, s40, {WQF}
    s_mov_b32 s42, {f2u(2.0/640)}
    v_mov_b32 v12, s42
    s_cmp_eq_u32 {ST}, 7
    s_cselect_b32 s43, 3, 99
    v_cmp_ne_u32 vcc, s43, {VG}
    v_cndmask_b32 v12, 0, v12, vcc
    s_mul_i32 s44, {ST}, 5
    s_waitcnt lgkmcnt(0)
    """)
    for nt in range(5):
        if nt: a("s_add_u32 s40, s40, 81920")
        for i in range(4):
            op = "v_sub_f32" if i<2 else "v_add_f32"
            a(f"{op} v{16+i}, v{AC+4*nt+i}, v{SB+4*nt+i}")
            a(f"v_mul_f32 v{16+i}, {'v12' if (nt==4 and i==3) else 's42'}, v{16+i}")
        a(f"v_cvt_pk_bf16_f32 v{20+2*(nt&1)}, v16, v17")
        a(f"v_cvt_pk_bf16_f32 v{21+2*(nt&1)}, v18, v19")
        a(f"buffer_store_dwordx2 {v(20+2*(nt&1),2)}, v10, {R_WS}, s40 offen sc1")
    a.label(L2)

def gcol_job(a):
    Lp=a.newlabel("gc")
    a(f"""
    s_sub_u32 s42, s66, 10
    s_lshl_b32 s42, s42, 3
    s_add_u32 s42, s42, {ST}
    s_lshl_b32 s42, s42, 3
    s_add_u32 s42, s42, {SW}
    v_lshl_add_u32 v10, {VG}, 2, 1
    v_mul_u32_u24 v9, 40960, {VG}
    v_lshl_add_u32 v9, {VN}, 4, v9
    v_mov_b32 v29, 0x3f353f35
    {Lp}:
    s_mul_i32 s40, s42, 1639
    s_lshr_b32 s40, s40, 16           ; kstep
    s_mul_i32 s41, s40, 40
    s_sub_u32 s41, s42, s41           ; dtile
    s_lshl_b32 s43, s41, 4
    v_add_u32 v8, s43, {VN}
    v_cvt_f32_u32 v8, v8
    v_mul_f32 v8, {f2u(1/640)}, v8
    s_lshl_b32 s43, s40, 4
    v_add_u32 v11, s43, v10
    v_cvt_f32_u32 v12, v11
    v_cmp_eq_u32 vcc, 0x13d, v11
    s_mul_i32 s43, s40, {4*40960}
    s_lshl_b32 s41, s41, 8
    s_add_u32 s43, s43, s41
    s_add_u32 s43, s43, {WQF+1920*16}
    v_mul_f32 v16, v12, v8
    v_fract_f32 v16, v16
    v_add_f32 v17, v16, v8
    v_fma_f32 v18, 2.0, v8, v16
    v_add_f32 v19, v18, v8
    """)
    for i in range(4): a(f"v_sin_f32 v{20+i}, -v{16+i}")
    for i in range(4): a(f"v_cos_f32 v{16+i}, v{16+i}")
    for i in range(4): a(f"v_cvt_pk_bf16_f32 v{32+i}, v{16+i}, v{20+i}")
    a(f"""
    v_and_b32 v28, 0x8000, v35
    v_or_b32 v28, v28, v29
    v_cndmask_b32 v35, v35, v28, vcc
    buffer_store_dwordx4 v[32:35], v9, {R_WS}, s43 offen sc1
    s_add_u32 s42, s42, 128
    s_cmp_lt_u32 s42, 800
    s_cbranch_scc1 {Lp}
    """)

WTR = 164
WTX = 84
def wt_loads(a):
    L=a.newlabel("wtl")
    a(f"""
    s_cmp_ge_u32 {SW}, 3
    s_cbranch_scc1 {L}
    s_mul_i32 s79, s2, 3
    s_add_u32 s79, s79, {SW}
    s_mul_i32 s69, s79, 5462
    s_lshr_b32 s69, s69, 16           ; j1 = task/12
    s_mul_i32 s40, s69, 12
    s_sub_u32 s70, s79, s40
    v_bfe_u32 v6, {VL}, 3, 1
    v_lshrrev_b32 v7, 4, {VL}
    v_lshl_add_u32 v5, v6, 2, v7
    s_mov_b32 s41, {64*642}
    v_mul_lo_u32 v6, v5, s41
    v_and_b32 v7, 7, {VL}
    v_lshl_add_u32 v6, v7, 4, v6
    s_mul_i32 s40, s69, 642
    s_andn2_b32 s40, s40, 127
    s_lshr_b32 s41, s70, 1
    s_lshl_b32 s41, s41, 7
    s_add_u32 s40, s40, s41
    s_and_b32 s41, s70, 1
    s_mul_i32 s41, s41, {16*64*642}
    s_add_u32 s40, s40, s41
    s_add_u32 s41, s40, {8*64*642}
    buffer_load_dwordx4 {v(WTX,4)}, v6, {R_WR}, s40 offen
    buffer_load_dwordx4 {v(WTX+4,4)}, v6, {R_WI}, s40 offen
    buffer_load_dwordx4 {v(WTX+8,4)}, v6, {R_WR}, s41 offen
    buffer_load_dwordx4 {v(WTX+12,4)}, v6, {R_WI}, s41 offen
    {L}:
    """)

def wor_loads(a):
    L=a.newlabel("wol")
    a(f"""
    s_sub_u32 s67, s72, 20
    s_lshl_b32 s67, s67, 3
    s_add_u32 s67, s67, {ST}
    s_lshl_b32 s67, s67, 3
    s_add_u32 s67, s67, {SW}
    v_and_b32 v7, 7, {VL}
    ; WoR: task = (R16 = task/10 (16 rows), lam = task%10): rows hd = 16R + 8*(rho&1) + 4*ld + (rho>>1)
    s_mul_i32 s42, s67, 6554
    s_lshr_b32 s42, s42, 16
    s_mul_i32 s43, s42, 10
    s_sub_u32 s43, s67, s43
    v_bfe_u32 v6, {VL}, 3, 1
    v_lshrrev_b32 v8, 4, {VL}
    v_lshl_add_u32 v6, v6, 3, v8
    v_mul_u32_u24 v6, 1280, v6
    v_lshl_add_u32 v6, v7, 4, v6
    s_mul_i32 s40, s42, {16*1280}
    s_lshl_b32 s41, s43, 7
    s_add_u32 s40, s40, s41
    s_add_u32 s41, s40, {4*1280}
    buffer_load_dwordx4 {v(WTR+16,4)}, v6, {R_WO}, s40 offen
    buffer_load_dwordx4 {v(WTR+20,4)}, v6, {R_WO}, s41 offen
    {L}:
    """)

def side_job(a, wor, vm):
    L=a.newlabel("wtskip"); L2=a.newlabel("wos")
    if not wor: a(f"s_cmp_ge_u32 {SW}, 3\n s_cbranch_scc1 {L}")
    a(f"""
    v_and_b32 v6, 3, {VN}
    v_cmp_eq_u32 vcc, v6, {VG}
    v_lshrrev_b32 v6, 2, {VN}
    v_cndmask_b32 v6, 7, v6, vcc
    v_mov_b32 v28, 0x3f80
    v_mov_b32 v29, 0x3f800000
    v_cmp_eq_u32 vcc, 0, v6
    v_cndmask_b32 v8, 0, v28, vcc
    v_cmp_eq_u32 vcc, 1, v6
    v_cndmask_b32 v8, v8, v29, vcc
    v_cmp_eq_u32 vcc, 2, v6
    v_cndmask_b32 v9, 0, v28, vcc
    v_cmp_eq_u32 vcc, 3, v6
    v_cndmask_b32 v9, v9, v29, vcc
    v_mov_b32 v10, 0
    v_mov_b32 v11, 0
    v_mov_b32 v12, 0
    v_mov_b32 v13, 0
    v_mov_b32 v14, v8
    v_mov_b32 v15, v9
    v_and_b32 v7, 7, {VN}
    v_lshrrev_b32 v17, 3, {VN}
    s_lshr_b32 s40, s70, 1
    s_lshl_b32 s40, s40, 6
    s_sub_u32 s40, s40, s69
    s_sub_u32 s40, s40, 1
    v_lshl_add_u32 v18, v7, 3, {VG}
    v_add_u32 v18, s40, v18
    v_add_u32 v19, 4, v18
    v_and_b32 v20, 1, v18
    v_lshlrev_b32 v20, 5, v20
    v_lshl_add_u32 v20, v17, 4, v20
    v_mov_b32 v21, {OOB}
    v_lshrrev_b32 v16, 1, v18
    v_lshl_add_u32 v16, v16, 14, v20
    v_cmp_gt_u32 vcc, 0x140, v18
    v_cndmask_b32 v16, v21, v16, vcc
    v_lshrrev_b32 v22, 1, v19
    v_lshl_add_u32 v22, v22, 14, v20
    v_cmp_gt_u32 vcc, 0x140, v19
    v_cndmask_b32 v22, v21, v22, vcc
    s_lshl_b32 s40, s69, 8
    s_and_b32 s41, s70, 1
    s_lshl_b32 s41, s41, 7
    s_add_u32 s40, s40, s41
    s_add_u32 s40, s40, {WT}
    s_waitcnt vmcnt({vm})
    """)
    for G in range(2):
        if wor: break
        for mf in range(2):
            for ri in range(2):
                a(f"{M16} {v(32+16*G+8*mf+4*ri,4)}, {v(8+4*mf,4)}, {v(WTX+8*G+4*ri,4)}, 0")
    for mf in range(2):
        if not wor: break
        for ld in range(2):
            a(f"{M16} {v(64+8*mf+4*ld,4)}, {v(8+4*mf,4)}, {v(WTR+16+4*ld,4)}, 0")
    for G in range(2):
        if wor: break
        for mf in range(2):
            b=32+16*G+8*mf; d=64+8*G+4*mf
            for i in range(4): a(f"v_cvt_pk_bf16_f32 v{d+i}, v{b+i}, v{b+4+i}")
            a(f"buffer_store_dwordx4 {v(d,4)}, {'v22' if mf else 'v16'}, {R_WS}, s40 offen offset:{64*G} sc1")
    if not wor:
        a.label(L); return
    a(f"""
    s_cmp_ge_u32 s67, 400
    s_cbranch_scc1 {L}
    s_mul_i32 s42, s67, 6554
    s_lshr_b32 s42, s42, 16
    s_mul_i32 s43, s42, 10
    s_sub_u32 s43, s67, s43
    s_lshl_b32 s43, s43, 4
    s_lshr_b32 s40, s42, 1
    s_mul_i32 s40, s40, 5120
    s_and_b32 s42, s42, 1
    s_lshl_b32 s42, s42, 9
    s_add_u32 s40, s40, s42
    s_add_u32 s40, s40, {WOR}
    s_mov_b32 s41, 102400
    v_lshlrev_b32 v18, 8, v17
    v_lshl_add_u32 v18, {VG}, 4, v18
    """)
    for mf in range(2):
        a(f"""
        v_lshl_add_u32 v19, v7, 1, s43
        v_add_u32 v19, {mf}, v19          ; dq
        v_mul_u32_u24 v20, 205, v19
        v_lshrrev_b32 v20, 10, v20        ; dq/5
        v_mul_u32_u24 v21, 5, v20
        v_sub_u32 v19, v19, v21           ; nt
        v_lshrrev_b32 v21, 2, v20         ; t
        v_and_b32 v20, 3, v20
        v_mul_lo_u32 v21, v21, s41
        v_lshl_add_u32 v21, v19, 10, v21
        v_lshl_add_u32 v21, v20, 6, v21
        v_add_u32 v21, v21, v18
        """)
        d=WTR+40+4*mf
        for q in range(4): a(f"v_cvt_pk_bf16_f32 v{d+q}, v{64+8*mf+2*q}, v{65+8*mf+2*q}")
        a(f"buffer_store_dwordx4 {v(d,4)}, v21, {R_WS}, s40 offen sc1")
    a.label(L)

C64, S64, C32, S32 = 164, 180, 196, 204
TW1C, TW1S, TW2C, TW2S = 212, 220, 228, 236
WP = 244
WL = 81920
N64, N32, WRE, WIM, UP, DA = 64, 80, 88, 96, 104, 120
FSC, FRW, FX1 = 102400, 118784, 135168
def ang8(a, base, step, dst):
    a(f"""
    v_mov_b32 v{dst}, {base}
    v_add_f32 v{dst+1}, {base}, {step}
    v_fma_f32 v{dst+2}, 2.0, {step}, {base}
    v_fma_f32 v{dst+4}, 4.0, {step}, {base}
    v_add_f32 v{dst+3}, v{dst+2}, {step}
    v_add_f32 v{dst+5}, v{dst+4}, {step}
    v_fma_f32 v{dst+6}, 2.0, {step}, v{dst+4}
    v_add_f32 v{dst+7}, v{dst+6}, {step}
    """)

def fft_consts(a):
    a("s_mov_b32 s40, 0")
    mu_pos(a, "v6", "s40", "v7")
    a(f"""
    v_cvt_f32_u32 v6, v6
    v_lshlrev_b32 v7, 3, {VG}
    v_cvt_f32_u32 v7, v7
    s_lshl_b32 s40, s63, 5
    v_cvt_f32_u32 v8, s40
    s_xor_b32 s40, s40, 32
    v_cvt_f32_u32 v9, s40
    v_cvt_f32_u32 v10, s62
    """)
    def cs(step, base, c, s):
        a(f"""
        v_cos_f32 v14, {step}
        v_add_f32 v17, {base}, {step}
        v_sin_f32 v24, {base}
        v_cos_f32 v16, {base}
        v_sin_f32 v25, v17
        v_cos_f32 v17, v17
        v_add_f32 v14, v14, v14
        """)
        for i in range(2,8):
            a(f"v_fma_f32 v{24+i}, v14, v{23+i}, -v{22+i}")
            a(f"v_fma_f32 v{16+i}, v14, v{15+i}, -v{14+i}")
        for i in range(4): a(f"v_cvt_pk_bf16_f32 v{s+i}, v{24+2*i}, v{25+2*i}")
        for i in range(4): a(f"v_cvt_pk_bf16_f32 v{c+i}, v{16+2*i}, v{17+2*i}")
    for aa in range(2):
        a(f"v_add_f32 v11, v8, v6")
        if aa: a("v_add_f32 v11, 4.0, v11")
        a(f"v_mul_f32 v12, {f2u(1/64)}, v11")
        for kk in range(2):
            a(f"v_add_f32 v13, v{8+kk}, v7")
            a(f"v_mul_f32 v13, v13, v12")
            o=8*aa+4*kk
            cs("v12","v13",C64+o,S64+o)
        a(f"""
        v_mul_f32 v12, {f2u(1/2048)}, v11
        v_add_f32 v13, v7, v10
        v_mul_f32 v16, v13, v12
        v_add_f32 v17, v16, v12
        v_fma_f32 v18, 2.0, v12, v16
        v_add_f32 v19, v18, v12
        """)
        for i in range(4): a(f"v_sin_f32 v{TW1S+4*aa+i}, v{16+i}")
        for i in range(4): a(f"v_cos_f32 v{TW1C+4*aa+i}, v{16+i}")
        a(f"v_mov_b32 v11, v6")
        if aa: a("v_add_f32 v11, 4.0, v11")
        a(f"""
        v_mul_f32 v12, {f2u(1/32)}, v11
        v_mul_f32 v13, v7, v12
        """)
        cs("v12","v13",C32+4*aa,S32+4*aa)
        a(f"""
        v_mul_f32 v12, {f2u(1/2048)}, v11
        v_add_f32 v13, v7, v10
        v_add_f32 v13, v13, v8
        v_mul_f32 v16, v13, v12
        v_add_f32 v17, v16, v12
        v_fma_f32 v18, 2.0, v12, v16
        v_add_f32 v19, v18, v12
        """)
        for i in range(4): a(f"v_sin_f32 v{TW2S+4*aa+i}, v{16+i}")
        for i in range(4): a(f"v_cos_f32 v{TW2C+4*aa+i}, v{16+i}")
    for i in range(16): a(f"v_mul_f32 v{TW2C+i}, {f2u(1/2048)}, v{TW2C+i}")
    mu_pos(a, "v8", "s62", "v9")
    a(f"""
    s_lshl_b32 s40, s63, 5
    v_add_u32 v8, s40, v8             ; j1
    s_lshl_b32 s40, s61, 1
    v_lshl_add_u32 v9, {VG}, 2, s40
    v_and_b32 v10, 15, v8
    v_xor_b32 v9, v9, v10
    v_lshlrev_b32 v9, 4, v9
    v_lshl_add_u32 v244, v8, 8, v9
    v_add_u32 v244, {WL}, v244
    v_xor_b32 v248, 16, v244
    """)

def fft_prep(a, first):
    mu_pos(a, "v141", "s62", "v140")
    a(f"""
    v_lshrrev_b32 v136, 3, v0
    s_mov_b32 s41, 40960
    v_mul_lo_u32 v136, v136, s41
    v_bfe_u32 v138, v0, 2, 1
    v_mul_u32_u24 v139, 3, v138
    v_xor_b32 v139, v139, {VL}
    v_and_b32 v137, 7, v139
    v_lshl_add_u32 v136, v137, 4, v136
    v_and_b32 v137, 3, v139
    v_lshlrev_b32 v137, 4, v137
    v_lshl_add_u32 v137, v138, 14, v137
    v_lshrrev_b32 v138, 3, v0
    v_lshl_add_u32 v137, v138, 6, v137
    s_lshl_b32 s40, {SW}, 10
    s_lshr_b32 s42, {SW}, 1
    s_lshr_b32 s43, {SW}, 2
    s_xor_b32 s42, s42, s43
    s_lshl_b32 s42, s42, 6
    v_lshlrev_b32 v138, 4, v139
    v_xor_b32 v138, s42, v138
    s_add_u32 s40, s40, {FSC}
    v_add_u32 v138, s40, v138
    v_lshrrev_b32 v141, 2, v141
    s_lshl_b32 s40, s63, 2
    v_add_u32 v140, s40, {VG}
    v_lshl_add_u32 v141, v141, 3, v140
    v_and_b32 v143, 3, {VN}
    v_lshl_add_u32 v139, v141, 3, v143
    v_lshrrev_b32 v144, 2, {VN}
    v_lshrrev_b32 v145, 3, {VN}
    v_xor_b32 v144, v144, v145
    v_lshlrev_b32 v144, 2, v144
    v_xor_b32 v139, v139, v144
    s_lshl_b32 s40, s61, 13
    s_add_u32 s42, s40, {FSC}
    v_lshl_add_u32 v139, v139, 4, s42
    v_xor_b32 v140, 512, v139
    v_mul_lo_u32 v141, v141, s41
    v_lshl_add_u32 v141, v143, 4, v141
    s_lshl_b32 s43, s63, 12
    s_add_u32 s43, s43, s40
    s_add_u32 s43, s43, {FX1}
    s_lshl_b32 s44, s62, 1
    s_add_u32 s45, s44, s43
    v_add_u32 v143, s45, {VL16}
    s_lshl_b32 s45, s62, 9
    s_add_u32 s45, s45, s43
    v_add_u32 v144, s45, {VL16}
    s_lshl_b32 s43, s63, 11
    s_add_u32 s43, s43, s42
    s_add_u32 s45, s44, s43
    v_add_u32 v145, s45, {VL16}
    s_lshl_b32 s45, s62, 10
    s_add_u32 s45, s45, s43
    v_add_u32 v146, s45, {VL16}
    v_xor_b32 v147, 2048, v146
    s_cmp_eq_u32 s73, 159
    s_cselect_b32 s40, 4, 99
    v_and_b32 v148, 4, v0
    v_cmp_ne_u32 vcc, s40, v148
    v_cndmask_b32 v148, 0, -1, vcc
    """)

def fft_prep2(a, first):
    a("s_mov_b32 s41, 0x80008000")
    for i in range(16): a(f"v_xor_b32 v{N64+i}, s41, v{S64+i}")
    for i in range(8): a(f"v_xor_b32 v{N32+i}, s41, v{S32+i}")
    if not first: fft_w_unpack(a)

def fft_w_load(a):
    a(f"""
    s_lshl_b32 s40, s62, 1
    v_add_u32 v8, s40, {VG}
    v_xor_b32 v9, v8, {VN}
    v_lshlrev_b32 v9, 4, v9
    v_lshl_add_u32 v9, {VG}, 8, v9
    v_xor_b32 v10, 64, v9
    s_lshl_b32 s40, s73, 14
    s_lshl_b32 s41, {SW}, 11
    s_add_u32 s40, s40, s41
    s_add_u32 s40, s40, {WT}
    s_add_u32 m0, s41, {WL}
    s_nop 0
    buffer_load_dwordx4 v9, {R_WS}, s40 offen sc1 lds
    buffer_load_dwordx4 v10, {R_WS}, s40 offen offset:1024 sc1 lds
    """)

def fft_w_read(a):
    a(f"ds_read_b128 {v(WP,4)}, v244\n ds_read_b128 {v(WP+4,4)}, v248")

def fft_w_unpack(a):
    for i in range(8):
        a(f"v_lshlrev_b32 v{WRE+i}, 16, v{WP+i}")
        a(f"v_and_b32 v{WIM+i}, 0xffff0000, v{WP+i}")

def cmul(a, xr, xi, cr, ci, outr, outi, conj, n=8):
    for i in range(n):
        a(f"v_mul_f32 v{outr+i}, v{xr+i}, v{cr+i}")
        a(f"v_mul_f32 v{outi+i}, v{xi+i}, v{cr+i}")
    for i in range(n):
        if conj:
            a(f"v_fma_f32 v{outr+i}, -v{xi+i}, v{ci+i}, v{outr+i}")
            a(f"v_fma_f32 v{outi+i}, v{xr+i}, v{ci+i}, v{outi+i}")
        else:
            a(f"v_fma_f32 v{outr+i}, v{xi+i}, v{ci+i}, v{outr+i}")
            a(f"v_fma_f32 v{outi+i}, -v{xr+i}, v{ci+i}, v{outi+i}")

def fft_main(a, xin, xout, var, first):
    DR, DI = DA, DA+8
    a(f"""
    s_lshl_b32 s46, s73, 8
    s_add_u32 s47, s46, {xout}
    s_add_u32 s46, s46, {xin}
    s_mov_b32 s42, {var}
    s_mov_b32 s43, {var+4096}
    s_mov_b32 s44, {var+8192}
    s_mov_b32 s45, {var+12288}
    s_mov_b32 s58, {SPIN}
    """)
    def ldv():
        for k in range(4): a(f"buffer_load_dwordx4 {v(16+4*k,4)}, v137, {R_WS}, s{42+k} offen sc1")
    def ldd():
        a(f"buffer_load_dwordx4 v[48:51], v136, {R_WS}, s46 offen sc1")
        a(f"buffer_load_dwordx4 v[52:55], v136, {R_WS}, s46 offen offset:128 sc1")
    def mn(base,n,t):
        a(f"v_min3_u32 {t}, v{base}, v{base+1}, v{base+2}")
        for k in range(3,n-1,2): a(f"v_min3_u32 {t}, {t}, v{base+k}, v{base+k+1}")
        a(f"v_min_u32 {t}, {t}, v{base+n-1}")
        a(f"v_cmp_eq_u32 vcc, 0, {t}\n s_cmp_lg_u64 vcc, 0")
    fft_prep2(a, first)
    bg = qkv_bload_setup(a, 4 if first else 5)
    a("s_barrier")
    ldv(); ldd()
    ex = 0
    def tick(n=1):
        if "notick" in EXP or first: return
        for _ in range(n):
            if bg: bg.pop(0)()
    RV=a.newlabel("fvr"); BV=a.newlabel("fvb"); RD=a.newlabel("fdr"); BD=a.newlabel("fdb")
    a(f"""
    s_lshl_b32 s41, s61, 7
    s_add_u32 s47, s47, s41
    s_mov_b32 s40, {f2u(2.0/(640*640))}
    v_mov_b32 v8, {f2u(1e-5)}
    s_waitcnt vmcnt({2+ex})
    """)
    mn(16,16,"v9")
    a(f"s_cbranch_scc1 {RV}")
    a.label(BV)
    for q in range(4):
        a(f"v_lshlrev_b32 v{40+2*q}, 16, v{16+q}")
        a(f"v_and_b32 v{41+2*q}, 0xffff0000, v{16+q}")
    for k in range(1,4):
        for q in range(4):
            a(f"v_lshlrev_b32 v{32+2*q}, 16, v{16+4*k+q}")
            a(f"v_and_b32 v{33+2*q}, 0xffff0000, v{16+4*k+q}")
        for i in range(8): a(f"v_add_f32 v{40+i}, v{40+i}, v{32+i}")
    for i in range(8): a(f"v_add_f32_dpp v{40+i}, v{40+i}, v{40+i} row_half_mirror row_mask:0xf bank_mask:0xf")
    for i in range(8): a(f"v_fma_f32 v{40+i}, v{40+i}, s40, v8")
    for i in range(8): a(f"v_rsq_f32 v{40+i}, v{40+i}")
    a(f"s_waitcnt vmcnt({ex})")
    mn(48,8,"v9")
    a(f"s_cbranch_scc1 {RD}")
    a.label(BD)
    def late():
        OK=a.newlabel("fvo")
        a.label(RV); ldv(); a("s_waitcnt vmcnt(0)"); mn(16,16,"v9")
        a(f"s_cbranch_scc0 {OK}")
        retry_check(a, None, RV, BV, 60)
        a.label(OK); ldd()
        a(f"s_branch {BV}")
        a.label(RD); ldd(); a("s_waitcnt vmcnt(0)"); mn(48,8,"v9")
        a(f"s_cbranch_scc0 {BD}")
        retry_check(a, None, RD, BD, 61)
    a.late.append(late)
    for c in range(2):
        a(f"ds_write_b128 v138, {v(48+4*c,4)} offset:{FRW-FSC+8192*c}")
        for q in range(4):
            a(f"v_lshlrev_b32 v{16+2*q}, 16, v{48+4*c+q}")
            a(f"v_and_b32 v{17+2*q}, 0xffff0000, v{48+4*c+q}")
        for i in range(8): a(f"v_mul_f32 v{16+i}, v{16+i}, v{40+i}")
        for q in range(4): a(f"v_cvt_pk_bf16_f32 v{56+4*c+q}, v{16+2*q}, v{17+2*q}")
        if c==1:
            for q in range(4): a(f"v_and_b32 v{60+q}, v{60+q}, v148")
        a(f"ds_write_b128 v138, {v(56+4*c,4)} offset:{8192*c}")
    FD = ("fd" in EXP and not first) or ("fd1" in EXP and first)
    if FD: pflush(a,7); pst(a,0)
    tick()
    a(f"""
    v_xor_b32 v8, 64, v139
    v_xor_b32 v9, 64, v140
    s_waitcnt lgkmcnt(0)
    s_barrier
    ds_read_b128 {v(UP,4)}, v139
    ds_read_b128 {v(UP+4,4)}, v8
    ds_read_b128 {v(UP+8,4)}, v140
    ds_read_b128 {v(UP+12,4)}, v9
    ds_read_b128 v[48:51], v139 offset:{FRW-FSC}
    ds_read_b128 v[52:55], v8 offset:{FRW-FSC}
    """)
    if FD: pst(a,1)
    if first:
        fft_w_read(a); arrive(a, 1)
    tick()
    ur=lambda kk: v(UP+8*kk,4); ui=lambda kk: v(UP+8*kk+4,4)
    for kk in range(2):
        a(f"s_waitcnt lgkmcnt({4-2*kk+(2 if first else 0)})")
        for aa in range(2):
            dr=v(DR+4*aa,4); di=v(DI+4*aa,4); o=8*aa+4*kk
            a(f"{M16} {dr}, {ur(kk)}, {v(C64+o,4)}, {dr if kk else 0}")
            a(f"{M16} {di}, {ui(kk)}, {v(C64+o,4)}, {di if kk else 0}")
            a(f"{M16} {dr}, {ui(kk)}, {v(S64+o,4)}, {dr}")
            a(f"{M16} {di}, {ur(kk)}, {v(N64+o,4)}, {di}")
        tick()
    def exch(vw, stride):
        for aa in range(2):
            for ri in range(2):
                b=16+8*ri+4*aa; d=32+4*aa+2*ri
                a(f"v_cvt_pk_bf16_f32 v{d}, v{b}, v{b+1}")
                a(f"v_cvt_pk_bf16_f32 v{d+1}, v{b+2}, v{b+3}")
                a(f"ds_write_b64 {vw}, {v(d,2)} offset:{stride*aa+1024*ri}")
    if FD: pst(a,2)
    cmul(a, DR, DI, TW1C, TW1S, 16, 24, False)
    tick()
    exch("v143", 2048)
    tick()
    if FD: pst(a,7)
    a(f"""
    s_waitcnt lgkmcnt(0)
    s_barrier
    ds_read_b128 {v(UP,4)}, v144
    ds_read_b128 {v(UP+4,4)}, v144 offset:1024
    """)
    tick()
    a("s_waitcnt lgkmcnt(0)")
    if FD: pst(a,4)
    tr=v(UP,4); ti=v(UP+4,4)
    for aa in range(2):
        dr=v(DR+4*aa,4); di=v(DI+4*aa,4)
        a(f"{M16} {dr}, {v(C32+4*aa,4)}, {tr}, 0")
        a(f"{M16} {di}, {v(C32+4*aa,4)}, {ti}, 0")
        a(f"{M16} {dr}, {v(S32+4*aa,4)}, {ti}, {dr}")
        a(f"{M16} {di}, {v(N32+4*aa,4)}, {tr}, {di}")
    if first:
        fft_w_unpack(a)
        a(f"""
        v_mov_b32 v32, 0
        v_mov_b32 v33, 0
        v_mov_b32 v34, 0
        v_mov_b32 v35, 0
        s_lshl_b32 s40, s73, 3
        s_add_u32 s40, s40, {SW}
        s_lshl_b32 s40, s40, 11
        s_add_u32 s40, s40, {O2}
        buffer_store_dwordx4 v[32:35], {VL16}, {R_WS}, s40 offen sc1
        buffer_store_dwordx4 v[32:35], {VL16}, {R_WS}, s40 offen offset:1024 sc1
        """)
        L=a.newlabel("p1")
        a(f"""
        s_cmp_lg_u32 {SW}, 7
        s_cbranch_scc1 {L}
        s_and_b32 s59, s2, 3
        s_lshl_b32 s59, s59, 12
        s_add_u32 s59, s59, {CNTB(1)}
        v_lshlrev_b32 v255, 8, {VN}
        buffer_load_dword v252, v255, {R_WS}, s59 offen sc1
        {L}:
        """)
    tick()
    cmul(a, DR, DI, WRE, WIM, 16, 24, True)
    tick()
    for q in range(4): a(f"v_cvt_pk_bf16_f32 v{UP+8+q}, v{16+2*q}, v{17+2*q}")
    for q in range(4): a(f"v_cvt_pk_bf16_f32 v{UP+12+q}, v{24+2*q}, v{25+2*q}")
    yr=v(UP+8,4); yi=v(UP+12,4)
    for aa in range(2):
        dr=v(DR+4*aa,4); di=v(DI+4*aa,4)
        a(f"{M16} {dr}, {yr}, {v(C32+4*aa,4)}, 0")
        a(f"{M16} {di}, {yi}, {v(C32+4*aa,4)}, 0")
        a(f"{M16} {dr}, {yi}, {v(N32+4*aa,4)}, {dr}")
        a(f"{M16} {di}, {yr}, {v(S32+4*aa,4)}, {di}")
    tick()
    cmul(a, DR, DI, TW2C, TW2S, 16, 24, True)
    tick()
    exch("v145", 4096)
    tick(2)
    if first:
        L=a.newlabel("p1c")
        a(f"""
        s_cmp_lg_u32 {SW}, 7
        s_cbranch_scc1 {L}
        s_waitcnt vmcnt(0)
        v_cmp_gt_u32 vcc, {0 if 'nob1' in EXP else 16}, v252
        s_cmp_eq_u64 vcc, 0
        s_cbranch_scc1 {L}
        """)
        wait(a, 1, bar=False)
        a.label(L)
    if FD: pst(a,5)
    for ri in range(2):
        for q in range(4):
            a(f"v_lshlrev_b32 v{16+8*ri+2*q}, 16, v{48+4*ri+q}")
            a(f"v_and_b32 v{17+8*ri+2*q}, 0xffff0000, v{48+4*ri+q}")
    a(f"""
    s_waitcnt lgkmcnt(0)
    s_barrier
    ds_read_b128 {v(UP,4)}, v146
    ds_read_b128 {v(UP+4,4)}, v146 offset:1024
    ds_read_b128 {v(UP+8,4)}, v147
    ds_read_b128 {v(UP+12,4)}, v147 offset:1024
    """)
    if FD: pst(a,6)
    for kk in range(2):
        a(f"s_waitcnt lgkmcnt({2-2*kk})")
        for aa in range(2):
            dr=v(DR+4*aa,4); di=v(DI+4*aa,4); o=8*aa+4*kk
            a(f"{M16} {dr}, {v(C64+o,4)}, {ur(kk)}, {dr if kk else v(16+4*aa,4)}")
            a(f"{M16} {di}, {v(C64+o,4)}, {ui(kk)}, {di if kk else v(24+4*aa,4)}")
            a(f"{M16} {dr}, {v(N64+o,4)}, {ui(kk)}, {dr}")
            a(f"{M16} {di}, {v(S64+o,4)}, {ur(kk)}, {di}")
            if first and kk+aa<2: bg.pop(0)()
    for q in range(4): a(f"v_cvt_pk_bf16_f32 v{32+q}, v{DR+2*q}, v{DR+2*q+1}")
    for q in range(4): a(f"v_cvt_pk_bf16_f32 v{36+q}, v{DI+2*q}, v{DI+2*q+1}")
    L=a.newlabel("nyq2")
    a(f"""
    s_lshl_b32 s40, s73, 1
    s_add_u32 s40, s40, s61
    s_cmp_lg_u32 s40, 319
    s_cbranch_scc1 {L}
    """)
    for q in range(4): a(f"v_mov_b32 v{36+q}, v{52+q}")
    a.label(L)
    for q in range(8): a(f"v_max_u32 v{32+q}, 1, v{32+q}")
    if first: a("s_waitcnt vmcnt(3)")
    a(f"""
    buffer_store_dwordx4 v[32:35], v141, {R_WS}, s47 offen sc1
    buffer_store_dwordx4 v[36:39], v141, {R_WS}, s47 offen offset:64 sc1
    """)
    return bg

QB = 0
def QAb(layer): return 102400
def NRS(layer): return 3
def BST(layer): return 5120 if layer else 4096
KVF = 151552
QACC = 8
QAF = 48
QBF = 72
def qkv_rot(a): pass
def qkv_roles(a, layer):
    RX=RXS[layer]
    a(f"""
    s_lshr_b32 s81, s2, 3
    s_and_b32 {SR}, {SX}, {8//RX-1}
    s_mul_i32 {SR}, {SR}, {RX}
    s_and_b32 s82, s81, {RX-1}
    s_add_u32 {SR}, {SR}, s82
    s_lshr_b32 {SH}, {SX}, {(8//RX).bit_length()-1}
    s_mul_i32 {SH}, {SH}, {32//RX}
    s_lshr_b32 s81, s81, {RX.bit_length()-1}
    s_add_u32 {SH}, {SH}, s81
    s_and_b32 s68, {SH}, 3
    s_mul_i32 s68, s68, 5
    s_lshr_b32 s81, {SH}, 2
    s_add_u32 s68, s68, s81
    s_cmp_ge_u32 s68, 20
    s_cselect_b32 s81, 20, 0
    s_sub_u32 s68, s68, s81
    """)

def qkv_bload_setup(a, NT):
    BS=BST(0 if NT==4 else 1)
    a(f"""
    v_lshrrev_b32 v149, 2, {VN}
    v_add_u32 v150, 1, v149
    v_cmp_eq_u32 vcc, 2, v149
    v_cndmask_b32 v150, v150, 0, vcc
    v_min_u32 v150, 3, v150
    v_mul_u32_u24 v150, 640, v150
    v_and_b32 v149, 3, {VN}
    v_add3_u32 v150, v150, v149, 16
    s_add_u32 s48, s60, 1
    s_and_b32 s48, s48, 3
    s_mul_i32 s48, s48, 640
    v_add_u32 v149, s48, {VN}
    s_cmp_eq_u32 s60, 2
    s_cselect_b64 vcc, -1, 0
    v_cndmask_b32 v149, v149, v150, vcc
    v_mul_u32_u24 v150, 2560, {VG}
    s_mul_i32 s48, {SH}, 20
    v_add3_u32 v149, v149, v150, s48
    v_lshlrev_b32 v149, 4, v149
    s_add_u32 s48, s48, 1920
    v_add3_u32 v150, {VN}, v150, s48
    v_lshlrev_b32 v150, 4, v150
    s_mov_b32 s51, {WQF+20*163840}
    s_add_u32 s50, s68, s61
    s_mul_i32 s50, s50, 163840
    s_add_u32 s50, s50, {WQF}
    s_add_u32 s76, s68, {SW}
    s_mul_i32 s76, s76, 163840
    s_add_u32 s76, s76, {WQF}
    s_mul_i32 s49, s61, {BS}
    s_lshl_b32 s48, s60, 10
    s_add_u32 s49, s49, s48
    s_mul_i32 s77, {SW}, {BS}
    """)
    def chunk(i):
        def f():
            L=None
            if i<10: src,vo,m,step = "s50","v149",f"s_add_u32 m0, s49, {QB+2*BS*i}",2
            else:    src,vo,m,step = "s76","v150",f"s_add_u32 m0, s77, {QB+8*BS*(i-10)+4096}",8
            if i==12:
                L=a.newlabel("qb"); a(f"s_cmp_ge_u32 {SW}, 4\n s_cbranch_scc1 {L}")
            a(f"""
            s_cmp_ge_u32 {src}, s51
            s_cselect_b32 s48, {20*163840}, 0
            s_sub_u32 {src}, {src}, s48
            {m}
            s_nop 0
            buffer_load_dwordx4 {vo}, {R_WS}, {src} offen sc1 lds
            s_add_u32 {src}, {src}, {step*163840}
            """)
            if L: a.label(L)
        return f
    return [chunk(i) for i in range(10 if NT==4 else 13)]

def qkv_bload(a, NT):
    for c in qkv_bload_setup(a, NT): c()

def qkv_prep(a, layer, bg=None):
    def tk(n=1):
        for _ in range(n):
            if bg: bg.pop(0)()
    tk()
    a(f"""
    s_lshl_b32 s64, {SR}, 3
    s_add_u32 s64, s64, {SW}
    s_mul_i32 s65, {SW}, {2048*NRS(layer)}
    s_add_u32 s65, s65, {QAb(layer)}
    v_lshrrev_b32 v112, 5, {VL}
    v_lshlrev_b32 v112, 5, v112
    {'v_mov_b32 v112, v4' if 'noswz' in EXP else 'v_xor_b32 v112, v112, v4'}
    v_lshrrev_b32 v113, 2, {VN}
    v_lshl_add_u32 v113, {VG}, 3, v113
    v_lshlrev_b32 v113, 6, v113
    v_and_b32 v114, 3, {VN}
    v_lshl_add_u32 v113, v114, 3, v113
    v_and_b32 v114, 1, {VG}
    v_lshl_add_u32 v113, v114, 5, v113
    v_add_u32 v113, s65, v113
    v_xor_b32 v114, 32, v113
    v_add_u32 v115, {10*BST(layer)}, {VL16}
    s_cmp_eq_u32 {SH}, 19
    s_cselect_b32 s40, 3, 99
    v_mov_b32 v116, 0xffff
    v_cmp_ne_u32 vcc, s40, {VG}
    v_cndmask_b32 v116, v116, -1, vcc
    v_lshrrev_b32 v117, 1, {VG}
    v_lshl_add_u32 v117, v117, 4, {VN}
    v_lshlrev_b32 v117, 2, v117
    """)
    tk()
    a(f"""
    v_lshrrev_b32 v8, 2, v0
    v_mul_u32_u24 v9, 781, v8
    v_lshrrev_b32 v9, 14, v9          ; dq
    v_mul_u32_u24 v10, 21, v9
    v_sub_u32 v8, v8, v10             ; rho
    v_lshlrev_b32 v10, 4, v9
    v_subrev_u32 v11, 12, v8
    v_cmp_eq_u32 vcc, 20, v8
    v_cndmask_b32 v11, v11, 0, vcc
    v_add_u32 v11, 128, v11
    v_cmp_gt_u32 vcc, 16, v8
    v_cndmask_b32 v11, v11, v8, vcc
    v_add_u32 v10, v10, v11
    v_and_b32 v11, 3, v0
    v_lshl_add_u32 v10, v10, 2, v11
    v_lshlrev_b32 v10, 2, v10
    v_min_u32 v10, 4092, v10
    v_add_u32 v118, {QAb(layer)}, v10
    """)
    tk()
    a(f"""
    v_lshrrev_b32 v8, 2, {VN}
    v_and_b32 v9, 1, v8
    v_cmp_eq_u32 vcc, 1, v9
    v_mov_b32 v10, {f2u(1e-6)}
    v_mov_b32 v11, 0xff800000
    v_cndmask_b32 v119, v10, 0, vcc
    v_cndmask_b32 v120, v10, v11, vcc
    v_cndmask_b32 v121, 1.0, 0, vcc
    v_cmp_eq_u32 vcc, 3, v8
    v_mov_b32 v10, {f2u(2.0/640)}
    v_cndmask_b32 v122, 1.0, 0, vcc
    v_cndmask_b32 v123, 0, v10, vcc
    """)
    tk()
    a(f"""
    v_lshlrev_b32 v8, 2, {VG}
    v_sub_u32 v8, {VN}, v8
    v_mov_b32 v10, 0x3f80
    v_mov_b32 v11, 0x3f800000
    v_cmp_eq_u32 vcc, 0, v8
    v_cndmask_b32 v124, 0, v10, vcc
    v_cmp_eq_u32 vcc, 1, v8
    v_cndmask_b32 v124, v124, v11, vcc
    v_cmp_eq_u32 vcc, 2, v8
    v_cndmask_b32 v125, 0, v10, vcc
    v_cmp_eq_u32 vcc, 3, v8
    v_cndmask_b32 v125, v125, v11, vcc
    v_mov_b32 v126, 0
    v_mov_b32 v127, 0
    v_mov_b32 v128, 0
    v_mov_b32 v129, 0
    v_mov_b32 v130, v124
    v_mov_b32 v131, v125
    """)
    tk()
    a(f"""
    v_lshrrev_b32 v8, 3, {VL}
    v_mul_u32_u24 v8, 1792, v8
    v_and_b32 v9, 7, {VL}
    v_lshl_add_u32 v132, v9, 4, v8
    s_lshl_b32 s40, {SW}, 8
    v_add_u32 v132, s40, v132
    """)
    tk()
    a(f"""
    v_lshrrev_b32 v8, 5, {VL}
    v_lshl_add_u32 v8, v8, 3, v9
    s_lshl_b32 s40, {SW}, 4
    v_add_u32 v8, s40, v8
    v_mul_u32_u24 v9, 781, v8
    v_lshrrev_b32 v9, 14, v9          ; dq
    v_mul_u32_u24 v10, 21, v9
    v_sub_u32 v8, v8, v10             ; rho
    v_add_u32 v10, 48, v8
    v_cmp_gt_u32 vcc, 16, v8
    v_cndmask_b32 v8, v10, v8, vcc
    v_lshlrev_b32 v8, 4, v8
    v_lshlrev_b32 v10, 8, v9
    v_mov_b32 v11, {2*256+8}
    v_cmp_eq_u32 vcc, 4, v9
    v_cndmask_b32 v10, v10, v11, vcc
    v_mov_b32 v11, 2048
    v_cmp_lt_u32 vcc, 4, v9
    v_cndmask_b32 v10, v10, v11, vcc
    v_add_u32 v8, v8, v10
    v_and_b32 v9, 1, {VG}
    v_lshl_add_u32 v8, v9, 2, v8
    v_add_u32 v133, {KVF}, v8
    v_add_u32 v134, {KVF}, {VL16}
    v_min_u32 v8, 4, {VN}
    v_lshl_add_u32 v8, {VG}, 4, v8
    v_lshlrev_b32 v8, 4, v8
    v_add_u32 v135, {KVF+1024}, v8
    v_mov_b32 v8, 0
    v_lshlrev_b32 v9, 2, v0
    v_add_u32 v9, {KVF}, v9
    ds_write_b32 v9, v8
    """)
    tk()
    a(f"""
    v_bfe_u32 v8, {VN}, 2, 1
    v_mul_u32_u24 v8, 20480, v8
    v_lshrrev_b32 v9, 3, {VN}
    v_lshl_add_u32 v8, v9, 6, v8
    v_and_b32 v9, 3, {VN}
    v_lshl_add_u32 v8, v9, 4, v8
    s_mul_i32 s40, {SH}, 5
    v_add_u32 v9, s40, {VG}
    v_lshrrev_b32 v10, 1, v9
    v_lshl_add_u32 v136, v10, 8, v8
    v_and_b32 v10, 1, v9
    v_lshl_add_u32 v136, v10, 3, v136
    s_add_u32 s40, s40, 4
    s_lshr_b32 s41, s40, 1
    s_lshl_b32 s41, s41, 8
    s_and_b32 s40, s40, 1
    s_lshl_b32 s40, s40, 3
    s_add_u32 s40, s40, s41
    v_add_u32 v137, s40, v8
    v_lshlrev_b32 v138, 3, {VN}
    v_lshl_add_u32 v138, {VG}, 8, v138
    """)
    tk(20)

def qkv_main(a, layer):
    last = layer==1
    NT = 5 if last else 4
    NR = NRS(layer); BS = BST(layer)
    xin = X3 if last else X1; var = VAR3 if last else VAR1
    a(f"""
    s_mul_i32 s52, s64, 40960
    s_add_u32 s52, s52, {xin}
    s_add_u32 s54, s52, 40960
    s_lshl_b32 s53, s68, 11
    s_add_u32 s53, s53, s52
    """)
    def dma0(j):
        a(f"s_add_u32 m0, s65, {(j%NR)*2048}")
        a("s_nop 0")
        a(f"buffer_load_dwordx4 v112, {R_WS}, s53 offen {'' if 'nosc' in EXP else 'sc1'} lds")
    def dma1(j):
        a(f"""
        buffer_load_dwordx4 v112, {R_WS}, s53 offen offset:1024 {'' if 'nosc' in EXP else 'sc1'} lds
        s_add_u32 s53, s53, 2048
        s_cmp_ge_u32 s53, s54
        s_cselect_b32 s53, s52, s53
        """)
    q=LQ(a)
    def rdA(j,k):
        aa,h=k>>1,k&1
        q.op(f"ds_read_b64_tr_b16 {v(QAF+8*(j%3)+4*aa+2*h,2)}, v{113+aa} offset:{(j%NR)*2048+256*h}", ("A",j,aa))
    def rdB(j,t):
        base,off=(VL16,j*BS) if j<10 else ("v115",(j-10)*BS)
        q.op(f"ds_read_b128 {v(QBF+20*(j&1)+4*t,4)}, {base} offset:{QB+off+1024*t}", ("B",j,t))
    for j in range(NR): dma0(j); dma1(j)
    for t in range(NT): rdB(0,t)
    a(f"""
    s_lshl_b32 s55, s64, 7
    s_add_u32 s55, s55, {var}
    s_lshl_b32 s56, s64, 8
    s_add_u32 s56, s56, {LSS + layer*16384}
    s_waitcnt vmcnt({2*NR-2})
    """)
    for k in range(4): rdA(0,k)
    a(f"s_waitcnt vmcnt({2*NR-4})")
    for k in range(4): rdA(1,k)
    q.need(("A",0,0),("A",0,1))
    dma0(NR); dma1(NR)
    JC = 16-NR
    for j in range(20):
        aux=[]
        if j+1<20: aux+= [(lambda t=t: (None if ("nob" in EXP and j>0) else rdB(j+1,t))) for t in range(NT)]
        if j+2<20:
            def first():
                a(f"s_waitcnt vmcnt({min(2*NR-2,2*(17-j)) if j<17 else 4})"); rdA(j+2,0)
            aux+= [first, lambda: rdA(j+2,1), lambda: (rdA(j+2,2), rdA(j+2,3))]
        pos_dma = 2
        for m in range(2*NT):
            t,aa=m>>1,m&1
            q.need(("A",j,aa),("B",j,t))
            d=v(QACC+8*t+4*aa,4); bf=v(QBF+20*(j&1)+4*t,4); af=v(QAF+8*(j%3)+4*aa,4); c=d if j else 0
            if "nomm" in EXP and j>0 and m>0: pass
            elif t>=3: a(f"{M16} {d}, {bf}, {af}, {c}")
            else: a(f"{M16} {d}, {af}, {bf}, {c}")
            if m<len(aux): aux[m]()
            if j+NR+1<20 and "nodma" not in EXP:
                if m==pos_dma:
                    q.need(("A",j+1,0),("A",j+1,1)); dma0(j+NR+1)
                if m==pos_dma+1: dma1(j+NR+1)
        if j==0 and 'nossq' not in EXP:
            L=a.newlabel("ssq")
            a(f"""
            s_cmp_ge_u32 {SH}, 20
            s_cbranch_scc1 {L}
            v_mov_b32 v5, 0
            v_mov_b32 v6, 0
            v_and_b32 v7, v116, v{QAF+3}
            v_and_b32 v139, v116, v{QAF+7}
            """)
            for k in range(3):
                a(f"v_dot2c_f32_bf16 v5, v{QAF+k}, v{QAF+k}")
                a(f"v_dot2c_f32_bf16 v6, v{QAF+4+k}, v{QAF+4+k}")
            a(f"""
            v_dot2c_f32_bf16 v5, v7, v7
            v_dot2c_f32_bf16 v6, v139, v139
            v_permlane32_swap_b32 v5, v6
            v_add_f32 v5, v5, v6
            v_mov_b32 v6, v5
            v_permlane16_swap_b32 v5, v6
            v_add_f32 v5, v5, v6
            s_mov_b32 exec_lo, 0xffff
            s_mov_b32 exec_hi, 0xffff
            buffer_atomic_add_f32 v5, v117, {R_WS}, s55 offen
            s_mov_b64 exec, -1
            {L}:
            """)
        if j==JC:
            a(f"v_mov_b32 v5, 0\n buffer_load_dword v140, v5, {R_WS}, s56 offen sc1")
        if j==13:
            WB = 3 if last else 5
            L=a.newlabel("w5c")
            a(f"s_cmp_lg_u32 {SW}, 7\n s_cbranch_scc1 {L}")
            bar_target(a, WB)
            a(f"""
            v_cmp_gt_u32 vcc, v253, v151
            s_cmp_eq_u64 vcc, 0
            s_cbranch_scc1 {L}
            """)
            wait(a, WB, bar=False)
            a.label(L)
            a("s_barrier")
        if j in (9,10) and not last:
            L=a.newlabel("zf")
            i=j-9
            if i==0:
                a(f"""
                v_mov_b32 v152, 0
                v_mov_b32 v153, 0
                v_mov_b32 v154, 0
                v_mov_b32 v155, 0
                s_lshl_b32 s40, {SW}, 8
                s_add_u32 s40, s40, s2
                s_lshl_b32 s41, s40, 10
                s_add_u32 s41, s41, {X2}
                """)
            if i==1: a(f"s_cmp_ge_u32 s40, 512\n s_cbranch_scc1 {L}")
            a(f"buffer_store_dwordx4 v[152:155], {VL16}, {R_WS}, s41 offen sc1\n s_add_u32 s41, s41, {2048*1024}")
            a.label(L)
        if j==8: probe(a, 3 if last else 5, "v151")
        if j==16:
            L=a.newlabel("ssp")
            a(f"""
            v_cmp_gt_u32 vcc, {0 if 'nossq' in EXP else 20}, v140
            s_cmp_eq_u64 vcc, 0
            s_cbranch_scc1 {L}
            v_mov_b32 v255, 0
            """)
            poll(a, R_WS, "s56", "v255", 20, 20+layer)
            a(f"""
            {L}:
            v_lshlrev_b32 v5, 4, {VG}
            v_lshlrev_b32 v6, 2, {VN}
            buffer_load_dwordx4 v[140:143], v5, {R_WS}, s55 offen sc1
            buffer_load_dwordx4 v[144:147], v5, {R_WS}, s55 offen offset:64 sc1
            buffer_load_dword v148, v6, {R_WS}, s55 offen sc1
            buffer_load_dword v149, v6, {R_WS}, s55 offen offset:64 sc1
            """)
        if j==18:
            a(f"s_mov_b32 s40, {f2u(2.0/(640*640))}\n v_mov_b32 v7, {f2u(1e-5)}\n s_waitcnt vmcnt(0)")
            for i in range(10): a(f"v_fma_f32 v{140+i}, v{140+i}, s40, v7")
            for i in range(10): a(f"v_rsq_f32 v{140+i}, v{140+i}")
        if j==NR+1 and 'nossq' not in EXP:
            L=a.newlabel("ssf")
            a(f"s_cmp_ge_u32 {SH}, 20\n s_cbranch_scc1 {L}")
            larrive(a, "s56")
            a.label(L)

def qkv_tail(a, layer):
    last = layer==1
    ob = O4 if last else O2
    A=lambda t,aa,i=0: QACC+8*t+4*aa+i
    RR=140; RL=148; S2=64; E=72; P0_,P1_,P2_,P2o=80,84,88,92; QP=96
    a(f"""
    v_mov_b32 v58, {f2u(1e-6)}
    s_mov_b32 s41, {f2u(math.log2(math.e))}
    """)
    def phi(t, scale, eps, lo, sel):
        for i in range(8): a(f"v_fma_f32 v{A(t,0,i)}, v{A(t,0,i)}, {scale(i)}, {eps}")
        for i in range(8): a(f"v_mul_f32 v{E+i}, s41, v{A(t,0,i)}")
        for i in range(8): a(f"v_exp_f32_e64 v{E+i}, v{E+i} clamp")
        for i in range(8): a(f"v_max_f32 v{A(t,0,i)}, v{A(t,0,i)}, {lo}")
        for i in range(8):
            if sel: a(f"v_fma_f32 v{A(t,0,i)}, v{E+i}, {sel}, v{A(t,0,i)}")
            else: a(f"v_add_f32 v{A(t,0,i)}, v{A(t,0,i)}, v{E+i}")
    def pack(t, dst):
        for q in range(4): a(f"v_cvt_pk_bf16_f32 v{dst+q}, v{A(t,0,2*q)}, v{A(t,0,2*q+1)}")
    for i in range(8): a(f"v_mul_f32 v{A(1,0,i)}, v{A(1,0,i)}, v{RR+i}")
    pack(1,P1_)
    for i in range(8): a(f"v_fma_f32 v{S2+i}, v{RR+i}, v122, v123")
    phi(0, lambda i:f"v{RR+i}", "v58", "v58", None); pack(0,P0_)
    phi(2, lambda i:f"v{S2+i}", "v119", "v120", "v121"); pack(2,P2_)
    if not last:
        a(f"v_cmp_gt_u32 vcc, 12, {VN}")
        for q in range(4): a(f"v_cndmask_b32 v{P2_+q}, 0, v{P2_+q}, vcc")
    a(f"v_mov_b32 v5, 0x3f803f80\n v_cmp_gt_u32 vcc, 4, {VN}")
    for q in range(4): a(f"v_cndmask_b32 v{P2o+q}, v{P2_+q}, v5, vcc")
    a(f"""
    {M16} v[8:11], {v(P0_,4)}, {v(P1_,4)}, 0
    {M16} v[12:15], {v(P2_,4)}, {v(P1_,4)}, 0
    {M16} v[16:19], {v(P0_,4)}, {v(P2o,4)}, 0
    {M16} v[20:23], {v(P2_,4)}, {v(P2o,4)}, 0
    {M16} v[24:27], {v(P2_,4)}, v[124:127], 0
    {M16} v[28:31], {v(P2_,4)}, v[128:131], 0
    v_add_u32 v6, s65, {VL16}
    """)
    for q in range(4): a(f"ds_write_b128 v6, {v(8+4*q,4)} offset:{1024*q}")
    L03=a.newlabel("lead")
    a(f"s_cmp_ge_u32 {SW}, 4\n s_cbranch_scc1 {L03}")
    ao_wload(a, WOR if last else WOF, 1, layer)
    a(f"s_mov_b32 s41, {f2u(math.log2(math.e))}")
    a.label(L03)
    a("s_waitcnt lgkmcnt(0)\n s_barrier")
    L7=a.newlabel("kv7"); LJ=a.newlabel("kvj"); L=a.newlabel("kvs")
    a(f"""
    s_mul_i32 s57, {SH}, {8*1792}
    s_add_u32 s57, s57, {KVP + layer*256*1792}
    s_cmp_eq_u32 {SW}, 7
    s_cbranch_scc1 {L}
    """)
    for w in range(8): a(f"ds_read_b32 v{8+w}, v118 offset:{w*2048*NRS(layer)}")
    a(f"""
    v_lshlrev_b32 v6, 2, v0
    s_mul_i32 s40, {SR}, 1792
    s_add_u32 s40, s40, s57
    s_waitcnt lgkmcnt(0)
    v_add_f32 v8, v8, v9
    v_add_f32 v10, v10, v11
    v_add_f32 v12, v12, v13
    v_add_f32 v14, v14, v15
    v_add_f32 v8, v8, v10
    v_add_f32 v12, v12, v14
    v_add_f32 v8, v8, v12
    v_max_u32 v8, 1, v8
    buffer_store_dword v8, v6, {R_WS}, s40 offen sc1
    {L}:
    """)
    if last:
        a(f"""
        s_mul_i32 s42, s64, 40960
        s_mul_i32 s43, {SH}, 1280
        s_add_u32 s42, s42, s43
        s_add_u32 s42, s42, {Y3}
        s_mov_b32 s43, {f2u(2.0/640)}
        """)
        for i in range(8): a(f"v_mul_f32 v{A(4,0,i)}, s43, v{A(4,0,i)}")
        for q in range(4): a(f"v_cvt_pk_bf16_f32 v{60+q}, v{A(4,0,2*q)}, v{A(4,0,2*q+1)}")
        for q in range(4): a(f"v_max_u32 v{60+q}, 1, v{60+q}")
        a(f"buffer_store_dwordx2 v[60:61], v138, {R_WS}, s42 offen sc1")
        a(f"buffer_store_dwordx2 v[62:63], v138, {R_WS}, s42 offen offset:128 sc1")
    phi(3, lambda i:f"v{RL+(i>>2)}", "v58", "v58", None)
    for aa in range(2):
        a(f"v_cvt_pk_bf16_f32 v{QP+4*aa}, v{A(3,aa,0)}, v{A(3,aa,1)}")
        a(f"v_cvt_pk_bf16_f32 v{QP+4*aa+1}, v{A(3,aa,2)}, v{A(3,aa,3)}")
        a(f"v_cvt_pk_bf16_f32 v{QP+4*aa+2}, v{24+4*aa}, v{25+4*aa}")
        a(f"v_cvt_pk_bf16_f32 v{QP+4*aa+3}, v{26+4*aa}, v{27+4*aa}")
    a(f"""
    s_mul_i32 s44, s64, 40960
    s_add_u32 s44, s44, {ob}
    """)
    pst(a,3)
    LP=a.newlabel("kvp"); LD=a.newlabel("kvd")
    a(f"""
    s_cmp_eq_u32 {SW}, 7
    s_cbranch_scc1 {L7}
    s_mov_b32 s58, {SPIN}
    {LP}:
    buffer_load_dwordx4 v[8:11], v132, {R_WS}, s57 offen sc1
    buffer_load_dwordx4 v[12:15], v132, {R_WS}, s57 offen offset:128 sc1
    s_waitcnt vmcnt(0)
    v_min3_u32 v16, v8, v9, v10
    v_min3_u32 v17, v11, v12, v13
    v_min3_u32 v16, v16, v14, v15
    v_min_u32 v16, v16, v17
    v_cmp_eq_u32 vcc, 0, v16
    s_cmp_eq_u64 vcc, 0
    s_cbranch_scc1 {LD}
    """)
    retry_check(a, None, LP, LD, 30+layer)
    a.label(LD)
    for i in range(4): a(f"v_permlane32_swap_b32 v{8+i}, v{12+i}")
    for i in range(4): a(f"v_add_f32 v{8+i}, v{8+i}, v{12+i}")
    a(f"""
    v_permlane16_swap_b32 v8, v10
    v_permlane16_swap_b32 v9, v11
    v_add_f32 v8, v8, v10
    v_add_f32 v9, v9, v11
    v_add_f32_dpp v8, v8, v8 row_ror:8 row_mask:0xf bank_mask:0xf
    v_add_f32_dpp v9, v9, v9 row_ror:8 row_mask:0xf bank_mask:0xf
    v_cvt_pk_bf16_f32 v8, v8, v9
    ds_write_b32 v133, v8
    s_waitcnt lgkmcnt(0)
    s_branch {LJ}
    {L7}:
    """)
    ao_wload(a, WOR if last else WOF, 0, layer)
    a(f"""
    {LJ}:
    s_barrier
    ds_read_b128 v[28:31], v135
    ds_read_b128 v[24:27], v134
    """)
    pst(a,4)
    a("s_waitcnt lgkmcnt(0)")
    for aa in range(2):
        a(f"{M16} {v(36+8*aa,4)}, v[28:31], {v(QP+4*aa,4)}, 0")
    for aa in range(2):
        a(f"{M16} {v(32+8*aa,4)}, v[24:27], {v(QP+4*aa,4)}, 0")
    for aa in range(2):
        D=32+8*aa
        a(f"""
        v_mov_b32 v{8+2*aa}, v{D+4}
        v_mov_b32 v{9+2*aa}, v{D+4}
        """)
    for aa in range(2): a(f"v_permlane16_swap_b32 v{8+2*aa}, v{9+2*aa}")
    for aa in range(2): a(f"v_add_f32 v{9+2*aa}, v{9+2*aa}, v58")
    for aa in range(2): a(f"v_rcp_f32 v{9+2*aa}, v{9+2*aa}")
    for aa in range(2):
        D=32+8*aa
        for i in range(8): a(f"v_mul_f32 v{D+i}, v{D+i}, v{9+2*aa}")
        for q in range(4): a(f"v_cvt_pk_bf16_f32 v{12+4*aa+q}, v{D+2*q}, v{D+2*q+1}")
        for q in range(4): a(f"v_max_u32 v{12+4*aa+q}, 1, v{12+4*aa+q}")
        a(f"buffer_store_dwordx2 {v(12+4*aa,2)}, v136, {R_WS}, s44 offen offset:{128*aa} sc1")
    a(f"""
    s_mov_b64 exec, 0xffff
    buffer_store_dwordx2 v[14:15], v137, {R_WS}, s44 offen sc1
    buffer_store_dwordx2 v[18:19], v137, {R_WS}, s44 offen offset:128 sc1
    s_mov_b64 exec, -1
    """)
    if last:
        for r in (QP+2,QP+3,QP+6,QP+7): a(f"v_max_u32 v{r}, 1, v{r}")
        a(f"""
        s_mov_b32 exec_lo, 0
        s_mov_b32 exec_hi, 0xffff0000
        buffer_store_dwordx2 {v(QP+2,2)}, v138, {R_WS}, s42 offen offset:256 sc1
        buffer_store_dwordx2 {v(QP+6,2)}, v138, {R_WS}, s42 offen offset:384 sc1
        s_mov_b64 exec, -1
        """)

def ao_wload(a, wt, part, layer):
    a(f"""
    s_mul_i32 s40, {ST}, 102400
    s_add_u32 s40, s40, {wt}
    """)
    if part==0:
        lo = 64 if layer else 48
        for f in range(lo,lo+36):
            if f%4==0: a(f"s_add_u32 s41, s40, {f*1024}\n s_mov_b32 m0, {FT+f*1024}")
            a(f"buffer_load_dwordx4 {VL16}, {R_WS}, s41 offen offset:{1024*(f%4)} sc1 lds")
    else:
        a(f"s_lshl_b32 s41, {SW}, 14")
        if not layer: a(f"s_cmp_eq_u32 {SW}, 3\n s_cselect_b32 s41, {84*1024}, s41")
        a("s_add_u32 s40, s40, s41")
        for j in range(16):
            if j%4==0: a(f"s_add_u32 s45, s40, {j*1024}\n s_add_u32 m0, s41, {FT+j*1024}")
            a(f"buffer_load_dwordx4 {VL16}, {R_WS}, s45 offen offset:{1024*(j%4)} sc1 lds")

def ao_main(a, layer):
    ob = O4 if layer else O2
    a(f"""
    s_lshl_b32 s48, {SI}, 2
    s_add_u32 s48, s48, s60
    s_mul_i32 s48, s48, 20480
    s_mul_i32 s41, s61, 10240
    s_add_u32 s48, s48, s41
    s_add_u32 s48, s48, {ob}
    s_add_u32 s49, s48, 4096
    s_add_u32 s50, s48, 8192
    s_mov_b32 s58, {SPIN}
    """)
    ld=lambda j: a(f"buffer_load_dwordx4 {v(PF+4*j,4)}, {VL16}, {R_WS}, s{48+j//4} offen offset:{1024*(j%4)} sc1")
    a(f"s_waitcnt vmcnt({0 if 'noodrain' not in EXP else (6 if layer else 7)})\n s_barrier")
    if "clk" not in EXP: pst(a,7)
    if layer:
        L=a.newlabel("p6l")
        a(f"s_cmp_lg_u32 s61, 0\n s_cbranch_scc1 {L}")
        p6_resload(a)
        a.label(L)
    AHEAD=4
    for j in range(AHEAD): ld(j)
    blocks=[]
    def chk(j):
        a(f"""
        v_min3_u32 v5, v{PF+4*j}, v{PF+4*j+1}, v{PF+4*j+2}
        v_min_u32 v5, v5, v{PF+4*j+3}
        v_cmp_eq_u32 vcc, 0, v5
        s_cmp_lg_u64 vcc, 0
        """)
    def wp(j):
        R=a.newlabel("aor"); B=a.newlabel("aob")
        if j+AHEAD<10: ld(j+AHEAD)
        a(f"s_waitcnt vmcnt({min(AHEAD,9-j)})")
        chk(j)
        a(f"s_cbranch_scc1 {R}")
        a.label(B)
        blocks.append((j,R,B))
    g640_core(a, layer==1, "v21", wait_priv=wp)
    def emit_blocks():
        for j,R,B in blocks:
            OK=a.newlabel("aok")
            a.label(R)
            ld(j)
            a("s_waitcnt vmcnt(0)")
            chk(j)
            a(f"s_cbranch_scc0 {OK}")
            retry_check(a, None, R, B, 40+layer)
            a.label(OK)
            for k in range(j+1,min(10,j+AHEAD+1)): ld(k)
            a(f"s_branch {B}")
    a.late.append(emit_blocks)

def p6_prep(a):
    mu_pos(a, "v10", "s62", "v11")
    a(f"""
    v_mul_u32_u24 v22, 1280, {VG}
    v_lshl_add_u32 v22, v10, 3, v22
    s_lshl_b32 s74, {SI}, 1
    s_add_u32 s74, s74, s63
    s_mul_i32 s74, s74, 40960
    s_mul_i32 s41, {ST}, 5120
    s_add_u32 s74, s74, s41
    s_add_u32 s74, s74, {Y3}
    """)
    tok_row(a)("v10", VN)
    a(f"""
    s_movk_i32 s41, 1280
    v_mul_lo_u32 v10, v10, s41
    v_mul_u32_u24 v12, 40, {VG}
    v_add_u32 v23, v10, v12
    s_mul_i32 s75, {ST}, 160
    s_mul_i32 s40, s60, 5120
    s_add_u32 s40, s40, {RS}
    v_add_u32 v9, s40, {VL16}
    """)

def p6_resload(a):
    for nt in range(5): a(f"buffer_load_dwordx2 {v(10+2*nt,2)}, v22, {R_WS}, s74 offen offset:{256*nt} sc1")

def p6_epilogue(a):
    L1=a.newlabel("p6a"); L2=a.newlabel("p6b"); LR=a.newlabel("p6r"); LK=a.newlabel("p6k")
    a(f"s_cmp_eq_u32 s61, 0\n s_cbranch_scc1 {L1}")
    for nt in range(5): a(f"ds_write_b128 v9, {v(AC+4*nt,4)} offset:{nt*1024}")
    a(f"""
    s_waitcnt lgkmcnt(0)
    s_barrier
    s_branch {L2}
    {LR}:
    """)
    p6_resload(a)
    a("s_waitcnt vmcnt(0)")
    retry_check(a, None, L1, LK, 50)
    a(f"""
    {L1}:
    v_min3_u32 v6, v10, v11, v12
    v_min3_u32 v7, v13, v14, v15
    v_min3_u32 v6, v6, v16, v17
    v_min3_u32 v7, v7, v18, v19
    v_min_u32 v6, v6, v7
    v_cmp_eq_u32 vcc, 0, v6
    s_cmp_lg_u64 vcc, 0
    s_cbranch_scc1 {LR}
    {LK}:
    """)
    for q in range(10):
        a(f"""
        v_lshlrev_b32 v6, 16, v{10+q}
        v_and_b32 v7, 0xffff0000, v{10+q}
        v_add_f32 v{AC+2*q}, v{AC+2*q}, v6
        v_add_f32 v{AC+2*q+1}, v{AC+2*q+1}, v7
        """)
    a("s_barrier")
    for nt in range(5): a(f"ds_read_b128 {v(SB+4*nt,4)}, v9 offset:{nt*1024}")
    a("s_waitcnt lgkmcnt(0)")
    for q in range(10):
        a(f"""
        v_add_f32 v{AC+2*q}, v{AC+2*q}, v{SB+2*q}
        v_add_f32 v{AC+2*q+1}, v{AC+2*q+1}, v{SB+2*q+1}
        v_cvt_pk_bf16_f32 v{64+q}, v{AC+2*q}, v{AC+2*q+1}
        """)
    a(f"""
    buffer_store_dwordx4 v[64:67], v23, {R_OUT}, s75 offen
    buffer_store_dwordx4 v[68:71], v23, {R_OUT}, s75 offen offset:16
    buffer_store_dwordx2 v[72:73], v23, {R_OUT}, s75 offen offset:32
    {L2}:
    """)

def probe(a, beta, dst):
    L=a.newlabel("pb")
    a(f"""
    s_cmp_lg_u32 {SW}, 7
    s_cbranch_scc1 {L}
    s_and_b32 s59, s2, 3
    s_lshl_b32 s59, s59, 12
    s_add_u32 s59, s59, {CNTB(beta)}
    v_lshlrev_b32 v255, 8, {VN}
    buffer_load_dword {dst}, v255, {R_WS}, s59 offen sc1
    {L}:
    """)
def probe_check(a, beta, src, vm):
    L=a.newlabel("pc")
    a(f"""
    s_cmp_lg_u32 {SW}, 7
    s_cbranch_scc1 {L}
    s_waitcnt vmcnt({vm})
    v_cmp_gt_u32 vcc, 16, {src}
    s_cmp_eq_u64 vcc, 0
    s_cbranch_scc1 {L}
    """)
    wait(a, beta, bar=False)
    a.label(L)

def code_touch(a):
    L=a.newlabel("ct")
    a(f"""
    s_cmp_lg_u32 {SW}, 1
    s_cbranch_scc1 {L}
    s_getpc_b64 s[40:41]
    ctbase:
    s_lshr_b32 s42, s2, 3
    s_mul_i32 s42, s42, 12
    v_min_u32 v8, 11, {VL}
    v_add_u32 v8, s42, v8
    v_lshlrev_b32 v8, 7, v8
    v_min_u32 v8, kend-ctbase-4, v8
    v_mov_b32 v9, s41
    v_add_co_u32 v8, vcc, s40, v8
    v_addc_co_u32 v9, vcc, 0, v9, vcc
    global_load_dword v254, v[8:9], off
    {L}:
    """)

def body(a):
    pst(a,0)
    if 'ctouch' in EXP: code_touch(a)
    l2_touch(a)
    if 'wtouch' not in EXP: wt_loads(a)
    zero_issue(a)
    pst(a,1)
    if 'early' in EXP:
        LE=a.newlabel("ea"); LF=a.newlabel("eb")
        a(f"s_cmp_ge_u32 {SW}, 4\n s_cbranch_scc1 {LE}")
        rows_dma(a, R_X, tok_row(a))
        a.label(LE)
    gen_ftile(a)
    zero_signal(a)
    pst(a,2)
    if 'early' in EXP: a(f"s_cmp_lt_u32 {SW}, 4\n s_cbranch_scc1 {LF}")
    rows_dma(a, R_X, tok_row(a))
    if 'early' in EXP: a.label(LF)
    if 'wtouch' in EXP: wt_loads(a)
    xtile_base(a, "s64")
    L=a.newlabel("zx")
    a(f"""
    v_mov_b32 v12, 0
    v_mov_b32 v13, 0
    s_mul_i32 s43, s61, 40960
    s_lshl_b32 s44, s60, 9
    s_add_u32 s43, s43, s44
    v_lshlrev_b32 v6, 3, {VL}
    v_add_u32 v6, s43, v6
    s_add_u32 s46, s64, 4096
    s_cmp_ge_u32 s60, 2
    s_cselect_b32 s46, {OOB}, s46
    buffer_store_dwordx2 v[12:13], v6, {R_WS}, s64 offen sc1
    buffer_store_dwordx2 v[12:13], v6, {R_WS}, s64 offen offset:2048 sc1
    buffer_store_dwordx2 v[12:13], v6, {R_WS}, s46 offen sc1
    s_cmp_lg_u32 {SW}, 6
    s_cbranch_scc1 {L}
    v_lshlrev_b32 v7, 2, {VL}
    s_lshl_b32 s47, {ST}, 12
    s_lshl_b32 s46, {SI}, 7
    s_add_u32 s47, s47, s46
    s_add_u32 s47, s47, {PV0}
    s_mov_b32 exec_hi, 0
    buffer_store_dword v12, v7, {R_WS}, s47 offen sc1
    s_mov_b32 exec_hi, -1
    {L}:
    """)
    L=a.newlabel("nc")
    a(f"s_cmp_ge_u32 s72, 20\n s_cbranch_scc1 {L}")
    fft_consts(a)
    a.label(L)
    wq_loads(a)
    side_job(a, False, 13 if 'wtouch' in EXP else 23)
    pst(a,3)
    xe_prep(a, False, sign="v5")
    rows_read(a, 10)
    L6=a.newlabel("w6")
    a(f"""
    s_cmp_lt_u32 {SW}, 3
    s_cbranch_scc1 {L6}
    s_waitcnt vmcnt(0)
    {L6}:
    s_waitcnt vmcnt(4) lgkmcnt(0)
    """)
    wq_stage(a)
    init_probe(a)
    pst(a,4)
    xq_core(a)
    pst(a,5)
    probe(a, 0, "v252")
    a(f"s_mov_b32 s65, {PV0}")
    xtype_epilogue(a, "s64", False, "s65", vm1="v5", pre_bar=lambda: probe_check(a, 0, "v252", 3), AC=ACX, T=PF,
                   extra_write=lambda: wq_write(a))
    pst(a,6)
    pflush(a,0)
    def fft_phase(layer, k):
        first = layer==0
        xin,xout,var,ba = (X0,X1,PV0,2) if first else (X2,X3,PV2,4)
        S=a.newlabel("side"); J=a.newlabel("join"); S2=a.newlabel("side2")
        qkv_roles(a, layer)
        a(f"s_cmp_ge_u32 s72, 20\n s_cbranch_scc1 {S}")
        if first:
            wq_fin(a); fft_w_load(a)
        if first:
            fft_prep(a, first)
        pst(a,2)
        bg=fft_main(a, xin, xout, var, first)
        pst(a,3)
        if ("fd" in EXP and not first) or ("fd1" in EXP and first): pflush(a,6)
        nb=len(bg)
        qkv_prep(a, layer)
        drain(a); arrive(a, ba)
        J6=a.newlabel("j6")
        if nb:
            a("s_barrier")
            for c in bg: c()
        pst(a,4)
        a(f"s_branch {J if nb else J6}")
        a.label(S)
        if first:
            wq_fin(a)
            drain(a); arrive(a, 1)
            a(f"s_sub_u32 s66, s72, 20\n s_cmp_ge_u32 s66, 10\n s_cbranch_scc1 {S2}")
            wo_job(a, False)
            S3=a.newlabel("side3")
            a(f"s_branch {S3}")
            a.label(S2)
            gcol_job(a)
            a.label(S3)
            a("s_waitcnt lgkmcnt(0)")
            wait(a, 1)
            qkv_bload(a, 4)
            a("s_waitcnt vmcnt(10)\n s_barrier")
            arrive(a, 5)
        else:
            wor_loads(a)
            side_job(a, True, 0)
            drain(a); arrive(a, 3)
            qkv_bload(a, 5)
            L=a.newlabel("z4")
            a(f"""
            v_mov_b32 v8, 0
            v_mov_b32 v9, 0
            v_mov_b32 v10, 0
            v_mov_b32 v11, 0
            s_lshl_b32 s41, s67, 10
            s_add_u32 s41, s41, {O4}
            """)
            for i in range(7):
                if i==6: a(f"s_cmp_ge_u32 s67, {5120-6*768}\n s_cbranch_scc1 {L}")
                a(f"buffer_store_dwordx4 v[8:11], {VL16}, {R_WS}, s41 offen sc1\n s_add_u32 s41, s41, {768*1024}")
            a.label(L)
        qkv_prep(a, layer)
        a.label(J)
        a("s_waitcnt vmcnt(0)")
        a.label(J6)
        pst(a,5)
        pflush(a,k)
    def attn_phase(layer, k):
        last = layer==1
        pst(a,0)
        wait(a, 4 if last else 2)
        pst(a,1)
        if "clk" in EXP: a("s_memtime s[84:85]")
        qkv_main(a, layer)
        pst(a,2)
        if "clk" in EXP: a("s_memtime s[98:99]")
        qkv_tail(a, layer)
        pst(a,5)
        a(f"s_mul_i32 s40, s61, 51200\n v_add_u32 v21, s40, {VL16}")
        if last:
            p6_prep(a)
        else:
            xtile_base(a, "s64")
            a(f"s_add_u32 s66, s64, {X1}\n s_add_u32 s64, s64, {X2}\n s_mov_b32 s65, {PV2}")
            xe_prep(a, False, "s66")
            fft_prep(a, False)
        pst(a,6)
        pflush(a,k)
        ao_main(a, layer)
        pst(a,0)
        if last:
            p6_epilogue(a)
            pst(a,1)
            if STAMPS: a("s_waitcnt vmcnt(0)")
            pst(a,2)
            pflush(a,k+1)
        else:
            xtype_epilogue(a, "s64", True, "s65")
            pst(a,6)
            if "xe" in EXP: pflush(a,6)
    fft_phase(0,1)
    attn_phase(0,2)
    fft_phase(1,3)
    attn_phase(1,4)

def build(path):
    n=NAME+"_kernel"
    a=Asm(); a.late=[]
    a.l.append(f".globl {n}\n.p2align 8\n.type {n},@function")
    a.label(n)
    prologue(a)
    if STAMPS:
        for i in range(84,100): a(f"s_mov_b32 s{i}, 0")
    body(a)
    a.label("kexit")
    a("s_endpgm")
    for f in a.late: f()
    a.label("kend")
    hdr=open("cdna_kernels/"+NAME+".s.ref").read().split("; Override")[0]
    txt=hdr+"; @launch grid=(256,1,1) block=(512,1,1) lds=163840\n"+'.amdgcn_target "amdgcn-amd-amdhsa--gfx950"\n.text\n'+a.text()
    txt+=f""".section .rodata,"a"
.p2align 6
.amdhsa_kernel {n}
  .amdhsa_next_free_vgpr 256
  .amdhsa_next_free_sgpr 102
  .amdhsa_accum_offset 256
  .amdhsa_group_segment_fixed_size 0
  .amdhsa_kernarg_size 72
  .amdhsa_user_sgpr_count 2
  .amdhsa_user_sgpr_kernarg_segment_ptr 1
  .amdhsa_system_sgpr_workgroup_id_x 1
.end_amdhsa_kernel
"""
    open(path,"w").write(txt)

if __name__=="__main__":
    if len(sys.argv)>2 and sys.argv[2]=='1': STAMPS=True
    if len(sys.argv)>3: EXP=set(sys.argv[3].split(","))
    EXP ^= DEF
    for e in EXP:
        if e.startswith("rx"): RXS=[int(e[2]),int(e[3])]
    build(sys.argv[1])
```

```python
import sys, math
sys.path.insert(0, "gen")
from asmlib import *

NAME = "interleave_layers__spectral_gfnet__linear_attn_block__prompt"
XB = 2621440
X0, X2, X3 = 0, 2*XB, 3*XB
X1 = 13*XB
O4 = 5*XB
O2 = 4*XB
KVP = 14*XB
Y3 = 6*XB
WT = 11*XB
WQF = 8*XB
WOF = WQF + 32*102400
WOR = WOF + 819200
ZA = 10*XB
CNT0 = ZA
PV0 = ZA + 65536
ZC = KVP + 2*256*1792
PV2 = ZC; VAR1 = PV2 + 32768; VAR3 = VAR1 + 8192
LSS = VAR3 + 8192
CNT1 = LSS + 32768
ZCEND = CNT1 + 5*16384
def CNTB(b): return CNT0 + b*16384 if b<2 else CNT1 + (b-1)*16384
RXS = [4,2]
DBGW = 10*XB + 1048576
WS_SIZE = 15*XB
OOB = 0x7ff00000

SW,SX,SA,ST,SI = "s3","s4","s5","s6","s7"
SH = "s71"
SR = "s80"
SROT = "s68"
R_X,R_WR,R_WI,R_WQKV,R_WO,R_OUT,R_WS,R_DBG = ["s[%d:%d]"%(8+4*i,11+4*i) for i in range(8)]
VL,VN,VG,VL16 = "v1","v2","v3","v4"
M16 = "v_mfma_f32_16x16x32_bf16"
STAMPS = False
EXP = set()
DEF = {'early','wtouch'}

def OSF(): return 'sc1' if 'osc1' in EXP else 'nt' if 'ont' in EXP else ''
def pst(a, i):
    if STAMPS: a(f"s_memrealtime s[{84+2*i}:{85+2*i}]")
DSEL = {(0,0):1,(0,3):2,(0,5):3,(0,6):5,(1,3):6,(2,1):7,(2,2):8,(3,7):9,(3,6):10,(3,3):11,(4,1):12,(4,2):13,(5,7):14,(5,2):15}
def pflush(a, k):
    if not STAMPS: return
    if "dbg" in EXP:
        L=a.newlabel("df")
        a(f"s_waitcnt lgkmcnt(0)\n s_cmp_lg_u32 {SW}, 4\n s_cbranch_scc1 {L}\n s_and_b32 s58, s2, 0x38\n s_cmp_lg_u32 s58, 0\n s_cbranch_scc1 {L}\n s_mov_b64 exec, 1")
        for (kk,i),w in DSEL.items():
            if kk!=k: continue
            if w==1: a(f"s_not_b32 s{84+2*i}, s{84+2*i}")
            a(f"v_mov_b32 v254, s{84+2*i}\n v_mov_b32 v255, {4*w}\n buffer_atomic_umax v254, v255, {R_DBG}, 0 offen sc1\n s_nop 1")
        a("s_mov_b64 exec, -1")
        a.label(L)
        for i in range(84,100): a(f"s_mov_b32 s{i}, 0")
        return
    a("s_waitcnt lgkmcnt(0)")
    a(f"""
    s_lshl_b32 s58, s2, 3
    s_add_u32 s58, s58, {SW}
    s_lshl_b32 s58, s58, 5
    s_add_u32 s58, s58, {DBGW + k*65536}
    v_lshlrev_b32 v255, 2, {VL}
    """)
    for i in range(8): a(f"v_writelane_b32 v254, s{84+2*i}, {i}")
    a(f"""
    s_mov_b64 exec, 0xff
    buffer_store_dword v254, v255, {R_WS}, s58 offen
    s_mov_b64 exec, -1
    """)
    for i in range(84,100): a(f"s_mov_b32 s{i}, 0")

def prologue(a):
    a(f"""
    s_cmp_ge_u32 s2, 256
    s_cbranch_scc1 kexit
    s_load_dwordx16 s[40:55], s[0:1], 0
    s_load_dwordx2 s[56:57], s[0:1], 64
    v_and_b32 {VL}, 63, v0
    v_lshrrev_b32 v5, 6, v0
    v_and_b32 {VN}, 15, v0
    v_bfe_u32 {VG}, v0, 4, 2
    v_readfirstlane_b32 {SW}, v5
    v_lshlrev_b32 {VL16}, 4, {VL}
    s_and_b32 {SX}, s2, 7
    s_bfe_u32 {SA}, s2, 0x20003
    s_lshr_b32 {ST}, s2, 5
    s_lshl_b32 {SI}, {SX}, 2
    s_add_u32 {SI}, {SI}, {SA}
    s_mov_b32 s83, 0
    s_mov_b32 s79, 0
    s_mov_b32 s69, 0
    s_mov_b32 s70, 0
    v_mov_b32 v252, 0
    v_mov_b32 v244, 0
    s_and_b32 s60, {SW}, 3
    s_lshr_b32 s61, {SW}, 2
    s_and_b32 s62, {SW}, 1
    s_lshl_b32 s62, s62, 2
    s_bfe_u32 s63, {SW}, 0x10001
    s_and_b32 s72, {ST}, 1
    s_lshl_b32 s72, s72, 2
    s_add_u32 s72, s72, {SX}
    s_and_b32 s72, s72, 7
    s_lshl_b32 s73, {SA}, 3
    s_add_u32 s72, s72, s73
    s_mul_i32 s73, {ST}, 20
    s_add_u32 s73, s73, s72
    s_waitcnt lgkmcnt(0)
    """)
    for srd, src, size in ((8,40,2621440),(32,56,WS_SIZE),(20,48,2457600),(12,42,1314816),(16,44,1314816),(24,50,819200),(28,52,2621440),(36,54,256)):
        a(f"""
        s_mov_b32 s{srd}, s{src}
        s_and_b32 s{srd+1}, s{src+1}, 0xffff
        s_mov_b32 s{srd+2}, {size}
        s_mov_b32 s{srd+3}, 0x20000
        """)

def zero_issue(a):
    L = a.newlabel("zi")
    a(f"""
    s_cmp_lg_u32 s2, 0
    s_cbranch_scc1 {L}
    s_cmp_lg_u32 {SW}, 6
    s_cbranch_scc1 {L}
    v_mov_b32 v8, 0
    v_mov_b32 v9, 0
    v_mov_b32 v10, 0
    v_mov_b32 v11, 0
    s_mov_b32 s42, {CNT0}
    v_lshlrev_b32 v12, 8, {VL}
    buffer_store_dword v8, v12, {R_WS}, s42 offen sc1
    s_mov_b32 s42, {CNT0+16384}
    buffer_store_dword v8, v12, {R_WS}, s42 offen sc1
    """)
    a.label(L)

def zero_signal(a):
    L = a.newlabel("zs")
    a(f"""
    s_cmp_lg_u32 s2, 0
    s_cbranch_scc1 {L}
    s_cmp_lg_u32 {SW}, 6
    s_cbranch_scc1 {L}
    s_waitcnt vmcnt(0)
    v_mov_b32 v254, 1
    v_mov_b32 v255, 0
    s_mov_b64 exec, 1
    buffer_store_dword v254, v255, {R_DBG}, 0 offen sc1
    s_mov_b64 exec, -1
    {L}:
    """)

def zfill(a, base, nchunks, rounds, zr):
    for k in range(4): a(f"v_mov_b32 v{zr+k}, 0")
    a(f"""
    s_lshl_b32 s40, {SW}, 8
    s_add_u32 s40, s40, s2
    s_lshl_b32 s41, s40, 10
    s_add_u32 s41, s41, {base}
    """)
    L=a.newlabel("zf")
    for i in range(rounds):
        if (i+1)*2048>nchunks: a(f"s_cmp_ge_u32 s40, {nchunks-i*2048}\n s_cbranch_scc1 {L}")
        a(f"buffer_store_dwordx4 {v(zr,4)}, {VL16}, {R_WS}, s41 offen sc1")
        if i<rounds-1: a(f"s_add_u32 s41, s41, {2048*1024}")
    a.label(L)

SPIN = 40000
def retry_check(a, Lfail_tag, Lback, Ldone, tag):
    a(f"""
    s_cmp_lg_u32 s83, 0
    s_cbranch_scc1 {Ldone}
    {'s_sleep 4' if 'sleep' in EXP else ''}
    s_sub_u32 s58, s58, 1
    s_cmp_lg_u32 s58, 0
    s_cbranch_scc1 {Lback}
    s_mov_b32 s83, {tag}
    v_mov_b32 v254, {tag}
    v_mov_b32 v255, 16
    buffer_store_dword v254, v255, {R_DBG}, 0 offen
    s_branch {Ldone}
    """)

def poll(a, srd, soff, vaddr, target, tag):
    Lp=a.newlabel("poll"); Ld=a.newlabel("polld")
    a(f"""
    s_mov_b32 s58, {SPIN}
    s_cmp_lg_u32 s83, 0
    s_cbranch_scc1 {Ld}
    {Lp}:
    buffer_load_dword v254, {vaddr}, {srd}, {soff} offen sc1
    s_waitcnt vmcnt(0)
    v_cmp_gt_u32 vcc, {target}, v254
    s_cmp_eq_u64 vcc, 0
    s_cbranch_scc1 {Ld}
    s_sub_u32 s58, s58, 1
    s_cmp_lg_u32 s58, 0
    s_cbranch_scc1 {Lp}
    s_mov_b32 s83, {tag}
    v_mov_b32 v254, {tag}
    v_mov_b32 v255, 16
    buffer_store_dword v254, v255, {R_DBG}, 0 offen
    {Ld}:
    """)

def init_probe(a):
    L=a.newlabel("ip")
    a(f"""
    s_cmp_lg_u32 {SW}, 6
    s_cbranch_scc1 {L}
    v_mov_b32 v255, 0
    buffer_load_dword v253, v255, {R_DBG}, 0 offen sc1
    {L}:
    """)

def init_wait(a):
    L=a.newlabel("iw")
    a(f"""
    v_cmp_gt_u32 vcc, 1, v253
    s_cmp_eq_u64 vcc, 0
    s_cbranch_scc1 {L}
    v_mov_b32 v255, 0
    """)
    poll(a, R_DBG, 0, "v255", 1, 100)
    a.label(L)

def drain(a): a("s_waitcnt vmcnt(0) lgkmcnt(0)\n s_barrier")

def arrive(a, beta):
    L=a.newlabel("arr")
    a(f"""
    s_cmp_lg_u32 {SW}, 6
    s_cbranch_scc1 {L}
    s_and_b32 s59, s2, 15
    s_lshl_b32 s59, s59, 8
    s_add_u32 s59, s59, {CNTB(beta)}
    v_lshlrev_b32 v255, 12, {VL}
    v_mov_b32 v254, 1
    s_mov_b64 exec, 15
    buffer_atomic_add v254, v255, {R_WS}, s59 offen sc1
    s_mov_b64 exec, -1
    {L}:
    """)

def bar_target(a, beta):
    lo = 4 if beta in (3,5) else 12
    a(f"v_cmp_gt_u32 vcc, 8, {VN}\n v_mov_b32 v253, {lo}\n v_cndmask_b32 v253, 8, v253, vcc")

def wait(a, beta, bar=True, target=16):
    L=a.newlabel("wt")
    a(f"""
    s_cmp_lg_u32 {SW}, 7
    s_cbranch_scc1 {L}
    s_and_b32 s59, s2, 3
    s_lshl_b32 s59, s59, 12
    s_add_u32 s59, s59, {CNTB(beta)}
    v_lshlrev_b32 v255, 8, {VN}
    """)
    if beta in (2,3,4,5):
        bar_target(a, beta); target="v253"
    poll(a, R_WS, "s59", "v255", target, beta+1)
    a.label(L)
    if bar: a("s_barrier")

def larrive(a, soff):
    a(f"""
    v_mov_b32 v255, 0
    v_mov_b32 v254, 1
    s_mov_b64 exec, 1
    buffer_atomic_add v254, v255, {R_WS}, {soff} offen sc1
    s_mov_b64 exec, -1
    """)

FT = 0
AL = 51200
RS = 102400
VARL = 147456
def gen_ftile(a, selector=False, mid=None):
    Lp=a.newlabel("ft")
    a(f"s_mov_b32 s40, {SW}")
    if not selector:
        a(f"""
        v_and_b32 v8, 1, {VN}
        v_cvt_f32_u32 v8, v8
        v_mul_f32 v8, 0.25, v8
        v_lshrrev_b32 v9, 1, {VN}
        s_mul_i32 s44, {ST}, 40
        s_add_u32 s44, s44, 1
        v_add_u32 v9, s44, v9
        v_lshlrev_b32 v10, 3, {VG}
        s_mov_b32 s45, {f2u(1.0/640)}
        v_mov_b32 v28, 0.125
        v_sub_f32 v29, 0.5, v8
        v_sub_f32 v29, v29, v8
        """)
    else:
        a(f"""
        v_lshrrev_b32 v9, 2, {VN}
        v_mul_u32_u24 v9, 20, v9
        v_and_b32 v8, 3, {VN}
        v_add_u32 v9, v9, v8
        s_and_b32 s44, {ST}, 3
        s_mul_i32 s44, s44, 80
        v_add_u32 v9, s44, v9
        v_lshlrev_b32 v10, 3, {VG}
        v_sub_u32 v9, v9, v10
        v_mov_b32 v28, 0x3f80
        v_mov_b32 v29, 0x3f800000
        """)
    a.label(Lp)
    a(f"""
    s_mul_i32 s41, s40, 52
    s_lshr_b32 s41, s41, 8
    s_mul_i32 s42, s41, 5
    s_sub_u32 s42, s40, s42
    s_lshl_b32 s43, s40, 10
    v_add_u32 v30, s43, {VL16}
    """)
    if not selector:
        a(f"""
        s_lshl_b32 s42, s42, 3
        s_lshl_b32 s41, s41, 5
        v_add_u32 v11, s42, v9
        v_add_u32 v12, s41, v10
        v_cmp_eq_u32 vcc, 0x140, v11
        v_cvt_f32_u32 v13, v11
        v_cvt_f32_u32 v12, v12
        v_mul_f32 v13, s45, v13
        v_cndmask_b32 v14, v8, v28, vcc
        v_cndmask_b32 v13, v13, v29, vcc
        v_fma_f32 v16, v12, v13, v14
        v_cos_f32 v15, v13
        v_add_f32 v17, v16, v13
        v_cos_f32 v16, v16
        v_cos_f32 v17, v17
        v_add_f32 v15, v15, v15
        """)
        for i in range(2,8): a(f"v_fma_f32 v{16+i}, v15, v{15+i}, -v{14+i}")
        for i in range(4): a(f"v_cvt_pk_bf16_f32 v{24+i}, v{16+2*i}, v{17+2*i}")
    else:
        a(f"""
        s_lshl_b32 s42, s42, 2
        s_lshl_b32 s41, s41, 5
        s_sub_u32 s42, s42, s41
        v_add_u32 v11, s42, v9
        """)
        for q in range(4):
            a(f"""
            v_cmp_eq_u32 vcc, {2*q}, v11
            v_cndmask_b32 v{24+q}, 0, v28, vcc
            v_cmp_eq_u32 vcc, {2*q+1}, v11
            v_cndmask_b32 v{24+q}, v{24+q}, v29, vcc
            """)
    a(f"""
    ds_write_b128 v30, v[24:27] offset:{FT}
    s_add_u32 s40, s40, 8
    s_cmp_lt_u32 s40, 50
    s_cbranch_scc1 {Lp}
    """)

def l2_touch(a):
    L1=a.newlabel("tc1"); L2=a.newlabel("tc2"); L3=a.newlabel("tc3"); L4=a.newlabel("tc4")
    a(f"""
    s_cmp_ge_u32 {SW}, 4
    s_cbranch_scc1 {L3}
    v_lshlrev_b32 v8, 7, {VL}
    s_cmp_eq_u32 {SW}, 3
    s_cbranch_scc1 {L4}
    s_cmp_eq_u32 {SW}, {99 if 'wtouch' not in EXP else 2}
    s_cbranch_scc0 {L2}
    s_mul_i32 s40, s2, {41*128}
    v_min_u32 v9, {40*128}, v8
    buffer_load_dword v254, v9, {R_WR}, s40 offen
    buffer_load_dword v254, v9, {R_WI}, s40 offen
    s_branch {L2}
    {L4}:
    s_mul_i32 s40, s2, 3200
    v_min_u32 v9, {24*128}, v8
    buffer_load_dword v254, v9, {R_WO}, s40 offen
    s_branch {L2}
    {L3}:
    s_and_b32 s40, {SW}, 1
    s_lshl_b32 s40, s40, 6
    v_add_u32 v8, s40, {VL}
    v_min_u32 v8, 79, v8
    s_cmp_ge_u32 {SW}, 6
    s_cbranch_scc1 {L1}
    v_mul_u32_u24 v9, 205, v8
    v_lshrrev_b32 v9, 11, v9
    v_mul_u32_u24 v10, 10, v9
    v_sub_u32 v10, v8, v10            ; line
    v_and_b32 v11, 3, v9              ; s2&3
    v_lshrrev_b32 v9, 2, v9
    s_lshl_b32 s40, {SA}, 4
    s_lshl_b32 s41, {ST}, 1
    s_add_u32 s40, s40, s41
    v_add_u32 v9, s40, v9             ; s1
    v_lshl_add_u32 v9, v9, 5, v11
    s_lshl_b32 s40, {SX}, 2
    v_add_u32 v9, s40, v9
    v_mul_u32_u24 v9, 1280, v9
    v_lshl_add_u32 v9, v10, 7, v9
    buffer_load_dword v254, v9, {R_X}, 0 offen
    s_branch {L2}
    {L1}:
    s_mul_i32 s40, {ST}, 80
    v_add_u32 v8, s40, v8
    v_mul_u32_u24 v8, 3840, v8
    s_lshl_b32 s40, {SI}, 7
    s_cmp_ge_u32 {SI}, 30
    s_cselect_b32 s40, {OOB}, s40
    buffer_load_dword v254, v8, {R_WQKV}, s40 offen
    {L2}:
    """)

class LQ:
    def __init__(s,a): s.a=a; s.q=[]
    def op(s,text,tag): s.a(text); s.q.append(tag)
    def need(s,*tags):
        idx=[i for i,t in enumerate(s.q) if t in tags]
        if not idx: return
        n=len(s.q)-1-max(idx)
        s.a(f"s_waitcnt lgkmcnt({min(n,15)})")
        s.q=s.q[len(s.q)-min(n,15):] if n else []

AC = 24
SB = 44
PF = 84
WQR = 124
def g640_core(a, swapped, vbase, wait_priv=None):
    def rd(j):
        for nt in range(5):
            a(f"ds_read_b128 {v(SB+20*(j&1)+4*nt,4)}, {vbase} offset:{(j*5+nt)*1024}")
    rd(0)
    for j in range(10):
        if j<9: rd(j+1)
        if wait_priv: wait_priv(j)
        a(f"s_waitcnt lgkmcnt({5 if j<9 else 0})")
        for nt in range(5):
            p=v(PF+4*j,4); s=v(SB+20*(j&1)+4*nt,4); d=v(AC+4*nt,4)
            c = d if j else "0"
            if swapped: a(f"{M16} {d}, {s}, {p}, {c}")
            else:       a(f"{M16} {d}, {p}, {s}, {c}")

def xe_prep(a, fraglin, s_res=None, sign=None):
    a(f"""
    v_lshrrev_b32 v10, 3, {VL}
    v_and_b32 v11, 7, {VL}
    s_lshl_b32 s42, s60, 3
    """)
    if sign: a(f"v_and_b32 {sign}, 2, v10\n v_cvt_f32_u32 {sign}, {sign}\n v_subrev_f32 {sign}, 1.0, {sign}")
    if fraglin:
        a(f"""
        v_lshrrev_b32 v9, 1, v11
        v_lshlrev_b32 v9, 8, v9
        v_lshl_add_u32 v9, v10, 4, v9
        v_and_b32 v8, 1, v11
        v_lshl_add_u32 v9, v8, 3, v9
        s_mul_i32 s43, s61, 5120
        s_lshl_b32 s44, s63, 10
        s_add_u32 s43, s43, s44
        s_lshl_b32 s44, s62, 5
        s_add_u32 s43, s43, s44
        v_add_u32 v9, s43, v9
        """)
    else:
        a(f"""
        s_mul_i32 s43, s61, 40960
        s_lshl_b32 s44, s60, 9
        s_add_u32 s43, s43, s44
        v_lshlrev_b32 v9, 3, {VL}
        v_add_u32 v9, s43, v9
        """)
    a(f"""
    v_xor_b32 v11, v11, v10
    v_lshlrev_b32 v11, 4, v11
    v_lshl_add_u32 v10, v10, 7, v11
    s_mul_i32 s43, s61, 10240
    s_lshl_b32 s44, s60, 10
    s_add_u32 s43, s43, s44
    s_add_u32 s43, s43, {RS}
    v_add_u32 v10, s43, v10
    v_lshlrev_b32 v8, 1, {VG}
    s_lshr_b32 s44, s62, 2
    v_add_u32 v8, s44, v8
    v_and_b32 v11, 7, {VN}
    v_xor_b32 v8, v8, v11
    v_lshlrev_b32 v8, 4, v8
    v_lshl_add_u32 v8, {VN}, 7, v8
    s_mul_i32 s43, s61, 20480
    s_mul_i32 s44, s63, 10240
    s_add_u32 s43, s43, s44
    s_add_u32 s43, s43, {RS}
    v_add_u32 v8, s43, v8
    """)
    if s_res:
        a(f"""
        s_add_u32 s46, {s_res}, 4096
        s_cmp_ge_u32 s60, 2
        s_cselect_b32 s46, {OOB}, s46
        buffer_load_dwordx2 v[12:13], v9, {R_WS}, {s_res} offen sc1
        buffer_load_dwordx2 v[14:15], v9, {R_WS}, {s_res} offen offset:2048 sc1
        buffer_load_dwordx2 v[16:17], v9, {R_WS}, s46 offen sc1
        """)

def xtype_epilogue(a, s_dst, res=False, s_var=None, vm0=None, vm1=None, pre_bar=None, AC=AC, T=SB, extra_write=None, extra_work=None):
    for nt in range(5): a(f"ds_write_b128 v8, {v(AC+4*nt,4)} offset:{nt*2048}")
    if s_var:
        a(f"""
        """)
    if extra_write: extra_write()
    a(f"""
    s_add_u32 s46, {s_dst}, 4096
    s_cmp_ge_u32 s60, 2
    s_cselect_b32 s46, {OOB}, s46
    s_cselect_b32 s47, 0, 1.0
    """)
    if res:
        a("s_waitcnt vmcnt(0)")
        for q in range(6):
            a(f"v_lshlrev_b32 v{T+24+2*q}, 16, v{12+q}")
            a(f"v_and_b32 v{T+25+2*q}, 0xffff0000, v{12+q}")
    if s_var:
        a(f"""
        v_mov_b32 v18, s47
        s_cmp_eq_u32 {ST}, 7
        s_cselect_b32 s47, 1, 99
        s_cmp_eq_u32 s60, s47
        s_cselect_b32 s47, 7, 99
        v_lshrrev_b32 v19, 3, {VL}
        v_cmp_ne_u32 vcc, s47, v19
        v_cndmask_b32 v18, 0, v18, vcc
        v_and_b32 v20, 7, {VL}
        v_lshlrev_b32 v20, 4, v20
        v_lshl_add_u32 v20, {VG}, 2, v20
        s_lshl_b32 s47, s61, 7
        s_lshl_b32 s45, s60, 8
        s_add_u32 s47, s47, s45
        s_add_u32 s47, s47, {VARL}
        v_add_u32 v20, s47, v20
        """)
    D = ("xe" in EXP and res)
    if D: pst(a,1)
    a("s_waitcnt lgkmcnt(0)")
    if D: pst(a,2)
    a("s_barrier")
    if D: pst(a,3)
    for k in range(3):
        a(f"ds_read_b128 {v(T+4*k,4)}, v10 offset:{4096*k}")
        a(f"ds_read_b128 {v(T+12+4*k,4)}, v10 offset:{20480+4096*k}")
    for k in range(3):
        a(f"s_waitcnt lgkmcnt({4-2*k})")
        for i in range(4*k,4*k+4):
            if vm0: a(f"v_mul_f32 v{T+i}, {vm0}, v{T+i}")
            if vm1: a(f"v_fma_f32 v{T+i}, {vm1}, v{T+12+i}, v{T+i}")
            else: a(f"v_add_f32 v{T+i}, v{T+i}, v{T+12+i}")
            if res: a(f"v_add_f32 v{T+i}, v{T+i}, v{T+24+i}")
        a(f"v_cvt_pk_bf16_f32 v{12+2*k}, v{T+4*k}, v{T+4*k+1}")
        a(f"v_cvt_pk_bf16_f32 v{13+2*k}, v{T+4*k+2}, v{T+4*k+3}")
        if s_var: a(f"v_max_u32 v{12+2*k}, 1, v{12+2*k}\n v_max_u32 v{13+2*k}, 1, v{13+2*k}")
        if k<2: a(f"buffer_store_dwordx2 {v(12+2*k,2)}, v9, {R_WS}, {s_dst} offen offset:{2048*k} sc1")
        else: a(f"buffer_store_dwordx2 {v(12+2*k,2)}, v9, {R_WS}, s46 offen sc1")
    if D: pst(a,4)
    if s_var:
        a("v_cmp_lt_f32 vcc, 0, v18")
        for i in range(4): a(f"v_mul_f32 v{T+i}, v{T+i}, v{T+i}")
        for i in range(4): a(f"v_cndmask_b32 v{T+8+i}, 0, v{T+8+i}, vcc")
        for i in range(4): a(f"v_fmac_f32 v{T+i}, v{T+4+i}, v{T+4+i}")
        for i in range(4): a(f"v_fmac_f32 v{T+i}, v{T+8+i}, v{T+8+i}")
        a(f"""
        v_permlane32_swap_b32 v{T}, v{T+2}
        v_permlane32_swap_b32 v{T+1}, v{T+3}
        v_add_f32 v{T}, v{T}, v{T+2}
        v_add_f32 v{T+1}, v{T+1}, v{T+3}
        v_permlane16_swap_b32 v{T}, v{T+1}
        v_add_f32 v{T}, v{T}, v{T+1}
        v_add_f32_dpp v{T}, v{T}, v{T} row_ror:8 row_mask:0xf bank_mask:0xf
        ds_write_b32 v20, v{T}
        """)
        Ls=a.newlabel("xv")
        if pre_bar: pre_bar()
        a(f"""
        v_lshlrev_b32 v18, 3, {VL}
        v_add_u32 v18, {VARL}, v18
        v_lshlrev_b32 v11, 2, {VL}
        s_lshl_b32 s47, {ST}, 12
        s_lshl_b32 s46, {SI}, 7
        s_add_u32 s47, s47, s46
        s_add_u32 s47, s47, {s_var}
        s_waitcnt lgkmcnt(0)
        s_barrier
        s_cmp_lg_u32 {SW}, 6
        s_cbranch_scc1 {Ls}
        ds_read_b64 {v(T,2)}, v18
        ds_read_b64 {v(T+2,2)}, v18 offset:256
        ds_read_b64 {v(T+4,2)}, v18 offset:512
        ds_read_b64 {v(T+6,2)}, v18 offset:768
        s_waitcnt lgkmcnt(0)
        v_add_f32 v{T}, v{T}, v{T+2}
        v_add_f32 v{T+1}, v{T+1}, v{T+3}
        v_add_f32 v{T+4}, v{T+4}, v{T+6}
        v_add_f32 v{T+5}, v{T+5}, v{T+7}
        v_add_f32 v{T}, v{T}, v{T+4}
        v_add_f32 v{T+1}, v{T+1}, v{T+5}
        v_cvt_pk_bf16_f32 v10, v{T}, v{T+1}
        v_max_u32 v10, 1, v10
        s_mov_b32 exec_hi, 0
        buffer_store_dword v10, v11, {R_WS}, s47 offen sc1
        s_mov_b32 exec_hi, -1
        {Ls}:
        """)
    if extra_work: extra_work()

def mu_pos(a, dst, s_a, tmp, src=VN):
    a(f"""
    v_lshrrev_b32 {tmp}, 2, {src}
    v_and_b32 {dst}, 3, {src}
    v_lshl_add_u32 {dst}, {tmp}, 3, {dst}
    v_add_u32 {dst}, {s_a}, {dst}
    """)

def vsign(a, dst):
    a(f"""
    v_and_b32 {dst}, 2, {VN}
    v_cvt_f32_u32 {dst}, {dst}
    v_subrev_f32 {dst}, 1.0, {dst}
    """)

def rows_dma(a, srd, rowfn, defer=False):
    a(f"""
    v_lshrrev_b32 v8, 3, {VL}
    v_add_u32 v9, 8, v8
    """)
    rowfn("v6","v8"); rowfn("v7","v9")
    a(f"""
    s_movk_i32 s41, 1280
    v_mul_lo_u32 v6, v6, s41
    v_mul_lo_u32 v7, v7, s41
    v_and_b32 v9, 6, v8
    v_and_b32 v10, 7, {VL}
    v_xor_b32 v9, v9, v10
    v_lshl_add_u32 v6, v9, 4, v6
    v_lshl_add_u32 v7, v9, 4, v7
    s_mul_i32 s52, s61, 640
    s_mul_i32 s53, {SW}, 10240
    s_add_u32 s53, s53, {AL}
    """)
    def ch(c):
        for hf in range(2):
            a(f"s_add_u32 m0, s53, {2048*c+1024*hf-128*c}")
            a(f"buffer_load_dwordx4 v{6+hf}, {srd}, s52 offen offset:{128*c} lds")
    if defer: return ch
    for c in range(5): ch(c)

def rows_read(a, later_vm):
    a(f"""
    v_and_b32 v6, 6, {VN}
    v_xor_b32 v6, v6, {VG}
    v_lshlrev_b32 v6, 4, v6
    v_lshl_add_u32 v6, {VN}, 7, v6
    s_mul_i32 s41, {SW}, 10240
    s_add_u32 s41, s41, {AL}
    v_add_u32 v6, s41, v6
    v_xor_b32 v7, 64, v6
    s_waitcnt vmcnt({later_vm})
    """)
    for j in range(10):
        a(f"ds_read_b128 {v(PF+4*j,4)}, v{6+(j&1)} offset:{2048*(j>>1)}")

def tok_row(a):
    def fn(dst, m):
        a(f"""
        s_lshl_b32 s42, {SA}, 1
        s_add_u32 s42, s42, s63
        s_lshl_b32 s42, s42, 3
        s_add_u32 s42, s42, s62
        s_lshl_b32 s42, s42, 5
        s_lshl_b32 s43, {SX}, 2
        s_add_u32 s42, s42, s43
        v_and_b32 {dst}, 3, {m}
        v_lshlrev_b32 {dst}, 5, {dst}
        v_lshrrev_b32 v11, 2, {m}
        v_add3_u32 {dst}, {dst}, v11, s42
        """)
    return fn

def xtile_base(a, dst):
    a(f"""
    s_mul_i32 {dst}, {SI}, 81920
    s_mul_i32 s40, {ST}, 5120
    s_add_u32 {dst}, {dst}, s40
    """)

def wo_job(a, selector):
    def fn(dst, m):
        a(f"""
        s_lshl_b32 s40, s66, 1
        s_add_u32 s40, s40, s63
        s_lshl_b32 s40, s40, 5
        s_add_u32 s40, s40, s62
        """)
        mu_pos(a, dst, "s40", "v11", m)
    rows_dma(a, R_WO, fn)
    if selector: gen_ftile(a, True)
    xe_prep(a, True, sign="v22")
    rows_read(a, 0)
    a("s_waitcnt lgkmcnt(0)\n s_barrier")
    g640_core(a, False, VL16)
    a(f"""
    s_mul_i32 s64, {ST}, 102400
    s_mul_i32 s65, s66, 10240
    s_add_u32 s64, s64, s65
    s_add_u32 s64, s64, {WOR if selector else WOF}
    """)
    if selector:
        a(f"""
        s_cmp_ge_u32 {ST}, 4
        s_cselect_b32 s40, 0, 1.0
        s_cselect_b32 s41, 1.0, 0
        v_mov_b32 v22, s40
        v_mov_b32 v23, s41
        """)
        xtype_epilogue(a, "s64", vm0="v22", vm1="v23")
    else:
        xtype_epilogue(a, "s64", vm1="v22")

WQL = AL
def wq_loads(a, defer=False):
    a(f"""
    v_lshrrev_b32 v22, 3, {VL}
    v_and_b32 v23, 2, v22
    v_and_b32 v21, 7, {VL}
    v_xor_b32 v23, v23, v21
    s_movk_i32 s41, 3840
    v_mul_lo_u32 v22, v22, s41
    v_lshl_add_u32 v22, v23, 4, v22
    v_xor_b32 v23, 64, v22
    s_mul_i32 s54, {SW}, {80*3840}
    s_lshl_b32 s41, {SI}, 7
    s_add_u32 s54, s54, s41
    s_cmp_ge_u32 {SI}, 30
    s_cselect_b32 s54, {OOB}, s54
    """)
    def ld(j):
        a(f"buffer_load_dwordx4 {v(WQR+4*j,4)}, v{22+(j&1)}, {R_WQKV}, s54 offen")
        if j<9: a(f"s_add_u32 s54, s54, {8*3840}")
    return ld

def wq_stage(a):
    a(f"""
    s_mul_i32 s41, {SW}, 10240
    s_add_u32 s41, s41, {WQL}
    v_add_u32 v6, s41, {VL16}
    """)
    for j in range(10): a(f"ds_write_b128 v6, {v(WQR+4*j,4)} offset:{1024*j}")

ACQ = AC
RS2 = 133120
def q_core(a):
    a(f"""
    v_lshrrev_b32 v7, 2, {VN}
    v_lshl_add_u32 v6, {VG}, 3, v7
    v_lshlrev_b32 v6, 7, v6
    v_lshrrev_b32 v7, 1, v7
    v_and_b32 v11, 1, {VG}
    v_lshl_add_u32 v7, v11, 1, v7
    v_xor_b32 v7, s60, v7
    v_lshl_add_u32 v6, v7, 5, v6
    v_and_b32 v7, 3, {VN}
    v_lshl_add_u32 v7, v7, 3, v6
    s_mul_i32 s40, s61, 40960
    s_add_u32 s40, s40, {WQL}
    v_add_u32 v7, s40, v7
    """)
    L=a.newlabel("bz")
    a(f"s_cmp_lg_u32 {SW}, 6\n s_cbranch_scc1 {L}")
    init_wait(a)
    a.label(L)
    drain(a)
    arrive(a, 0)
    for j in range(10):
        a(f"ds_read_b64_tr_b16 {v(PF+4*j,2)}, v7 offset:{4096*j}")
        a(f"ds_read_b64_tr_b16 {v(PF+4*j+2,2)}, v7 offset:{4096*j+512}")
        if j%4==3: a("s_waitcnt lgkmcnt(4)")
    zfill(a, KVP, (ZCEND-KVP)//1024, 1, 12)
    g640_core(a, True, VL16)

def wq_write(a):
    L1=a.newlabel("wq1")
    a(f"""
    s_mul_i32 s40, s60, 5120
    s_add_u32 s40, s40, {RS2}
    v_add_u32 v7, s40, {VL16}
    s_cmp_eq_u32 s61, 0
    s_cbranch_scc1 {L1}
    """)
    for nt in range(5): a(f"ds_write_b128 v7, {v(ACQ+4*nt,4)} offset:{nt*1024}")
    a.label(L1)

def wq_fin(a):
    L2=a.newlabel("wq2"); LZ=a.newlabel("wqz")
    a(f"""
    s_cmp_ge_u32 {SI}, 30
    s_cbranch_scc1 {L2}
    s_cmp_lg_u32 s61, 0
    s_cbranch_scc1 {L2}
    """)
    for nt in range(5): a(f"ds_read_b128 {v(SB+4*nt,4)}, v7 offset:{nt*1024}")
    a(f"""
    v_lshrrev_b32 v12, 1, {VG}
    v_mul_u32_u24 v10, 40960, v12
    v_lshl_add_u32 v10, {VN}, 4, v10
    v_and_b32 v12, 1, {VG}
    v_lshl_add_u32 v10, v12, 3, v10
    s_mul_i32 s40, {ST}, {5*81920}
    s_lshl_b32 s41, {SI}, 10
    s_add_u32 s40, s40, s41
    s_lshl_b32 s41, s60, 8
    s_add_u32 s40, s40, s41
    s_add_u32 s40, s40, {WQF}
    s_mov_b32 s42, {f2u(2.0/640)}
    v_mov_b32 v12, s42
    s_cmp_eq_u32 {ST}, 7
    s_cselect_b32 s43, 3, 99
    v_cmp_ne_u32 vcc, s43, {VG}
    v_cndmask_b32 v12, 0, v12, vcc
    s_mul_i32 s44, {ST}, 5
    s_waitcnt lgkmcnt(0)
    """)
    for nt in range(5):
        if nt: a("s_add_u32 s40, s40, 81920")
        for i in range(4):
            op = "v_sub_f32" if i<2 else "v_add_f32"
            a(f"{op} v{16+i}, v{AC+4*nt+i}, v{SB+4*nt+i}")
            a(f"v_mul_f32 v{16+i}, {'v12' if (nt==4 and i==3) else 's42'}, v{16+i}")
        a(f"v_cvt_pk_bf16_f32 v{20+2*(nt&1)}, v16, v17")
        a(f"v_cvt_pk_bf16_f32 v{21+2*(nt&1)}, v18, v19")
        a(f"buffer_store_dwordx2 {v(20+2*(nt&1),2)}, v10, {R_WS}, s40 offen sc1")
    a.label(L2)

def gcol_job(a):
    Lp=a.newlabel("gc")
    a(f"""
    s_sub_u32 s42, s66, 10
    s_lshl_b32 s42, s42, 3
    s_add_u32 s42, s42, {ST}
    s_lshl_b32 s42, s42, 3
    s_add_u32 s42, s42, {SW}
    v_lshl_add_u32 v10, {VG}, 2, 1
    v_mul_u32_u24 v9, 40960, {VG}
    v_lshl_add_u32 v9, {VN}, 4, v9
    v_mov_b32 v29, 0x3f353f35
    {Lp}:
    s_mul_i32 s40, s42, 1639
    s_lshr_b32 s40, s40, 16           ; kstep
    s_mul_i32 s41, s40, 40
    s_sub_u32 s41, s42, s41           ; dtile
    s_lshl_b32 s43, s41, 4
    v_add_u32 v8, s43, {VN}
    v_cvt_f32_u32 v8, v8
    v_mul_f32 v8, {f2u(1/640)}, v8
    s_lshl_b32 s43, s40, 4
    v_add_u32 v11, s43, v10
    v_cvt_f32_u32 v12, v11
    v_cmp_eq_u32 vcc, 0x13d, v11
    s_mul_i32 s43, s40, {4*40960}
    s_lshl_b32 s41, s41, 8
    s_add_u32 s43, s43, s41
    s_add_u32 s43, s43, {WQF+1920*16}
    v_mul_f32 v16, v12, v8
    v_fract_f32 v16, v16
    v_add_f32 v17, v16, v8
    v_fma_f32 v18, 2.0, v8, v16
    v_add_f32 v19, v18, v8
    """)
    for i in range(4): a(f"v_sin_f32 v{20+i}, -v{16+i}")
    for i in range(4): a(f"v_cos_f32 v{16+i}, v{16+i}")
    for i in range(4): a(f"v_cvt_pk_bf16_f32 v{32+i}, v{16+i}, v{20+i}")
    a(f"""
    v_and_b32 v28, 0x8000, v35
    v_or_b32 v28, v28, v29
    v_cndmask_b32 v35, v35, v28, vcc
    buffer_store_dwordx4 v[32:35], v9, {R_WS}, s43 offen sc1
    s_add_u32 s42, s42, 128
    s_cmp_lt_u32 s42, 800
    s_cbranch_scc1 {Lp}
    """)

WTR = 164
WTX = 84
def wt_loads(a):
    L=a.newlabel("wtl")
    a(f"""
    """)
    if 'wtside' in EXP:
        a(f"""
        s_cmp_lt_u32 s72, 20
        s_cbranch_scc1 {L}
        s_sub_u32 s79, s72, 20
        s_lshl_b32 s79, s79, 3
        s_add_u32 s79, s79, {ST}
        s_lshl_b32 s79, s79, 3
        s_add_u32 s79, s79, {SW}
        """)
    else:
        a(f"""
        s_cmp_ge_u32 {SW}, 3
        s_cbranch_scc1 {L}
        s_mul_i32 s79, s2, 3
        s_add_u32 s79, s79, {SW}
        """)
    a(f"""
    s_mul_i32 s69, s79, 5462
    s_lshr_b32 s69, s69, 16           ; j1 = task/12
    s_mul_i32 s40, s69, 12
    s_sub_u32 s70, s79, s40
    v_bfe_u32 v6, {VL}, 3, 1
    v_lshrrev_b32 v7, 4, {VL}
    v_lshl_add_u32 v5, v6, 2, v7
    s_mov_b32 s41, {64*642}
    v_mul_lo_u32 v6, v5, s41
    v_and_b32 v7, 7, {VL}
    v_lshl_add_u32 v6, v7, 4, v6
    s_mul_i32 s40, s69, 642
    s_andn2_b32 s40, s40, 127
    s_lshr_b32 s41, s70, 1
    s_lshl_b32 s41, s41, 7
    s_add_u32 s40, s40, s41
    s_and_b32 s41, s70, 1
    s_mul_i32 s41, s41, {16*64*642}
    s_add_u32 s40, s40, s41
    s_add_u32 s41, s40, {8*64*642}
    buffer_load_dwordx4 {v(WTX,4)}, v6, {R_WR}, s40 offen
    buffer_load_dwordx4 {v(WTX+4,4)}, v6, {R_WI}, s40 offen
    buffer_load_dwordx4 {v(WTX+8,4)}, v6, {R_WR}, s41 offen
    buffer_load_dwordx4 {v(WTX+12,4)}, v6, {R_WI}, s41 offen
    {L}:
    """)

def wor_loads(a):
    L=a.newlabel("wol")
    a(f"""
    s_sub_u32 s67, s72, 20
    s_lshl_b32 s67, s67, 3
    s_add_u32 s67, s67, {ST}
    s_lshl_b32 s67, s67, 3
    s_add_u32 s67, s67, {SW}
    v_and_b32 v7, 7, {VL}
    ; WoR: task = (R16 = task/10 (16 rows), lam = task%10): rows hd = 16R + 8*(rho&1) + 4*ld + (rho>>1)
    s_mul_i32 s42, s67, 6554
    s_lshr_b32 s42, s42, 16
    s_mul_i32 s43, s42, 10
    s_sub_u32 s43, s67, s43
    v_bfe_u32 v6, {VL}, 3, 1
    v_lshrrev_b32 v8, 4, {VL}
    v_lshl_add_u32 v6, v6, 3, v8
    v_mul_u32_u24 v6, 1280, v6
    v_lshl_add_u32 v6, v7, 4, v6
    s_mul_i32 s40, s42, {16*1280}
    s_lshl_b32 s41, s43, 7
    s_add_u32 s40, s40, s41
    s_add_u32 s41, s40, {4*1280}
    buffer_load_dwordx4 {v(WTR+16,4)}, v6, {R_WO}, s40 offen
    buffer_load_dwordx4 {v(WTR+20,4)}, v6, {R_WO}, s41 offen
    {L}:
    """)

def side_job(a, wor, vm):
    L=a.newlabel("wtskip"); L2=a.newlabel("wos")
    if not wor: a(f"s_cmp_lt_u32 s72, 20\n s_cbranch_scc1 {L}" if 'wtside' in EXP else f"s_cmp_ge_u32 {SW}, 3\n s_cbranch_scc1 {L}")
    a(f"""
    v_and_b32 v6, 3, {VN}
    v_cmp_eq_u32 vcc, v6, {VG}
    v_lshrrev_b32 v6, 2, {VN}
    v_cndmask_b32 v6, 7, v6, vcc
    v_mov_b32 v28, 0x3f80
    v_mov_b32 v29, 0x3f800000
    v_cmp_eq_u32 vcc, 0, v6
    v_cndmask_b32 v8, 0, v28, vcc
    v_cmp_eq_u32 vcc, 1, v6
    v_cndmask_b32 v8, v8, v29, vcc
    v_cmp_eq_u32 vcc, 2, v6
    v_cndmask_b32 v9, 0, v28, vcc
    v_cmp_eq_u32 vcc, 3, v6
    v_cndmask_b32 v9, v9, v29, vcc
    v_mov_b32 v10, 0
    v_mov_b32 v11, 0
    v_mov_b32 v12, 0
    v_mov_b32 v13, 0
    v_mov_b32 v14, v8
    v_mov_b32 v15, v9
    v_and_b32 v7, 7, {VN}
    v_lshrrev_b32 v17, 3, {VN}
    s_lshr_b32 s40, s70, 1
    s_lshl_b32 s40, s40, 6
    s_sub_u32 s40, s40, s69
    s_sub_u32 s40, s40, 1
    v_lshl_add_u32 v18, v7, 3, {VG}
    v_add_u32 v18, s40, v18
    v_add_u32 v19, 4, v18
    v_and_b32 v20, 1, v18
    v_lshlrev_b32 v20, 5, v20
    v_lshl_add_u32 v20, v17, 4, v20
    v_mov_b32 v21, {OOB}
    v_lshrrev_b32 v16, 1, v18
    v_lshl_add_u32 v16, v16, 14, v20
    v_cmp_gt_u32 vcc, 0x140, v18
    v_cndmask_b32 v16, v21, v16, vcc
    v_lshrrev_b32 v22, 1, v19
    v_lshl_add_u32 v22, v22, 14, v20
    v_cmp_gt_u32 vcc, 0x140, v19
    v_cndmask_b32 v22, v21, v22, vcc
    s_lshl_b32 s40, s69, 8
    s_and_b32 s41, s70, 1
    s_lshl_b32 s41, s41, 7
    s_add_u32 s40, s40, s41
    s_add_u32 s40, s40, {WT}
    s_waitcnt vmcnt({vm})
    """)
    for G in range(2):
        if wor: break
        for mf in range(2):
            for ri in range(2):
                a(f"{M16} {v(32+16*G+8*mf+4*ri,4)}, {v(8+4*mf,4)}, {v(WTX+8*G+4*ri,4)}, 0")
    for mf in range(2):
        if not wor: break
        for ld in range(2):
            a(f"{M16} {v(64+8*mf+4*ld,4)}, {v(8+4*mf,4)}, {v(WTR+16+4*ld,4)}, 0")
    for G in range(2):
        if wor: break
        for mf in range(2):
            b=32+16*G+8*mf; d=64+8*G+4*mf
            for i in range(4): a(f"v_cvt_pk_bf16_f32 v{d+i}, v{b+i}, v{b+4+i}")
            a(f"buffer_store_dwordx4 {v(d,4)}, {'v22' if mf else 'v16'}, {R_WS}, s40 offen offset:{64*G} sc1")
    if not wor:
        a.label(L); return
    a(f"""
    s_cmp_ge_u32 s67, 400
    s_cbranch_scc1 {L}
    s_mul_i32 s42, s67, 6554
    s_lshr_b32 s42, s42, 16
    s_mul_i32 s43, s42, 10
    s_sub_u32 s43, s67, s43
    s_lshl_b32 s43, s43, 4
    s_lshr_b32 s40, s42, 1
    s_mul_i32 s40, s40, 5120
    s_and_b32 s42, s42, 1
    s_lshl_b32 s42, s42, 9
    s_add_u32 s40, s40, s42
    s_add_u32 s40, s40, {WOR}
    s_mov_b32 s41, 102400
    v_lshlrev_b32 v18, 8, v17
    v_lshl_add_u32 v18, {VG}, 4, v18
    """)
    for mf in range(2):
        a(f"""
        v_lshl_add_u32 v19, v7, 1, s43
        v_add_u32 v19, {mf}, v19          ; dq
        v_mul_u32_u24 v20, 205, v19
        v_lshrrev_b32 v20, 10, v20        ; dq/5
        v_mul_u32_u24 v21, 5, v20
        v_sub_u32 v19, v19, v21           ; nt
        v_lshrrev_b32 v21, 2, v20         ; t
        v_and_b32 v20, 3, v20
        v_mul_lo_u32 v21, v21, s41
        v_lshl_add_u32 v21, v19, 10, v21
        v_lshl_add_u32 v21, v20, 6, v21
        v_add_u32 v21, v21, v18
        """)
        d=WTR+40+4*mf
        for q in range(4): a(f"v_cvt_pk_bf16_f32 v{d+q}, v{64+8*mf+2*q}, v{65+8*mf+2*q}")
        a(f"buffer_store_dwordx4 {v(d,4)}, v21, {R_WS}, s40 offen sc1")
    a.label(L)

C64, S64, C32, S32 = 164, 180, 196, 204
TW1C, TW1S, TW2C, TW2S = 212, 220, 228, 236
WP = 244
WL = 81920
N64, N32, WRE, WIM, UP, DA = 64, 80, 88, 96, 104, 120
FSC, FRW, FX1 = 102400, 118784, 135168
def ang8(a, base, step, dst):
    a(f"""
    v_mov_b32 v{dst}, {base}
    v_add_f32 v{dst+1}, {base}, {step}
    v_fma_f32 v{dst+2}, 2.0, {step}, {base}
    v_fma_f32 v{dst+4}, 4.0, {step}, {base}
    v_add_f32 v{dst+3}, v{dst+2}, {step}
    v_add_f32 v{dst+5}, v{dst+4}, {step}
    v_fma_f32 v{dst+6}, 2.0, {step}, v{dst+4}
    v_add_f32 v{dst+7}, v{dst+6}, {step}
    """)

def fft_consts(a):
    a("s_mov_b32 s40, 0")
    mu_pos(a, "v6", "s40", "v7")
    a(f"""
    v_cvt_f32_u32 v6, v6
    v_lshlrev_b32 v7, 3, {VG}
    v_cvt_f32_u32 v7, v7
    s_lshl_b32 s40, s63, 5
    v_cvt_f32_u32 v8, s40
    s_xor_b32 s40, s40, 32
    v_cvt_f32_u32 v9, s40
    v_cvt_f32_u32 v10, s62
    """)
    def cs(step, base, c, s):
        a(f"""
        v_cos_f32 v14, {step}
        v_add_f32 v17, {base}, {step}
        v_sin_f32 v24, {base}
        v_cos_f32 v16, {base}
        v_sin_f32 v25, v17
        v_cos_f32 v17, v17
        v_add_f32 v14, v14, v14
        """)
        for i in range(2,8):
            a(f"v_fma_f32 v{24+i}, v14, v{23+i}, -v{22+i}")
            a(f"v_fma_f32 v{16+i}, v14, v{15+i}, -v{14+i}")
        for i in range(4): a(f"v_cvt_pk_bf16_f32 v{s+i}, v{24+2*i}, v{25+2*i}")
        for i in range(4): a(f"v_cvt_pk_bf16_f32 v{c+i}, v{16+2*i}, v{17+2*i}")
    for aa in range(2):
        a(f"v_add_f32 v11, v8, v6")
        if aa: a("v_add_f32 v11, 4.0, v11")
        a(f"v_mul_f32 v12, {f2u(1/64)}, v11")
        for kk in range(2):
            a(f"v_add_f32 v13, v{8+kk}, v7")
            a(f"v_mul_f32 v13, v13, v12")
            o=8*aa+4*kk
            cs("v12","v13",C64+o,S64+o)
        a(f"""
        v_mul_f32 v12, {f2u(1/2048)}, v11
        v_add_f32 v13, v7, v10
        v_mul_f32 v16, v13, v12
        v_add_f32 v17, v16, v12
        v_fma_f32 v18, 2.0, v12, v16
        v_add_f32 v19, v18, v12
        """)
        for i in range(4): a(f"v_sin_f32 v{TW1S+4*aa+i}, v{16+i}")
        for i in range(4): a(f"v_cos_f32 v{TW1C+4*aa+i}, v{16+i}")
        a(f"v_mov_b32 v11, v6")
        if aa: a("v_add_f32 v11, 4.0, v11")
        a(f"""
        v_mul_f32 v12, {f2u(1/32)}, v11
        v_mul_f32 v13, v7, v12
        """)
        cs("v12","v13",C32+4*aa,S32+4*aa)
        a(f"""
        v_mul_f32 v12, {f2u(1/2048)}, v11
        v_add_f32 v13, v7, v10
        v_add_f32 v13, v13, v8
        v_mul_f32 v16, v13, v12
        v_add_f32 v17, v16, v12
        v_fma_f32 v18, 2.0, v12, v16
        v_add_f32 v19, v18, v12
        """)
        for i in range(4): a(f"v_sin_f32 v{TW2S+4*aa+i}, v{16+i}")
        for i in range(4): a(f"v_cos_f32 v{TW2C+4*aa+i}, v{16+i}")
    for i in range(16): a(f"v_mul_f32 v{TW2C+i}, {f2u(1/2048)}, v{TW2C+i}")
    mu_pos(a, "v8", "s62", "v9")
    a(f"""
    s_lshl_b32 s40, s63, 5
    v_add_u32 v8, s40, v8             ; j1
    s_lshl_b32 s40, s61, 1
    v_lshl_add_u32 v9, {VG}, 2, s40
    v_and_b32 v10, 15, v8
    v_xor_b32 v9, v9, v10
    v_lshlrev_b32 v9, 4, v9
    v_lshl_add_u32 v244, v8, 8, v9
    v_add_u32 v244, {WL}, v244
    v_xor_b32 v248, 16, v244
    """)

def fft_prep(a, first):
    mu_pos(a, "v141", "s62", "v140")
    a(f"""
    v_lshrrev_b32 v136, 3, v0
    s_mov_b32 s41, 40960
    v_mul_lo_u32 v136, v136, s41
    v_bfe_u32 v138, v0, 2, 1
    v_mul_u32_u24 v139, 3, v138
    v_xor_b32 v139, v139, {VL}
    v_and_b32 v137, 7, v139
    v_lshl_add_u32 v136, v137, 4, v136
    v_and_b32 v137, 3, v139
    v_lshlrev_b32 v137, 4, v137
    v_lshl_add_u32 v137, v138, 14, v137
    v_lshrrev_b32 v138, 3, v0
    v_lshl_add_u32 v137, v138, 6, v137
    s_lshl_b32 s40, {SW}, 10
    s_lshr_b32 s42, {SW}, 1
    s_lshr_b32 s43, {SW}, 2
    s_xor_b32 s42, s42, s43
    s_lshl_b32 s42, s42, 6
    v_lshlrev_b32 v138, 4, v139
    v_xor_b32 v138, s42, v138
    s_add_u32 s40, s40, {FSC}
    v_add_u32 v138, s40, v138
    v_lshrrev_b32 v141, 2, v141
    s_lshl_b32 s40, s63, 2
    v_add_u32 v140, s40, {VG}
    v_lshl_add_u32 v141, v141, 3, v140
    v_and_b32 v143, 3, {VN}
    v_lshl_add_u32 v139, v141, 3, v143
    v_lshrrev_b32 v144, 2, {VN}
    v_lshrrev_b32 v145, 3, {VN}
    v_xor_b32 v144, v144, v145
    v_lshlrev_b32 v144, 2, v144
    v_xor_b32 v139, v139, v144
    s_lshl_b32 s40, s61, 13
    s_add_u32 s42, s40, {FSC}
    v_lshl_add_u32 v139, v139, 4, s42
    v_xor_b32 v140, 512, v139
    v_mul_lo_u32 v141, v141, s41
    v_lshl_add_u32 v141, v143, 4, v141
    s_lshl_b32 s43, s63, 12
    s_add_u32 s43, s43, s40
    s_add_u32 s43, s43, {FX1}
    s_lshl_b32 s44, s62, 1
    s_add_u32 s45, s44, s43
    v_add_u32 v143, s45, {VL16}
    s_lshl_b32 s45, s62, 9
    s_add_u32 s45, s45, s43
    v_add_u32 v144, s45, {VL16}
    s_lshl_b32 s43, s63, 11
    s_add_u32 s43, s43, s42
    s_add_u32 s45, s44, s43
    v_add_u32 v145, s45, {VL16}
    s_lshl_b32 s45, s62, 10
    s_add_u32 s45, s45, s43
    v_add_u32 v146, s45, {VL16}
    v_xor_b32 v147, 2048, v146
    s_cmp_eq_u32 s73, 159
    s_cselect_b32 s40, 4, 99
    v_and_b32 v148, 4, v0
    v_cmp_ne_u32 vcc, s40, v148
    v_cndmask_b32 v148, 0, -1, vcc
    """)

def fft_prep2(a, first):
    a("s_mov_b32 s41, 0x80008000")
    for i in range(16): a(f"v_xor_b32 v{N64+i}, s41, v{S64+i}")
    for i in range(8): a(f"v_xor_b32 v{N32+i}, s41, v{S32+i}")
    if not first: fft_w_unpack(a)

def fft_w_load(a):
    a(f"""
    s_lshl_b32 s40, s62, 1
    v_add_u32 v8, s40, {VG}
    v_xor_b32 v9, v8, {VN}
    v_lshlrev_b32 v9, 4, v9
    v_lshl_add_u32 v9, {VG}, 8, v9
    v_xor_b32 v10, 64, v9
    s_lshl_b32 s40, s73, 14
    s_lshl_b32 s41, {SW}, 11
    s_add_u32 s40, s40, s41
    s_add_u32 s40, s40, {WT}
    s_add_u32 m0, s41, {WL}
    s_nop 0
    buffer_load_dwordx4 v9, {R_WS}, s40 offen sc1 lds
    buffer_load_dwordx4 v10, {R_WS}, s40 offen offset:1024 sc1 lds
    """)

def fft_w_read(a):
    a(f"ds_read_b128 {v(WP,4)}, v244\n ds_read_b128 {v(WP+4,4)}, v248")

def fft_w_unpack(a):
    for i in range(8):
        a(f"v_lshlrev_b32 v{WRE+i}, 16, v{WP+i}")
        a(f"v_and_b32 v{WIM+i}, 0xffff0000, v{WP+i}")

def cmul(a, xr, xi, cr, ci, outr, outi, conj, n=8):
    for i in range(n):
        a(f"v_mul_f32 v{outr+i}, v{xr+i}, v{cr+i}")
        a(f"v_mul_f32 v{outi+i}, v{xi+i}, v{cr+i}")
    for i in range(n):
        if conj:
            a(f"v_fma_f32 v{outr+i}, -v{xi+i}, v{ci+i}, v{outr+i}")
            a(f"v_fma_f32 v{outi+i}, v{xr+i}, v{ci+i}, v{outi+i}")
        else:
            a(f"v_fma_f32 v{outr+i}, v{xi+i}, v{ci+i}, v{outr+i}")
            a(f"v_fma_f32 v{outi+i}, -v{xr+i}, v{ci+i}, v{outi+i}")

def fft_main(a, xin, xout, var, first):
    DR, DI = DA, DA+8
    a(f"""
    s_lshl_b32 s46, s73, 8
    s_add_u32 s47, s46, {xout}
    s_add_u32 s46, s46, {xin}
    s_mov_b32 s42, {var}
    s_mov_b32 s43, {var+4096}
    s_mov_b32 s44, {var+8192}
    s_mov_b32 s45, {var+12288}
    s_mov_b32 s58, {SPIN}
    """)
    def ldv():
        for k in range(4): a(f"buffer_load_dwordx4 {v(16+4*k,4)}, v137, {R_WS}, s{42+k} offen sc1")
    def ldd():
        a(f"buffer_load_dwordx4 v[48:51], v136, {R_WS}, s46 offen sc1")
        a(f"buffer_load_dwordx4 v[52:55], v136, {R_WS}, s46 offen offset:128 sc1")
    def mn(base,n,t):
        a(f"v_min3_u32 {t}, v{base}, v{base+1}, v{base+2}")
        for k in range(3,n-1,2): a(f"v_min3_u32 {t}, {t}, v{base+k}, v{base+k+1}")
        a(f"v_min_u32 {t}, {t}, v{base+n-1}")
        a(f"v_cmp_eq_u32 vcc, 0, {t}\n s_cmp_lg_u64 vcc, 0")
    fft_prep2(a, first)
    bg = qkv_bload_setup(a, 4 if first else 5)
    a("s_barrier")
    ldv(); ldd()
    ex = 0
    def tick(n=1):
        if "notick" in EXP or first: return
        for _ in range(n):
            if bg: bg.pop(0)()
    RV=a.newlabel("fvr"); BV=a.newlabel("fvb"); RD=a.newlabel("fdr"); BD=a.newlabel("fdb")
    a(f"""
    s_lshl_b32 s41, s61, 7
    s_add_u32 s47, s47, s41
    s_mov_b32 s40, {f2u(2.0/(640*640))}
    v_mov_b32 v8, {f2u(1e-5)}
    s_waitcnt vmcnt({2+ex})
    """)
    mn(16,16,"v9")
    a(f"s_cbranch_scc1 {RV}")
    a.label(BV)
    for q in range(4):
        a(f"v_lshlrev_b32 v{40+2*q}, 16, v{16+q}")
        a(f"v_and_b32 v{41+2*q}, 0xffff0000, v{16+q}")
    for k in range(1,4):
        for q in range(4):
            a(f"v_lshlrev_b32 v{32+2*q}, 16, v{16+4*k+q}")
            a(f"v_and_b32 v{33+2*q}, 0xffff0000, v{16+4*k+q}")
        for i in range(8): a(f"v_add_f32 v{40+i}, v{40+i}, v{32+i}")
    for i in range(8): a(f"v_add_f32_dpp v{40+i}, v{40+i}, v{40+i} row_half_mirror row_mask:0xf bank_mask:0xf")
    for i in range(8): a(f"v_fma_f32 v{40+i}, v{40+i}, s40, v8")
    for i in range(8): a(f"v_rsq_f32 v{40+i}, v{40+i}")
    a(f"s_waitcnt vmcnt({ex})")
    mn(48,8,"v9")
    a(f"s_cbranch_scc1 {RD}")
    a.label(BD)
    def late():
        OK=a.newlabel("fvo")
        a.label(RV); ldv(); a("s_waitcnt vmcnt(0)"); mn(16,16,"v9")
        a(f"s_cbranch_scc0 {OK}")
        retry_check(a, None, RV, BV, 60)
        a.label(OK); ldd()
        a(f"s_branch {BV}")
        a.label(RD); ldd(); a("s_waitcnt vmcnt(0)"); mn(48,8,"v9")
        a(f"s_cbranch_scc0 {BD}")
        retry_check(a, None, RD, BD, 61)
    a.late.append(late)
    for c in range(2):
        a(f"ds_write_b128 v138, {v(48+4*c,4)} offset:{FRW-FSC+8192*c}")
        for q in range(4):
            a(f"v_lshlrev_b32 v{16+2*q}, 16, v{48+4*c+q}")
            a(f"v_and_b32 v{17+2*q}, 0xffff0000, v{48+4*c+q}")
        for i in range(8): a(f"v_mul_f32 v{16+i}, v{16+i}, v{40+i}")
        for q in range(4): a(f"v_cvt_pk_bf16_f32 v{56+4*c+q}, v{16+2*q}, v{17+2*q}")
        if c==1:
            for q in range(4): a(f"v_and_b32 v{60+q}, v{60+q}, v148")
        a(f"ds_write_b128 v138, {v(56+4*c,4)} offset:{8192*c}")
    FD = ("fd" in EXP and not first) or ("fd1" in EXP and first)
    if FD: pflush(a,7); pst(a,0)
    tick()
    a(f"""
    v_xor_b32 v8, 64, v139
    v_xor_b32 v9, 64, v140
    s_waitcnt lgkmcnt(0)
    s_barrier
    ds_read_b128 {v(UP,4)}, v139
    ds_read_b128 {v(UP+4,4)}, v8
    ds_read_b128 {v(UP+8,4)}, v140
    ds_read_b128 {v(UP+12,4)}, v9
    ds_read_b128 v[48:51], v139 offset:{FRW-FSC}
    ds_read_b128 v[52:55], v8 offset:{FRW-FSC}
    """)
    if FD: pst(a,1)
    if first:
        fft_w_read(a); arrive(a, 1)
    tick()
    ur=lambda kk: v(UP+8*kk,4); ui=lambda kk: v(UP+8*kk+4,4)
    for kk in range(2):
        a(f"s_waitcnt lgkmcnt({4-2*kk+(2 if first else 0)})")
        for aa in range(2):
            dr=v(DR+4*aa,4); di=v(DI+4*aa,4); o=8*aa+4*kk
            a(f"{M16} {dr}, {ur(kk)}, {v(C64+o,4)}, {dr if kk else 0}")
            a(f"{M16} {di}, {ui(kk)}, {v(C64+o,4)}, {di if kk else 0}")
            a(f"{M16} {dr}, {ui(kk)}, {v(S64+o,4)}, {dr}")
            a(f"{M16} {di}, {ur(kk)}, {v(N64+o,4)}, {di}")
        tick()
    def exch(vw, stride):
        for aa in range(2):
            for ri in range(2):
                b=16+8*ri+4*aa; d=32+4*aa+2*ri
                a(f"v_cvt_pk_bf16_f32 v{d}, v{b}, v{b+1}")
                a(f"v_cvt_pk_bf16_f32 v{d+1}, v{b+2}, v{b+3}")
                a(f"ds_write_b64 {vw}, {v(d,2)} offset:{stride*aa+1024*ri}")
    if FD: pst(a,2)
    cmul(a, DR, DI, TW1C, TW1S, 16, 24, False)
    tick()
    exch("v143", 2048)
    tick()
    if FD: pst(a,7)
    a(f"""
    s_waitcnt lgkmcnt(0)
    s_barrier
    ds_read_b128 {v(UP,4)}, v144
    ds_read_b128 {v(UP+4,4)}, v144 offset:1024
    """)
    tick()
    a("s_waitcnt lgkmcnt(0)")
    if FD: pst(a,4)
    tr=v(UP,4); ti=v(UP+4,4)
    for aa in range(2):
        dr=v(DR+4*aa,4); di=v(DI+4*aa,4)
        a(f"{M16} {dr}, {v(C32+4*aa,4)}, {tr}, 0")
        a(f"{M16} {di}, {v(C32+4*aa,4)}, {ti}, 0")
        a(f"{M16} {dr}, {v(S32+4*aa,4)}, {ti}, {dr}")
        a(f"{M16} {di}, {v(N32+4*aa,4)}, {tr}, {di}")
    if first:
        fft_w_unpack(a)
        a(f"""
        v_mov_b32 v32, 0
        v_mov_b32 v33, 0
        v_mov_b32 v34, 0
        v_mov_b32 v35, 0
        s_lshl_b32 s40, s73, 3
        s_add_u32 s40, s40, {SW}
        s_lshl_b32 s40, s40, 11
        s_add_u32 s40, s40, {O2}
        buffer_store_dwordx4 v[32:35], {VL16}, {R_WS}, s40 offen sc1
        buffer_store_dwordx4 v[32:35], {VL16}, {R_WS}, s40 offen offset:1024 sc1
        """)
        L=a.newlabel("p1")
        a(f"""
        s_cmp_lg_u32 {SW}, 7
        s_cbranch_scc1 {L}
        s_and_b32 s59, s2, 3
        s_lshl_b32 s59, s59, 12
        s_add_u32 s59, s59, {CNTB(1)}
        v_lshlrev_b32 v255, 8, {VN}
        buffer_load_dword v252, v255, {R_WS}, s59 offen sc1
        {L}:
        """)
    tick()
    cmul(a, DR, DI, WRE, WIM, 16, 24, True)
    tick()
    for q in range(4): a(f"v_cvt_pk_bf16_f32 v{UP+8+q}, v{16+2*q}, v{17+2*q}")
    for q in range(4): a(f"v_cvt_pk_bf16_f32 v{UP+12+q}, v{24+2*q}, v{25+2*q}")
    yr=v(UP+8,4); yi=v(UP+12,4)
    for aa in range(2):
        dr=v(DR+4*aa,4); di=v(DI+4*aa,4)
        a(f"{M16} {dr}, {yr}, {v(C32+4*aa,4)}, 0")
        a(f"{M16} {di}, {yi}, {v(C32+4*aa,4)}, 0")
        a(f"{M16} {dr}, {yi}, {v(N32+4*aa,4)}, {dr}")
        a(f"{M16} {di}, {yr}, {v(S32+4*aa,4)}, {di}")
    tick()
    cmul(a, DR, DI, TW2C, TW2S, 16, 24, True)
    tick()
    exch("v145", 4096)
    tick(2)
    if first:
        L=a.newlabel("p1c")
        a(f"""
        s_cmp_lg_u32 {SW}, 7
        s_cbranch_scc1 {L}
        s_waitcnt vmcnt(0)
        v_cmp_gt_u32 vcc, {0 if 'nob1' in EXP else 16}, v252
        s_cmp_eq_u64 vcc, 0
        s_cbranch_scc1 {L}
        """)
        wait(a, 1, bar=False)
        a.label(L)
    if FD: pst(a,5)
    for ri in range(2):
        for q in range(4):
            a(f"v_lshlrev_b32 v{16+8*ri+2*q}, 16, v{48+4*ri+q}")
            a(f"v_and_b32 v{17+8*ri+2*q}, 0xffff0000, v{48+4*ri+q}")
    a(f"""
    s_waitcnt lgkmcnt(0)
    s_barrier
    ds_read_b128 {v(UP,4)}, v146
    ds_read_b128 {v(UP+4,4)}, v146 offset:1024
    ds_read_b128 {v(UP+8,4)}, v147
    ds_read_b128 {v(UP+12,4)}, v147 offset:1024
    """)
    if FD: pst(a,6)
    for kk in range(2):
        a(f"s_waitcnt lgkmcnt({2-2*kk})")
        for aa in range(2):
            dr=v(DR+4*aa,4); di=v(DI+4*aa,4); o=8*aa+4*kk
            a(f"{M16} {dr}, {v(C64+o,4)}, {ur(kk)}, {dr if kk else v(16+4*aa,4)}")
            a(f"{M16} {di}, {v(C64+o,4)}, {ui(kk)}, {di if kk else v(24+4*aa,4)}")
            a(f"{M16} {dr}, {v(N64+o,4)}, {ui(kk)}, {dr}")
            a(f"{M16} {di}, {v(S64+o,4)}, {ur(kk)}, {di}")
            if first and kk+aa<2: bg.pop(0)()
    for q in range(4): a(f"v_cvt_pk_bf16_f32 v{32+q}, v{DR+2*q}, v{DR+2*q+1}")
    for q in range(4): a(f"v_cvt_pk_bf16_f32 v{36+q}, v{DI+2*q}, v{DI+2*q+1}")
    L=a.newlabel("nyq2")
    a(f"""
    s_lshl_b32 s40, s73, 1
    s_add_u32 s40, s40, s61
    s_cmp_lg_u32 s40, 319
    s_cbranch_scc1 {L}
    """)
    for q in range(4): a(f"v_mov_b32 v{36+q}, v{52+q}")
    a.label(L)
    for q in range(8): a(f"v_max_u32 v{32+q}, 1, v{32+q}")
    if first: a("s_waitcnt vmcnt(3)")
    a(f"""
    buffer_store_dwordx4 v[32:35], v141, {R_WS}, s47 offen sc1
    buffer_store_dwordx4 v[36:39], v141, {R_WS}, s47 offen offset:64 sc1
    """)
    return bg

QB = 0
def QAb(layer): return 102400
def NRS(layer): return 3
def BST(layer): return 5120 if layer else 4096
KVF = 151552
QACC = 8
QAF = 48
QBF = 72
def qkv_rot(a): pass
def qkv_roles(a, layer):
    RX=RXS[layer]
    a(f"""
    s_lshr_b32 s81, s2, 3
    s_and_b32 {SR}, {SX}, {8//RX-1}
    s_mul_i32 {SR}, {SR}, {RX}
    s_and_b32 s82, s81, {RX-1}
    s_add_u32 {SR}, {SR}, s82
    s_lshr_b32 {SH}, {SX}, {(8//RX).bit_length()-1}
    s_mul_i32 {SH}, {SH}, {32//RX}
    s_lshr_b32 s81, s81, {RX.bit_length()-1}
    s_add_u32 {SH}, {SH}, s81
    s_and_b32 s68, {SH}, 3
    s_mul_i32 s68, s68, 5
    s_lshr_b32 s81, {SH}, 2
    s_add_u32 s68, s68, s81
    s_cmp_ge_u32 s68, 20
    s_cselect_b32 s81, 20, 0
    s_sub_u32 s68, s68, s81
    """)

def qkv_bload_setup(a, NT):
    BS=BST(0 if NT==4 else 1)
    a(f"""
    v_lshrrev_b32 v149, 2, {VN}
    v_add_u32 v150, 1, v149
    v_cmp_eq_u32 vcc, 2, v149
    v_cndmask_b32 v150, v150, 0, vcc
    v_min_u32 v150, 3, v150
    v_mul_u32_u24 v150, 640, v150
    v_and_b32 v149, 3, {VN}
    v_add3_u32 v150, v150, v149, 16
    s_add_u32 s48, s60, 1
    s_and_b32 s48, s48, 3
    s_mul_i32 s48, s48, 640
    v_add_u32 v149, s48, {VN}
    s_cmp_eq_u32 s60, 2
    s_cselect_b64 vcc, -1, 0
    v_cndmask_b32 v149, v149, v150, vcc
    v_mul_u32_u24 v150, 2560, {VG}
    s_mul_i32 s48, {SH}, 20
    v_add3_u32 v149, v149, v150, s48
    v_lshlrev_b32 v149, 4, v149
    s_add_u32 s48, s48, 1920
    v_add3_u32 v150, {VN}, v150, s48
    v_lshlrev_b32 v150, 4, v150
    s_mov_b32 s51, {WQF+20*163840}
    s_add_u32 s50, s68, s61
    s_mul_i32 s50, s50, 163840
    s_add_u32 s50, s50, {WQF}
    s_add_u32 s76, s68, {SW}
    s_mul_i32 s76, s76, 163840
    s_add_u32 s76, s76, {WQF}
    s_mul_i32 s49, s61, {BS}
    s_lshl_b32 s48, s60, 10
    s_add_u32 s49, s49, s48
    s_mul_i32 s77, {SW}, {BS}
    """)
    def chunk(i):
        def f():
            L=None
            if i<10: src,vo,m,step = "s50","v149",f"s_add_u32 m0, s49, {QB+2*BS*i}",2
            else:    src,vo,m,step = "s76","v150",f"s_add_u32 m0, s77, {QB+8*BS*(i-10)+4096}",8
            if i==12:
                L=a.newlabel("qb"); a(f"s_cmp_ge_u32 {SW}, 4\n s_cbranch_scc1 {L}")
            a(f"""
            s_cmp_ge_u32 {src}, s51
            s_cselect_b32 s48, {20*163840}, 0
            s_sub_u32 {src}, {src}, s48
            {m}
            s_nop 0
            buffer_load_dwordx4 {vo}, {R_WS}, {src} offen sc1 lds
            s_add_u32 {src}, {src}, {step*163840}
            """)
            if L: a.label(L)
        return f
    return [chunk(i) for i in range(10 if NT==4 else 13)]

def qkv_bload(a, NT):
    for c in qkv_bload_setup(a, NT): c()

def qkv_prep(a, layer, bg=None):
    def tk(n=1):
        for _ in range(n):
            if bg: bg.pop(0)()
    tk()
    a(f"""
    s_lshl_b32 s64, {SR}, 3
    s_add_u32 s64, s64, {SW}
    s_mul_i32 s65, {SW}, {2048*NRS(layer)}
    s_add_u32 s65, s65, {QAb(layer)}
    v_lshrrev_b32 v112, 5, {VL}
    v_lshlrev_b32 v112, 5, v112
    {'v_mov_b32 v112, v4' if 'noswz' in EXP else 'v_xor_b32 v112, v112, v4'}
    v_lshrrev_b32 v113, 2, {VN}
    v_lshl_add_u32 v113, {VG}, 3, v113
    v_lshlrev_b32 v113, 6, v113
    v_and_b32 v114, 3, {VN}
    v_lshl_add_u32 v113, v114, 3, v113
    v_and_b32 v114, 1, {VG}
    v_lshl_add_u32 v113, v114, 5, v113
    v_add_u32 v113, s65, v113
    v_xor_b32 v114, 32, v113
    v_add_u32 v115, {10*BST(layer)}, {VL16}
    s_cmp_eq_u32 {SH}, 19
    s_cselect_b32 s40, 3, 99
    v_mov_b32 v116, 0xffff
    v_cmp_ne_u32 vcc, s40, {VG}
    v_cndmask_b32 v116, v116, -1, vcc
    v_lshrrev_b32 v117, 1, {VG}
    v_lshl_add_u32 v117, v117, 4, {VN}
    v_lshlrev_b32 v117, 2, v117
    """)
    tk()
    a(f"""
    v_lshrrev_b32 v8, 2, v0
    v_mul_u32_u24 v9, 781, v8
    v_lshrrev_b32 v9, 14, v9          ; dq
    v_mul_u32_u24 v10, 21, v9
    v_sub_u32 v8, v8, v10             ; rho
    v_lshlrev_b32 v10, 4, v9
    v_subrev_u32 v11, 12, v8
    v_cmp_eq_u32 vcc, 20, v8
    v_cndmask_b32 v11, v11, 0, vcc
    v_add_u32 v11, 128, v11
    v_cmp_gt_u32 vcc, 16, v8
    v_cndmask_b32 v11, v11, v8, vcc
    v_add_u32 v10, v10, v11
    v_and_b32 v11, 3, v0
    v_lshl_add_u32 v10, v10, 2, v11
    v_lshlrev_b32 v10, 2, v10
    v_min_u32 v10, 4092, v10
    v_add_u32 v118, {QAb(layer)}, v10
    """)
    tk()
    a(f"""
    v_lshrrev_b32 v8, 2, {VN}
    v_and_b32 v9, 1, v8
    v_cmp_eq_u32 vcc, 1, v9
    v_mov_b32 v10, {f2u(1e-6)}
    v_mov_b32 v11, 0xff800000
    v_cndmask_b32 v119, v10, 0, vcc
    v_cndmask_b32 v120, v10, v11, vcc
    v_cndmask_b32 v121, 1.0, 0, vcc
    v_cmp_eq_u32 vcc, 3, v8
    v_mov_b32 v10, {f2u(2.0/640)}
    v_cndmask_b32 v122, 1.0, 0, vcc
    v_cndmask_b32 v123, 0, v10, vcc
    """)
    tk()
    a(f"""
    v_lshlrev_b32 v8, 2, {VG}
    v_sub_u32 v8, {VN}, v8
    v_mov_b32 v10, 0x3f80
    v_mov_b32 v11, 0x3f800000
    v_cmp_eq_u32 vcc, 0, v8
    v_cndmask_b32 v124, 0, v10, vcc
    v_cmp_eq_u32 vcc, 1, v8
    v_cndmask_b32 v124, v124, v11, vcc
    v_cmp_eq_u32 vcc, 2, v8
    v_cndmask_b32 v125, 0, v10, vcc
    v_cmp_eq_u32 vcc, 3, v8
    v_cndmask_b32 v125, v125, v11, vcc
    v_mov_b32 v126, 0
    v_mov_b32 v127, 0
    v_mov_b32 v128, 0
    v_mov_b32 v129, 0
    v_mov_b32 v130, v124
    v_mov_b32 v131, v125
    """)
    tk()
    a(f"""
    v_lshrrev_b32 v8, 3, {VL}
    v_mul_u32_u24 v8, 1792, v8
    v_and_b32 v9, 7, {VL}
    v_lshl_add_u32 v132, v9, 4, v8
    s_lshl_b32 s40, {SW}, 8
    v_add_u32 v132, s40, v132
    """)
    tk()
    a(f"""
    v_lshrrev_b32 v8, 5, {VL}
    v_lshl_add_u32 v8, v8, 3, v9
    s_lshl_b32 s40, {SW}, 4
    v_add_u32 v8, s40, v8
    v_mul_u32_u24 v9, 781, v8
    v_lshrrev_b32 v9, 14, v9          ; dq
    v_mul_u32_u24 v10, 21, v9
    v_sub_u32 v8, v8, v10             ; rho
    v_add_u32 v10, 48, v8
    v_cmp_gt_u32 vcc, 16, v8
    v_cndmask_b32 v8, v10, v8, vcc
    v_lshlrev_b32 v8, 4, v8
    v_lshlrev_b32 v10, 8, v9
    v_mov_b32 v11, {2*256+8}
    v_cmp_eq_u32 vcc, 4, v9
    v_cndmask_b32 v10, v10, v11, vcc
    v_mov_b32 v11, 2048
    v_cmp_lt_u32 vcc, 4, v9
    v_cndmask_b32 v10, v10, v11, vcc
    v_add_u32 v8, v8, v10
    v_and_b32 v9, 1, {VG}
    v_lshl_add_u32 v8, v9, 2, v8
    v_add_u32 v133, {KVF}, v8
    v_add_u32 v134, {KVF}, {VL16}
    v_min_u32 v8, 4, {VN}
    v_lshl_add_u32 v8, {VG}, 4, v8
    v_lshlrev_b32 v8, 4, v8
    v_add_u32 v135, {KVF+1024}, v8
    v_mov_b32 v8, 0
    v_lshlrev_b32 v9, 2, v0
    v_add_u32 v9, {KVF}, v9
    ds_write_b32 v9, v8
    """)
    tk()
    a(f"""
    v_bfe_u32 v8, {VN}, 2, 1
    v_mul_u32_u24 v8, 20480, v8
    v_lshrrev_b32 v9, 3, {VN}
    v_lshl_add_u32 v8, v9, 6, v8
    v_and_b32 v9, 3, {VN}
    v_lshl_add_u32 v8, v9, 4, v8
    s_mul_i32 s40, {SH}, 5
    v_add_u32 v9, s40, {VG}
    v_lshrrev_b32 v10, 1, v9
    v_lshl_add_u32 v136, v10, 8, v8
    v_and_b32 v10, 1, v9
    v_lshl_add_u32 v136, v10, 3, v136
    s_add_u32 s40, s40, 4
    s_lshr_b32 s41, s40, 1
    s_lshl_b32 s41, s41, 8
    s_and_b32 s40, s40, 1
    s_lshl_b32 s40, s40, 3
    s_add_u32 s40, s40, s41
    v_add_u32 v137, s40, v8
    v_lshlrev_b32 v138, 3, {VN}
    v_lshl_add_u32 v138, {VG}, 8, v138
    """)
    tk(20)

def qkv_main(a, layer):
    last = layer==1
    NT = 5 if last else 4
    NR = NRS(layer); BS = BST(layer)
    xin = X3 if last else X1; var = VAR3 if last else VAR1
    a(f"""
    s_mul_i32 s52, s64, 40960
    s_add_u32 s52, s52, {xin}
    s_add_u32 s54, s52, 40960
    s_lshl_b32 s53, s68, 11
    s_add_u32 s53, s53, s52
    """)
    def dma0(j):
        a(f"s_add_u32 m0, s65, {(j%NR)*2048}")
        a("s_nop 0")
        a(f"buffer_load_dwordx4 v112, {R_WS}, s53 offen {'' if 'nosc' in EXP else 'sc1'} lds")
    def dma1(j):
        a(f"""
        buffer_load_dwordx4 v112, {R_WS}, s53 offen offset:1024 {'' if 'nosc' in EXP else 'sc1'} lds
        s_add_u32 s53, s53, 2048
        s_cmp_ge_u32 s53, s54
        s_cselect_b32 s53, s52, s53
        """)
    q=LQ(a)
    def rdA(j,k):
        aa,h=k>>1,k&1
        q.op(f"ds_read_b64_tr_b16 {v(QAF+8*(j%3)+4*aa+2*h,2)}, v{113+aa} offset:{(j%NR)*2048+256*h}", ("A",j,aa))
    def rdB(j,t):
        base,off=(VL16,j*BS) if j<10 else ("v115",(j-10)*BS)
        q.op(f"ds_read_b128 {v(QBF+20*(j&1)+4*t,4)}, {base} offset:{QB+off+1024*t}", ("B",j,t))
    for j in range(NR): dma0(j); dma1(j)
    for t in range(NT): rdB(0,t)
    a(f"""
    s_lshl_b32 s55, s64, 7
    s_add_u32 s55, s55, {var}
    s_lshl_b32 s56, s64, 8
    s_add_u32 s56, s56, {LSS + layer*16384}
    s_waitcnt vmcnt({2*NR-2})
    """)
    for k in range(4): rdA(0,k)
    a(f"s_waitcnt vmcnt({2*NR-4})")
    for k in range(4): rdA(1,k)
    q.need(("A",0,0),("A",0,1))
    dma0(NR); dma1(NR)
    JC = 16-NR
    for j in range(20):
        aux=[]
        if j+1<20: aux+= [(lambda t=t: (None if ("nob" in EXP and j>0) else rdB(j+1,t))) for t in range(NT)]
        if j+2<20:
            def first():
                a(f"s_waitcnt vmcnt({min(2*NR-2,2*(17-j)) if j<17 else 4})"); rdA(j+2,0)
            aux+= [first, lambda: rdA(j+2,1), lambda: (rdA(j+2,2), rdA(j+2,3))]
        pos_dma = 2
        for m in range(2*NT):
            t,aa=m>>1,m&1
            q.need(("A",j,aa),("B",j,t))
            d=v(QACC+8*t+4*aa,4); bf=v(QBF+20*(j&1)+4*t,4); af=v(QAF+8*(j%3)+4*aa,4); c=d if j else 0
            if "nomm" in EXP and j>0 and m>0: pass
            elif t>=3: a(f"{M16} {d}, {bf}, {af}, {c}")
            else: a(f"{M16} {d}, {af}, {bf}, {c}")
            if m<len(aux): aux[m]()
            if j+NR+1<20 and "nodma" not in EXP:
                if m==pos_dma:
                    q.need(("A",j+1,0),("A",j+1,1)); dma0(j+NR+1)
                if m==pos_dma+1: dma1(j+NR+1)
        if j==0 and 'nossq' not in EXP:
            L=a.newlabel("ssq")
            a(f"""
            s_cmp_ge_u32 {SH}, 20
            s_cbranch_scc1 {L}
            v_mov_b32 v5, 0
            v_mov_b32 v6, 0
            v_and_b32 v7, v116, v{QAF+3}
            v_and_b32 v139, v116, v{QAF+7}
            """)
            for k in range(3):
                a(f"v_dot2c_f32_bf16 v5, v{QAF+k}, v{QAF+k}")
                a(f"v_dot2c_f32_bf16 v6, v{QAF+4+k}, v{QAF+4+k}")
            a(f"""
            v_dot2c_f32_bf16 v5, v7, v7
            v_dot2c_f32_bf16 v6, v139, v139
            v_permlane32_swap_b32 v5, v6
            v_add_f32 v5, v5, v6
            v_mov_b32 v6, v5
            v_permlane16_swap_b32 v5, v6
            v_add_f32 v5, v5, v6
            s_mov_b32 exec_lo, 0xffff
            s_mov_b32 exec_hi, 0xffff
            buffer_atomic_add_f32 v5, v117, {R_WS}, s55 offen
            s_mov_b64 exec, -1
            {L}:
            """)
        if j==JC:
            a(f"v_mov_b32 v5, 0\n buffer_load_dword v140, v5, {R_WS}, s56 offen sc1")
        if j==13:
            WB = 3 if last else 5
            L=a.newlabel("w5c")
            a(f"s_cmp_lg_u32 {SW}, 7\n s_cbranch_scc1 {L}")
            bar_target(a, WB)
            a(f"""
            v_cmp_gt_u32 vcc, v253, v151
            s_cmp_eq_u64 vcc, 0
            s_cbranch_scc1 {L}
            """)
            wait(a, WB, bar=False)
            a.label(L)
            a("s_barrier")
        if j in (9,10) and not last:
            L=a.newlabel("zf")
            i=j-9
            if i==0:
                a(f"""
                v_mov_b32 v152, 0
                v_mov_b32 v153, 0
                v_mov_b32 v154, 0
                v_mov_b32 v155, 0
                s_lshl_b32 s40, {SW}, 8
                s_add_u32 s40, s40, s2
                s_lshl_b32 s41, s40, 10
                s_add_u32 s41, s41, {X2}
                """)
            if i==1: a(f"s_cmp_ge_u32 s40, 512\n s_cbranch_scc1 {L}")
            a(f"buffer_store_dwordx4 v[152:155], {VL16}, {R_WS}, s41 offen sc1\n s_add_u32 s41, s41, {2048*1024}")
            a.label(L)
        if j==8: probe(a, 3 if last else 5, "v151")
        if j==16:
            L=a.newlabel("ssp")
            a(f"""
            v_cmp_gt_u32 vcc, {0 if 'nossq' in EXP else 20}, v140
            s_cmp_eq_u64 vcc, 0
            s_cbranch_scc1 {L}
            v_mov_b32 v255, 0
            """)
            poll(a, R_WS, "s56", "v255", 20, 20+layer)
            a(f"""
            {L}:
            v_lshlrev_b32 v5, 4, {VG}
            v_lshlrev_b32 v6, 2, {VN}
            buffer_load_dwordx4 v[140:143], v5, {R_WS}, s55 offen sc1
            buffer_load_dwordx4 v[144:147], v5, {R_WS}, s55 offen offset:64 sc1
            buffer_load_dword v148, v6, {R_WS}, s55 offen sc1
            buffer_load_dword v149, v6, {R_WS}, s55 offen offset:64 sc1
            """)
        if j==18:
            a(f"s_mov_b32 s40, {f2u(2.0/(640*640))}\n v_mov_b32 v7, {f2u(1e-5)}\n s_waitcnt vmcnt(0)")
            for i in range(10): a(f"v_fma_f32 v{140+i}, v{140+i}, s40, v7")
            for i in range(10): a(f"v_rsq_f32 v{140+i}, v{140+i}")
        if j==NR+1 and 'nossq' not in EXP:
            L=a.newlabel("ssf")
            a(f"s_cmp_ge_u32 {SH}, 20\n s_cbranch_scc1 {L}")
            larrive(a, "s56")
            a.label(L)

def qkv_tail(a, layer):
    last = layer==1
    ob = O4 if last else O2
    A=lambda t,aa,i=0: QACC+8*t+4*aa+i
    RR=140; RL=148; S2=64; E=72; P0_,P1_,P2_,P2o=80,84,88,92; QP=96
    a(f"""
    v_mov_b32 v58, {f2u(1e-6)}
    s_mov_b32 s41, {f2u(math.log2(math.e))}
    """)
    def phi(t, scale, eps, lo, sel):
        for i in range(8): a(f"v_fma_f32 v{A(t,0,i)}, v{A(t,0,i)}, {scale(i)}, {eps}")
        for i in range(8): a(f"v_mul_f32 v{E+i}, s41, v{A(t,0,i)}")
        for i in range(8): a(f"v_exp_f32_e64 v{E+i}, v{E+i} clamp")
        for i in range(8): a(f"v_max_f32 v{A(t,0,i)}, v{A(t,0,i)}, {lo}")
        for i in range(8):
            if sel: a(f"v_fma_f32 v{A(t,0,i)}, v{E+i}, {sel}, v{A(t,0,i)}")
            else: a(f"v_add_f32 v{A(t,0,i)}, v{A(t,0,i)}, v{E+i}")
    def pack(t, dst):
        for q in range(4): a(f"v_cvt_pk_bf16_f32 v{dst+q}, v{A(t,0,2*q)}, v{A(t,0,2*q+1)}")
    for i in range(8): a(f"v_mul_f32 v{A(1,0,i)}, v{A(1,0,i)}, v{RR+i}")
    pack(1,P1_)
    for i in range(8): a(f"v_fma_f32 v{S2+i}, v{RR+i}, v122, v123")
    phi(0, lambda i:f"v{RR+i}", "v58", "v58", None); pack(0,P0_)
    phi(2, lambda i:f"v{S2+i}", "v119", "v120", "v121"); pack(2,P2_)
    if not last:
        a(f"v_cmp_gt_u32 vcc, 12, {VN}")
        for q in range(4): a(f"v_cndmask_b32 v{P2_+q}, 0, v{P2_+q}, vcc")
    a(f"v_mov_b32 v5, 0x3f803f80\n v_cmp_gt_u32 vcc, 4, {VN}")
    for q in range(4): a(f"v_cndmask_b32 v{P2o+q}, v{P2_+q}, v5, vcc")
    a(f"""
    {M16} v[8:11], {v(P0_,4)}, {v(P1_,4)}, 0
    {M16} v[12:15], {v(P2_,4)}, {v(P1_,4)}, 0
    {M16} v[16:19], {v(P0_,4)}, {v(P2o,4)}, 0
    {M16} v[20:23], {v(P2_,4)}, {v(P2o,4)}, 0
    {M16} v[24:27], {v(P2_,4)}, v[124:127], 0
    {M16} v[28:31], {v(P2_,4)}, v[128:131], 0
    v_add_u32 v6, s65, {VL16}
    """)
    for q in range(4): a(f"ds_write_b128 v6, {v(8+4*q,4)} offset:{1024*q}")
    L03=a.newlabel("lead")
    a(f"s_cmp_ge_u32 {SW}, 4\n s_cbranch_scc1 {L03}")
    ao_wload(a, WOR if last else WOF, 1, layer)
    a(f"s_mov_b32 s41, {f2u(math.log2(math.e))}")
    a.label(L03)
    a("s_waitcnt lgkmcnt(0)\n s_barrier")
    L7=a.newlabel("kv7"); LJ=a.newlabel("kvj"); L=a.newlabel("kvs")
    a(f"""
    s_mul_i32 s57, {SH}, {8*1792}
    s_add_u32 s57, s57, {KVP + layer*256*1792}
    s_cmp_eq_u32 {SW}, 7
    s_cbranch_scc1 {L}
    """)
    for w in range(8): a(f"ds_read_b32 v{8+w}, v118 offset:{w*2048*NRS(layer)}")
    a(f"""
    v_lshlrev_b32 v6, 2, v0
    s_mul_i32 s40, {SR}, 1792
    s_add_u32 s40, s40, s57
    s_waitcnt lgkmcnt(0)
    v_add_f32 v8, v8, v9
    v_add_f32 v10, v10, v11
    v_add_f32 v12, v12, v13
    v_add_f32 v14, v14, v15
    v_add_f32 v8, v8, v10
    v_add_f32 v12, v12, v14
    v_add_f32 v8, v8, v12
    v_max_u32 v8, 1, v8
    buffer_store_dword v8, v6, {R_WS}, s40 offen sc1
    {L}:
    """)
    if last:
        a(f"""
        s_mul_i32 s42, s64, 40960
        s_mul_i32 s43, {SH}, 1280
        s_add_u32 s42, s42, s43
        s_add_u32 s42, s42, {Y3}
        s_mov_b32 s43, {f2u(2.0/640)}
        """)
        for i in range(8): a(f"v_mul_f32 v{A(4,0,i)}, s43, v{A(4,0,i)}")
        for q in range(4): a(f"v_cvt_pk_bf16_f32 v{60+q}, v{A(4,0,2*q)}, v{A(4,0,2*q+1)}")
        for q in range(4): a(f"v_max_u32 v{60+q}, 1, v{60+q}")
        a(f"buffer_store_dwordx2 v[60:61], v138, {R_WS}, s42 offen sc1")
        a(f"buffer_store_dwordx2 v[62:63], v138, {R_WS}, s42 offen offset:128 sc1")
    phi(3, lambda i:f"v{RL+(i>>2)}", "v58", "v58", None)
    for aa in range(2):
        a(f"v_cvt_pk_bf16_f32 v{QP+4*aa}, v{A(3,aa,0)}, v{A(3,aa,1)}")
        a(f"v_cvt_pk_bf16_f32 v{QP+4*aa+1}, v{A(3,aa,2)}, v{A(3,aa,3)}")
        a(f"v_cvt_pk_bf16_f32 v{QP+4*aa+2}, v{24+4*aa}, v{25+4*aa}")
        a(f"v_cvt_pk_bf16_f32 v{QP+4*aa+3}, v{26+4*aa}, v{27+4*aa}")
    a(f"""
    s_mul_i32 s44, s64, 40960
    s_add_u32 s44, s44, {ob}
    """)
    pst(a,3)
    LP=a.newlabel("kvp"); LD=a.newlabel("kvd")
    a(f"""
    s_cmp_eq_u32 {SW}, 7
    s_cbranch_scc1 {L7}
    s_mov_b32 s58, {SPIN}
    {LP}:
    buffer_load_dwordx4 v[8:11], v132, {R_WS}, s57 offen sc1
    buffer_load_dwordx4 v[12:15], v132, {R_WS}, s57 offen offset:128 sc1
    s_waitcnt vmcnt(0)
    v_min3_u32 v16, v8, v9, v10
    v_min3_u32 v17, v11, v12, v13
    v_min3_u32 v16, v16, v14, v15
    v_min_u32 v16, v16, v17
    v_cmp_eq_u32 vcc, 0, v16
    s_cmp_eq_u64 vcc, 0
    s_cbranch_scc1 {LD}
    """)
    retry_check(a, None, LP, LD, 30+layer)
    a.label(LD)
    for i in range(4): a(f"v_permlane32_swap_b32 v{8+i}, v{12+i}")
    for i in range(4): a(f"v_add_f32 v{8+i}, v{8+i}, v{12+i}")
    a(f"""
    v_permlane16_swap_b32 v8, v10
    v_permlane16_swap_b32 v9, v11
    v_add_f32 v8, v8, v10
    v_add_f32 v9, v9, v11
    v_add_f32_dpp v8, v8, v8 row_ror:8 row_mask:0xf bank_mask:0xf
    v_add_f32_dpp v9, v9, v9 row_ror:8 row_mask:0xf bank_mask:0xf
    v_cvt_pk_bf16_f32 v8, v8, v9
    ds_write_b32 v133, v8
    s_waitcnt lgkmcnt(0)
    s_branch {LJ}
    {L7}:
    """)
    ao_wload(a, WOR if last else WOF, 0, layer)
    a(f"""
    {LJ}:
    s_barrier
    ds_read_b128 v[28:31], v135
    ds_read_b128 v[24:27], v134
    """)
    pst(a,4)
    a("s_waitcnt lgkmcnt(0)")
    for aa in range(2):
        a(f"{M16} {v(36+8*aa,4)}, v[28:31], {v(QP+4*aa,4)}, 0")
    for aa in range(2):
        a(f"{M16} {v(32+8*aa,4)}, v[24:27], {v(QP+4*aa,4)}, 0")
    for aa in range(2):
        D=32+8*aa
        a(f"""
        v_mov_b32 v{8+2*aa}, v{D+4}
        v_mov_b32 v{9+2*aa}, v{D+4}
        """)
    for aa in range(2): a(f"v_permlane16_swap_b32 v{8+2*aa}, v{9+2*aa}")
    for aa in range(2): a(f"v_add_f32 v{9+2*aa}, v{9+2*aa}, v58")
    for aa in range(2): a(f"v_rcp_f32 v{9+2*aa}, v{9+2*aa}")
    for aa in range(2):
        D=32+8*aa
        for i in range(8): a(f"v_mul_f32 v{D+i}, v{D+i}, v{9+2*aa}")
        for q in range(4): a(f"v_cvt_pk_bf16_f32 v{12+4*aa+q}, v{D+2*q}, v{D+2*q+1}")
        for q in range(4): a(f"v_max_u32 v{12+4*aa+q}, 1, v{12+4*aa+q}")
        a(f"buffer_store_dwordx2 {v(12+4*aa,2)}, v136, {R_WS}, s44 offen offset:{128*aa} sc1")
    a(f"""
    s_mov_b64 exec, 0xffff
    buffer_store_dwordx2 v[14:15], v137, {R_WS}, s44 offen sc1
    buffer_store_dwordx2 v[18:19], v137, {R_WS}, s44 offen offset:128 sc1
    s_mov_b64 exec, -1
    """)
    if last:
        for r in (QP+2,QP+3,QP+6,QP+7): a(f"v_max_u32 v{r}, 1, v{r}")
        a(f"""
        s_mov_b32 exec_lo, 0
        s_mov_b32 exec_hi, 0xffff0000
        buffer_store_dwordx2 {v(QP+2,2)}, v138, {R_WS}, s42 offen offset:256 sc1
        buffer_store_dwordx2 {v(QP+6,2)}, v138, {R_WS}, s42 offen offset:384 sc1
        s_mov_b64 exec, -1
        """)

def ao_wload(a, wt, part, layer):
    a(f"""
    s_mul_i32 s40, {ST}, 102400
    s_add_u32 s40, s40, {wt}
    """)
    if part==0:
        lo = 64 if layer else 48
        for f in range(lo,lo+36):
            if f%4==0: a(f"s_add_u32 s41, s40, {f*1024}\n s_mov_b32 m0, {FT+f*1024}")
            a(f"buffer_load_dwordx4 {VL16}, {R_WS}, s41 offen offset:{1024*(f%4)} sc1 lds")
    else:
        a(f"s_lshl_b32 s41, {SW}, 14")
        if not layer: a(f"s_cmp_eq_u32 {SW}, 3\n s_cselect_b32 s41, {84*1024}, s41")
        a("s_add_u32 s40, s40, s41")
        for j in range(16):
            if j%4==0: a(f"s_add_u32 s45, s40, {j*1024}\n s_add_u32 m0, s41, {FT+j*1024}")
            a(f"buffer_load_dwordx4 {VL16}, {R_WS}, s45 offen offset:{1024*(j%4)} sc1 lds")

def ao_main(a, layer):
    ob = O4 if layer else O2
    a(f"""
    s_lshl_b32 s48, {SI}, 2
    s_add_u32 s48, s48, s60
    s_mul_i32 s48, s48, 20480
    s_mul_i32 s41, s61, 10240
    s_add_u32 s48, s48, s41
    s_add_u32 s48, s48, {ob}
    s_add_u32 s49, s48, 4096
    s_add_u32 s50, s48, 8192
    s_mov_b32 s58, {SPIN}
    """)
    ld=lambda j: a(f"buffer_load_dwordx4 {v(PF+4*j,4)}, {VL16}, {R_WS}, s{48+j//4} offen offset:{1024*(j%4)} sc1")
    a(f"s_waitcnt vmcnt({0 if 'noodrain' not in EXP else (6 if layer else 7)})\n s_barrier")
    if "clk" not in EXP: pst(a,7)
    if layer:
        L=a.newlabel("p6l")
        a(f"s_cmp_lg_u32 s61, 0\n s_cbranch_scc1 {L}")
        p6_resload(a)
        a.label(L)
    AHEAD=4
    for j in range(AHEAD): ld(j)
    blocks=[]
    def chk(j):
        a(f"""
        v_min3_u32 v5, v{PF+4*j}, v{PF+4*j+1}, v{PF+4*j+2}
        v_min_u32 v5, v5, v{PF+4*j+3}
        v_cmp_eq_u32 vcc, 0, v5
        s_cmp_lg_u64 vcc, 0
        """)
    def wp(j):
        R=a.newlabel("aor"); B=a.newlabel("aob")
        if j+AHEAD<10: ld(j+AHEAD)
        a(f"s_waitcnt vmcnt({min(AHEAD,9-j)})")
        chk(j)
        a(f"s_cbranch_scc1 {R}")
        a.label(B)
        blocks.append((j,R,B))
    g640_core(a, layer==1, "v21", wait_priv=wp)
    def emit_blocks():
        for j,R,B in blocks:
            OK=a.newlabel("aok")
            a.label(R)
            ld(j)
            a("s_waitcnt vmcnt(0)")
            chk(j)
            a(f"s_cbranch_scc0 {OK}")
            retry_check(a, None, R, B, 40+layer)
            a.label(OK)
            for k in range(j+1,min(10,j+AHEAD+1)): ld(k)
            a(f"s_branch {B}")
    a.late.append(emit_blocks)

def p6_prep(a):
    mu_pos(a, "v10", "s62", "v11")
    a(f"""
    v_mul_u32_u24 v22, 1280, {VG}
    v_lshl_add_u32 v22, v10, 3, v22
    s_lshl_b32 s74, {SI}, 1
    s_add_u32 s74, s74, s63
    s_mul_i32 s74, s74, 40960
    s_mul_i32 s41, {ST}, 5120
    s_add_u32 s74, s74, s41
    s_add_u32 s74, s74, {Y3}
    """)
    tok_row(a)("v10", VN)
    a(f"""
    s_movk_i32 s41, 1280
    v_mul_lo_u32 v10, v10, s41
    v_mul_u32_u24 v12, 40, {VG}
    v_add_u32 v23, v10, v12
    s_mul_i32 s75, {ST}, 160
    s_mul_i32 s40, s60, 5120
    s_add_u32 s40, s40, {RS}
    v_add_u32 v9, s40, {VL16}
    """)

def p6_resload(a):
    for nt in range(5): a(f"buffer_load_dwordx2 {v(10+2*nt,2)}, v22, {R_WS}, s74 offen offset:{256*nt} sc1")

def p6_epilogue(a):
    L1=a.newlabel("p6a"); L2=a.newlabel("p6b"); LR=a.newlabel("p6r"); LK=a.newlabel("p6k")
    a(f"s_cmp_eq_u32 s61, 0\n s_cbranch_scc1 {L1}")
    for nt in range(5): a(f"ds_write_b128 v9, {v(AC+4*nt,4)} offset:{nt*1024}")
    a(f"""
    s_waitcnt lgkmcnt(0)
    s_barrier
    s_branch {L2}
    {LR}:
    """)
    p6_resload(a)
    a("s_waitcnt vmcnt(0)")
    retry_check(a, None, L1, LK, 50)
    a(f"""
    {L1}:
    v_min3_u32 v6, v10, v11, v12
    v_min3_u32 v7, v13, v14, v15
    v_min3_u32 v6, v6, v16, v17
    v_min3_u32 v7, v7, v18, v19
    v_min_u32 v6, v6, v7
    v_cmp_eq_u32 vcc, 0, v6
    s_cmp_lg_u64 vcc, 0
    s_cbranch_scc1 {LR}
    {LK}:
    """)
    for q in range(10):
        a(f"""
        v_lshlrev_b32 v6, 16, v{10+q}
        v_and_b32 v7, 0xffff0000, v{10+q}
        v_add_f32 v{AC+2*q}, v{AC+2*q}, v6
        v_add_f32 v{AC+2*q+1}, v{AC+2*q+1}, v7
        """)
    a("s_barrier")
    for nt in range(5): a(f"ds_read_b128 {v(SB+4*nt,4)}, v9 offset:{nt*1024}")
    a("s_waitcnt lgkmcnt(0)")
    for q in range(10):
        a(f"""
        v_add_f32 v{AC+2*q}, v{AC+2*q}, v{SB+2*q}
        v_add_f32 v{AC+2*q+1}, v{AC+2*q+1}, v{SB+2*q+1}
        v_cvt_pk_bf16_f32 v{64+q}, v{AC+2*q}, v{AC+2*q+1}
        """)
    a(f"""
    buffer_store_dwordx4 v[64:67], v23, {R_OUT}, s75 offen {OSF()}
    buffer_store_dwordx4 v[68:71], v23, {R_OUT}, s75 offen offset:16 {OSF()}
    buffer_store_dwordx2 v[72:73], v23, {R_OUT}, s75 offen offset:32 {OSF()}
    {L2}:
    """)

def probe(a, beta, dst):
    L=a.newlabel("pb")
    a(f"""
    s_cmp_lg_u32 {SW}, 7
    s_cbranch_scc1 {L}
    s_and_b32 s59, s2, 3
    s_lshl_b32 s59, s59, 12
    s_add_u32 s59, s59, {CNTB(beta)}
    v_lshlrev_b32 v255, 8, {VN}
    buffer_load_dword {dst}, v255, {R_WS}, s59 offen sc1
    {L}:
    """)
def probe_check(a, beta, src, vm):
    L=a.newlabel("pc")
    a(f"""
    s_cmp_lg_u32 {SW}, 7
    s_cbranch_scc1 {L}
    s_waitcnt vmcnt({vm})
    v_cmp_gt_u32 vcc, 16, {src}
    s_cmp_eq_u64 vcc, 0
    s_cbranch_scc1 {L}
    """)
    wait(a, beta, bar=False)
    a.label(L)

def code_touch(a):
    L=a.newlabel("ct")
    a(f"""
    s_cmp_lg_u32 {SW}, 1
    s_cbranch_scc1 {L}
    s_getpc_b64 s[40:41]
    ctbase:
    s_lshr_b32 s42, s2, 3
    s_mul_i32 s42, s42, 12
    v_min_u32 v8, 11, {VL}
    v_add_u32 v8, s42, v8
    v_lshlrev_b32 v8, 7, v8
    v_min_u32 v8, kend-ctbase-4, v8
    v_mov_b32 v9, s41
    v_add_co_u32 v8, vcc, s40, v8
    v_addc_co_u32 v9, vcc, 0, v9, vcc
    global_load_dword v254, v[8:9], off
    {L}:
    """)

def body(a):
    pst(a,0)
    if 'ctouch' in EXP: code_touch(a)
    l2_touch(a)
    if 'wtouch' not in EXP: wt_loads(a)
    zero_issue(a)
    pst(a,1)
    if 'early' in EXP:
        LE=a.newlabel("ea"); LF=a.newlabel("eb")
        a(f"s_cmp_ge_u32 {SW}, 4\n s_cbranch_scc1 {LE}")
        rows_dma(a, R_X, tok_row(a))
        a.label(LE)
    gen_ftile(a)
    zero_signal(a)
    pst(a,2)
    if 'early' in EXP: a(f"s_cmp_lt_u32 {SW}, 4\n s_cbranch_scc1 {LF}")
    rows_dma(a, R_X, tok_row(a))
    if 'early' in EXP: a.label(LF)
    if 'wtouch' in EXP: wt_loads(a)
    xtile_base(a, "s64")
    L=a.newlabel("nc")
    a(f"s_cmp_ge_u32 s72, 20\n s_cbranch_scc1 {L}")
    fft_consts(a)
    a.label(L)
    side_job(a, False, 0)
    pst(a,3)
    wl=wq_loads(a)
    xe_prep(a, False, sign="v5")
    L6=a.newlabel("w6")
    a((f"s_cmp_ge_u32 s72, 20" if 'wtside' in EXP else f"s_cmp_lt_u32 {SW}, 3")+f"\n s_cbranch_scc1 {L6}\n s_waitcnt vmcnt(0)\n {L6}:")
    rows_read(a, 4)
    wl(0); wl(1)
    a("s_waitcnt lgkmcnt(0)\n s_barrier")
    pst(a,4)
    g640_core(a, False, VL16, wait_priv=lambda j: (wl(j+2) if j<8 else None))
    pst(a,5)
    init_probe(a)
    a(f"s_mov_b32 s65, {PV0}")
    xtype_epilogue(a, "s64", False, "s65", vm1="v5")
    pst(a,6)
    a("s_waitcnt vmcnt(3)")
    wq_stage(a)
    q_core(a)
    probe(a, 0, "v252")
    wq_write(a)
    probe_check(a, 0, "v252", 0)
    a("s_waitcnt lgkmcnt(0)\n s_barrier")
    pst(a,7)
    pflush(a,0)
    def fft_phase(layer, k):
        first = layer==0
        xin,xout,var,ba = (X0,X1,PV0,2) if first else (X2,X3,PV2,4)
        S=a.newlabel("side"); J=a.newlabel("join"); S2=a.newlabel("side2")
        qkv_roles(a, layer)
        a(f"s_cmp_ge_u32 s72, 20\n s_cbranch_scc1 {S}")
        if first:
            wq_fin(a); fft_w_load(a)
        if first:
            fft_prep(a, first)
        pst(a,2)
        bg=fft_main(a, xin, xout, var, first)
        pst(a,3)
        if ("fd" in EXP and not first) or ("fd1" in EXP and first): pflush(a,6)
        nb=len(bg)
        qkv_prep(a, layer)
        drain(a); arrive(a, ba)
        J6=a.newlabel("j6")
        if nb:
            a("s_barrier")
            for c in bg: c()
        pst(a,4)
        a(f"s_branch {J if nb else J6}")
        a.label(S)
        if first:
            wq_fin(a)
            drain(a); arrive(a, 1)
            a(f"s_sub_u32 s66, s72, 20\n s_cmp_ge_u32 s66, 10\n s_cbranch_scc1 {S2}")
            wo_job(a, False)
            S3=a.newlabel("side3")
            a(f"s_branch {S3}")
            a.label(S2)
            gcol_job(a)
            a.label(S3)
            a("s_waitcnt lgkmcnt(0)")
            wait(a, 1)
            qkv_bload(a, 4)
            a("s_waitcnt vmcnt(10)\n s_barrier")
            arrive(a, 5)
        else:
            wor_loads(a)
            side_job(a, True, 0)
            drain(a); arrive(a, 3)
            qkv_bload(a, 5)
            L=a.newlabel("z4")
            a(f"""
            v_mov_b32 v8, 0
            v_mov_b32 v9, 0
            v_mov_b32 v10, 0
            v_mov_b32 v11, 0
            s_lshl_b32 s41, s67, 10
            s_add_u32 s41, s41, {O4}
            """)
            for i in range(7):
                if i==6: a(f"s_cmp_ge_u32 s67, {5120-6*768}\n s_cbranch_scc1 {L}")
                a(f"buffer_store_dwordx4 v[8:11], {VL16}, {R_WS}, s41 offen sc1\n s_add_u32 s41, s41, {768*1024}")
            a.label(L)
        qkv_prep(a, layer)
        a.label(J)
        a("s_waitcnt vmcnt(0)")
        a.label(J6)
        pst(a,5)
        pflush(a,k)
    def attn_phase(layer, k):
        last = layer==1
        pst(a,0)
        wait(a, 4 if last else 2)
        pst(a,1)
        if "clk" in EXP: a("s_memtime s[84:85]")
        qkv_main(a, layer)
        pst(a,2)
        if "clk" in EXP: a("s_memtime s[98:99]")
        qkv_tail(a, layer)
        pst(a,5)
        a(f"s_mul_i32 s40, s61, 51200\n v_add_u32 v21, s40, {VL16}")
        if last:
            p6_prep(a)
        else:
            xtile_base(a, "s64")
            a(f"s_add_u32 s66, s64, {X1}\n s_add_u32 s64, s64, {X2}\n s_mov_b32 s65, {PV2}")
            xe_prep(a, False, "s66")
            fft_prep(a, False)
        pst(a,6)
        pflush(a,k)
        ao_main(a, layer)
        pst(a,0)
        if last:
            p6_epilogue(a)
            pst(a,1)
            if STAMPS: a("s_waitcnt vmcnt(0)")
            pst(a,2)
            pflush(a,k+1)
        else:
            xtype_epilogue(a, "s64", True, "s65")
            pst(a,6)
            if "xe" in EXP: pflush(a,6)
    fft_phase(0,1)
    attn_phase(0,2)
    fft_phase(1,3)
    attn_phase(1,4)

def build(path):
    n=NAME+"_kernel"
    a=Asm(); a.late=[]
    a.l.append(f".globl {n}\n.p2align 8\n.type {n},@function")
    a.label(n)
    prologue(a)
    if STAMPS:
        for i in range(84,100): a(f"s_mov_b32 s{i}, 0")
    body(a)
    a.label("kexit")
    a("s_endpgm")
    for f in a.late: f()
    a.label("kend")
    hdr=open("cdna_kernels/"+NAME+".s.ref").read().split("; Override")[0]
    txt=hdr+"; @launch grid=(256,1,1) block=(512,1,1) lds=163840\n"+'.amdgcn_target "amdgcn-amd-amdhsa--gfx950"\n.text\n'+a.text()
    txt+=f""".section .rodata,"a"
.p2align 6
.amdhsa_kernel {n}
  .amdhsa_next_free_vgpr 256
  .amdhsa_next_free_sgpr 102
  .amdhsa_accum_offset 256
  .amdhsa_group_segment_fixed_size 0
  .amdhsa_kernarg_size 72
  .amdhsa_user_sgpr_count 2
  .amdhsa_user_sgpr_kernarg_segment_ptr 1
  .amdhsa_system_sgpr_workgroup_id_x 1
.end_amdhsa_kernel
"""
    open(path,"w").write(txt)

if __name__=="__main__":
    if len(sys.argv)>2 and sys.argv[2]=='1': STAMPS=True
    if len(sys.argv)>3: EXP=set(sys.argv[3].split(","))
    EXP ^= DEF
    for e in EXP:
        if e.startswith("rx"): RXS=[int(e[2]),int(e[3])]
    build(sys.argv[1])
```

```python
import sys, math
sys.path.insert(0, "gen")
from asmlib import *

NAME = "interleave_layers__spectral_gfnet__linear_attn_block__prompt"
XB = 2621440
X0, X2, X3 = 0, 4*XB, 3*XB
X1 = 13*XB
O4 = 5*XB
O2 = 2*XB
KVP = 14*XB
Y3 = 6*XB
WT = 11*XB
WQF = 8*XB
WOF = WQF + 32*102400
WOR = WOF + 819200
ZA = 10*XB
CNT0 = ZA
PV0 = ZA + 65536
ZC = KVP + 2*256*1792
PV2 = ZC; VAR1 = PV2 + 32768; VAR3 = VAR1 + 8192
LSS = VAR3 + 8192
CNT1 = LSS + 32768
ZCEND = CNT1 + 5*16384
def CNTB(b): return CNT0 + b*16384 if b<2 else CNT1 + (b-1)*16384
RXS = [2,2]
DBGW = 10*XB + 1048576
WS_SIZE = 15*XB
OOB = 0x7ff00000

SW,SX,SA,ST,SI = "s3","s4","s5","s6","s7"
SH = "s71"
SR = "s80"
SROT = "s68"
R_X,R_WR,R_WI,R_WQKV,R_WO,R_OUT,R_WS,R_DBG = ["s[%d:%d]"%(8+4*i,11+4*i) for i in range(8)]
VL,VN,VG,VL16 = "v1","v2","v3","v4"
M16 = "v_mfma_f32_16x16x32_bf16"
STAMPS = False
EXP = set()
DEF = {'wtouch','lateb1','ctouch'}

def PSL():
    for e in EXP:
        if e.startswith('ps'): return 's_sleep '+e[2:]
    return ''
def OSF(): return 'sc1' if 'osc1' in EXP else 'nt' if 'ont' in EXP else ''
def pst(a, i):
    if STAMPS: a(f"s_memrealtime s[{84+2*i}:{85+2*i}]")
DSEL = {(0,0):1,(0,3):2,(0,5):3,(0,6):5,(1,3):6,(2,1):7,(2,2):8,(3,7):9,(3,6):10,(3,3):11,(4,1):12,(4,2):13,(5,7):14,(5,2):15}
def pflush(a, k):
    if not STAMPS: return
    if "dbg" in EXP:
        L=a.newlabel("df")
        a(f"s_waitcnt lgkmcnt(0)\n s_cmp_lg_u32 {SW}, 4\n s_cbranch_scc1 {L}\n s_and_b32 s58, s2, 0x38\n s_cmp_lg_u32 s58, 0\n s_cbranch_scc1 {L}\n s_mov_b64 exec, 1")
        for (kk,i),w in DSEL.items():
            if kk!=k: continue
            if w==1: a(f"s_not_b32 s{84+2*i}, s{84+2*i}")
            a(f"v_mov_b32 v254, s{84+2*i}\n v_mov_b32 v255, {4*w}\n buffer_atomic_umax v254, v255, {R_DBG}, 0 offen sc1\n s_nop 1")
        a("s_mov_b64 exec, -1")
        a.label(L)
        for i in range(84,100): a(f"s_mov_b32 s{i}, 0")
        return
    a("s_waitcnt lgkmcnt(0)")
    a(f"""
    s_lshl_b32 s58, s2, 3
    s_add_u32 s58, s58, {SW}
    s_lshl_b32 s58, s58, 5
    s_add_u32 s58, s58, {DBGW + k*65536}
    v_lshlrev_b32 v255, 2, {VL}
    """)
    for i in range(8): a(f"v_writelane_b32 v254, s{84+2*i}, {i}")
    a(f"""
    s_mov_b64 exec, 0xff
    buffer_store_dword v254, v255, {R_WS}, s58 offen
    s_mov_b64 exec, -1
    """)
    for i in range(84,100): a(f"s_mov_b32 s{i}, 0")

def prologue(a):
    a(f"""
    s_cmp_ge_u32 s2, 256
    s_cbranch_scc1 kexit
    s_load_dwordx16 s[40:55], s[0:1], 0
    s_load_dwordx2 s[56:57], s[0:1], 64
    v_and_b32 {VL}, 63, v0
    v_lshrrev_b32 v5, 6, v0
    v_and_b32 {VN}, 15, v0
    v_bfe_u32 {VG}, v0, 4, 2
    v_readfirstlane_b32 {SW}, v5
    v_lshlrev_b32 {VL16}, 4, {VL}
    s_and_b32 {SX}, s2, 7
    s_bfe_u32 {SA}, s2, 0x20003
    s_lshr_b32 {ST}, s2, 5
    s_lshl_b32 {SI}, {SX}, 2
    s_add_u32 {SI}, {SI}, {SA}
    s_mov_b32 s83, 0
    s_mov_b32 s79, 0
    s_mov_b32 s69, 0
    s_mov_b32 s70, 0
    v_mov_b32 v252, 0
    v_mov_b32 v244, 0
    s_and_b32 s60, {SW}, 3
    s_lshr_b32 s61, {SW}, 2
    s_and_b32 s62, {SW}, 1
    s_lshl_b32 s62, s62, 2
    s_bfe_u32 s63, {SW}, 0x10001
    s_and_b32 s72, {ST}, 1
    s_lshl_b32 s72, s72, 2
    s_add_u32 s72, s72, {SX}
    s_and_b32 s72, s72, 7
    s_lshl_b32 s73, {SA}, 3
    s_add_u32 s72, s72, s73
    s_mul_i32 s73, {ST}, 20
    s_add_u32 s73, s73, s72
    """)
    if 'ctouch' in EXP and 'ctlate' not in EXP: code_touch(a)
    a("s_waitcnt lgkmcnt(0)")
    for srd, src, size in ((8,40,2621440),(32,56,WS_SIZE),(20,48,2457600),(12,42,1314816),(16,44,1314816),(24,50,819200),(28,52,2621440),(36,54,256)):
        a(f"""
        s_mov_b32 s{srd}, s{src}
        s_and_b32 s{srd+1}, s{src+1}, 0xffff
        s_mov_b32 s{srd+2}, {size}
        s_mov_b32 s{srd+3}, 0x20000
        """)

def zero_issue(a):
    L = a.newlabel("zi")
    a(f"""
    s_cmp_lg_u32 s2, 0
    s_cbranch_scc1 {L}
    s_cmp_lg_u32 {SW}, 6
    s_cbranch_scc1 {L}
    v_mov_b32 v8, 0
    v_mov_b32 v9, 0
    v_mov_b32 v10, 0
    v_mov_b32 v11, 0
    s_mov_b32 s42, {CNT0}
    v_lshlrev_b32 v12, 8, {VL}
    buffer_store_dword v8, v12, {R_WS}, s42 offen sc1
    s_mov_b32 s42, {CNT0+16384}
    buffer_store_dword v8, v12, {R_WS}, s42 offen sc1
    """)
    a.label(L)

def zero_signal(a):
    L = a.newlabel("zs")
    a(f"""
    s_cmp_lg_u32 s2, 0
    s_cbranch_scc1 {L}
    s_cmp_lg_u32 {SW}, 6
    s_cbranch_scc1 {L}
    s_waitcnt vmcnt(0)
    v_mov_b32 v254, 1
    v_mov_b32 v255, 0
    s_mov_b64 exec, 1
    buffer_store_dword v254, v255, {R_DBG}, 0 offen sc1
    s_mov_b64 exec, -1
    {L}:
    """)

def zfill(a, base, nchunks, rounds, zr):
    for k in range(4): a(f"v_mov_b32 v{zr+k}, 0")
    a(f"""
    s_lshl_b32 s40, {SW}, 8
    s_add_u32 s40, s40, s2
    s_lshl_b32 s41, s40, 10
    s_add_u32 s41, s41, {base}
    """)
    L=a.newlabel("zf")
    for i in range(rounds):
        if (i+1)*2048>nchunks: a(f"s_cmp_ge_u32 s40, {nchunks-i*2048}\n s_cbranch_scc1 {L}")
        a(f"buffer_store_dwordx4 {v(zr,4)}, {VL16}, {R_WS}, s41 offen sc1")
        if i<rounds-1: a(f"s_add_u32 s41, s41, {2048*1024}")
    a.label(L)

SPIN = 40000
def retry_check(a, Lfail_tag, Lback, Ldone, tag):
    a(f"""
    s_cmp_lg_u32 s83, 0
    s_cbranch_scc1 {Ldone}
    {'s_sleep 4' if 'sleep' in EXP else ''}
    s_sub_u32 s58, s58, 1
    s_cmp_lg_u32 s58, 0
    s_cbranch_scc1 {Lback}
    s_mov_b32 s83, {tag}
    v_mov_b32 v254, {tag}
    v_mov_b32 v255, 16
    buffer_store_dword v254, v255, {R_DBG}, 0 offen
    s_branch {Ldone}
    """)

def poll(a, srd, soff, vaddr, target, tag):
    Lp=a.newlabel("poll"); Ld=a.newlabel("polld")
    a(f"""
    s_mov_b32 s58, {SPIN}
    s_cmp_lg_u32 s83, 0
    s_cbranch_scc1 {Ld}
    {Lp}:
    buffer_load_dword v254, {vaddr}, {srd}, {soff} offen sc1
    s_waitcnt vmcnt(0)
    v_cmp_gt_u32 vcc, {target}, v254
    s_cmp_eq_u64 vcc, 0
    s_cbranch_scc1 {Ld}
    {PSL()}
    s_sub_u32 s58, s58, 1
    s_cmp_lg_u32 s58, 0
    s_cbranch_scc1 {Lp}
    s_mov_b32 s83, {tag}
    v_mov_b32 v254, {tag}
    v_mov_b32 v255, 16
    buffer_store_dword v254, v255, {R_DBG}, 0 offen
    {Ld}:
    """)

def poll_pipe(a, srd, soff, vaddr, target, tag, tr, D=4):
    Lp=a.newlabel("pp"); Ld=a.newlabel("ppd")
    a(f"""
    s_mov_b32 s58, {SPIN}
    s_cmp_lg_u32 s83, 0
    s_cbranch_scc1 {Ld}
    """)
    for k in range(D-1):
        a(f"buffer_load_dword v{tr+k}, {vaddr}, {srd}, {soff} offen sc1\n s_sleep 3")
    a.label(Lp)
    for k in range(D):
        a(f"""
        buffer_load_dword v{tr+(k+D-1)%D}, {vaddr}, {srd}, {soff} offen sc1
        s_waitcnt vmcnt({D-1})
        v_cmp_gt_u32 vcc, {target}, v{tr+k}
        s_cmp_eq_u64 vcc, 0
        s_cbranch_scc1 {Ld}
        """)
    a(f"""
    s_sub_u32 s58, s58, 1
    s_cmp_lg_u32 s58, 0
    s_cbranch_scc1 {Lp}
    s_mov_b32 s83, {tag}
    v_mov_b32 v254, {tag}
    v_mov_b32 v255, 16
    buffer_store_dword v254, v255, {R_DBG}, 0 offen
    {Ld}:
    """)

def init_probe(a):
    L=a.newlabel("ip")
    a(f"""
    s_cmp_lg_u32 {SW}, 6
    s_cbranch_scc1 {L}
    v_mov_b32 v255, 0
    buffer_load_dword v253, v255, {R_DBG}, 0 offen sc1
    {L}:
    """)

def init_wait(a):
    L=a.newlabel("iw")
    a(f"""
    v_cmp_gt_u32 vcc, 1, v253
    s_cmp_eq_u64 vcc, 0
    s_cbranch_scc1 {L}
    v_mov_b32 v255, 0
    """)
    poll(a, R_DBG, 0, "v255", 1, 100)
    a.label(L)

def drain(a): a("s_waitcnt vmcnt(0) lgkmcnt(0)\n s_barrier")

def arrive(a, beta):
    L=a.newlabel("arr")
    a(f"""
    s_cmp_lg_u32 {SW}, 6
    s_cbranch_scc1 {L}
    s_and_b32 s59, s2, 15
    s_lshl_b32 s59, s59, 8
    s_add_u32 s59, s59, {CNTB(beta)}
    v_lshlrev_b32 v255, 12, {VL}
    v_mov_b32 v254, 1
    s_mov_b64 exec, 15
    buffer_atomic_add v254, v255, {R_WS}, s59 offen sc1
    s_mov_b64 exec, -1
    {L}:
    """)

def bar_target(a, beta):
    lo = 4 if beta in (3,5) else 12
    a(f"v_cmp_gt_u32 vcc, 8, {VN}\n v_mov_b32 v253, {lo}\n v_cndmask_b32 v253, 8, v253, vcc")

def wait(a, beta, bar=True, target=16):
    L=a.newlabel("wt")
    a(f"""
    s_cmp_lg_u32 {SW}, 7
    s_cbranch_scc1 {L}
    s_and_b32 s59, s2, 3
    s_lshl_b32 s59, s59, 12
    s_add_u32 s59, s59, {CNTB(beta)}
    v_lshlrev_b32 v255, 8, {VN}
    """)
    if beta in (2,3,4,5):
        bar_target(a, beta); target="v253"
    if beta in (2,4) and 'ppipe' in EXP: poll_pipe(a, R_WS, "s59", "v255", target, beta+1, 8)
    else: poll(a, R_WS, "s59", "v255", target, beta+1)
    a.label(L)
    if bar: a("s_barrier")

def larrive(a, soff):
    a(f"""
    v_mov_b32 v255, 0
    v_mov_b32 v254, 1
    s_mov_b64 exec, 1
    buffer_atomic_add v254, v255, {R_WS}, {soff} offen sc1
    s_mov_b64 exec, -1
    """)

FT = 0
AL = 51200
RS = 102400
VARL = 147456
def gen_ftile(a, selector=False, mid=None):
    Lp=a.newlabel("ft")
    a(f"s_mov_b32 s40, {SW}")
    if not selector:
        a(f"""
        v_and_b32 v8, 1, {VN}
        v_cvt_f32_u32 v8, v8
        v_mul_f32 v8, 0.25, v8
        v_lshrrev_b32 v9, 1, {VN}
        s_mul_i32 s44, {ST}, 40
        s_add_u32 s44, s44, 1
        v_add_u32 v9, s44, v9
        v_lshlrev_b32 v10, 3, {VG}
        s_mov_b32 s45, {f2u(1.0/640)}
        v_mov_b32 v28, 0.125
        v_sub_f32 v29, 0.5, v8
        v_sub_f32 v29, v29, v8
        """)
    else:
        a(f"""
        v_lshrrev_b32 v9, 2, {VN}
        v_mul_u32_u24 v9, 20, v9
        v_and_b32 v8, 3, {VN}
        v_add_u32 v9, v9, v8
        s_and_b32 s44, {ST}, 3
        s_mul_i32 s44, s44, 80
        v_add_u32 v9, s44, v9
        v_lshlrev_b32 v10, 3, {VG}
        v_sub_u32 v9, v9, v10
        v_mov_b32 v28, 0x3f80
        v_mov_b32 v29, 0x3f800000
        """)
    a.label(Lp)
    a(f"""
    s_mul_i32 s41, s40, 52
    s_lshr_b32 s41, s41, 8
    s_mul_i32 s42, s41, 5
    s_sub_u32 s42, s40, s42
    s_lshl_b32 s43, s40, 10
    v_add_u32 v30, s43, {VL16}
    """)
    if not selector:
        a(f"""
        s_lshl_b32 s42, s42, 3
        s_lshl_b32 s41, s41, 5
        v_add_u32 v11, s42, v9
        v_add_u32 v12, s41, v10
        v_cmp_eq_u32 vcc, 0x140, v11
        v_cvt_f32_u32 v13, v11
        v_cvt_f32_u32 v12, v12
        v_mul_f32 v13, s45, v13
        v_cndmask_b32 v14, v8, v28, vcc
        v_cndmask_b32 v13, v13, v29, vcc
        v_fma_f32 v16, v12, v13, v14
        v_cos_f32 v15, v13
        v_add_f32 v17, v16, v13
        v_cos_f32 v16, v16
        v_cos_f32 v17, v17
        v_add_f32 v15, v15, v15
        """)
        for i in range(2,8): a(f"v_fma_f32 v{16+i}, v15, v{15+i}, -v{14+i}")
        for i in range(4): a(f"v_cvt_pk_bf16_f32 v{24+i}, v{16+2*i}, v{17+2*i}")
    else:
        a(f"""
        s_lshl_b32 s42, s42, 2
        s_lshl_b32 s41, s41, 5
        s_sub_u32 s42, s42, s41
        v_add_u32 v11, s42, v9
        """)
        for q in range(4):
            a(f"""
            v_cmp_eq_u32 vcc, {2*q}, v11
            v_cndmask_b32 v{24+q}, 0, v28, vcc
            v_cmp_eq_u32 vcc, {2*q+1}, v11
            v_cndmask_b32 v{24+q}, v{24+q}, v29, vcc
            """)
    a(f"""
    ds_write_b128 v30, v[24:27] offset:{FT}
    s_add_u32 s40, s40, 8
    s_cmp_lt_u32 s40, 50
    s_cbranch_scc1 {Lp}
    """)

def l2_touch(a):
    L1=a.newlabel("tc1"); L2=a.newlabel("tc2"); L3=a.newlabel("tc3"); L4=a.newlabel("tc4")
    a(f"""
    s_cmp_ge_u32 {SW}, 4
    s_cbranch_scc1 {L3}
    v_lshlrev_b32 v8, 7, {VL}
    s_cmp_eq_u32 {SW}, 3
    s_cbranch_scc1 {L4}
    s_cmp_eq_u32 {SW}, {99 if 'wtouch' not in EXP else 2}
    s_cbranch_scc0 {L2}
    s_mul_i32 s40, s2, {41*128}
    v_min_u32 v9, {40*128}, v8
    buffer_load_dword v254, v9, {R_WR}, s40 offen
    buffer_load_dword v254, v9, {R_WI}, s40 offen
    s_branch {L2}
    {L4}:
    s_mul_i32 s40, s2, 3200
    v_min_u32 v9, {24*128}, v8
    buffer_load_dword v254, v9, {R_WO}, s40 offen
    s_branch {L2}
    {L3}:
    s_and_b32 s40, {SW}, 1
    s_lshl_b32 s40, s40, 6
    v_add_u32 v8, s40, {VL}
    v_min_u32 v8, 79, v8
    s_cmp_ge_u32 {SW}, 6
    s_cbranch_scc1 {L1}
    v_mul_u32_u24 v9, 205, v8
    v_lshrrev_b32 v9, 11, v9
    v_mul_u32_u24 v10, 10, v9
    v_sub_u32 v10, v8, v10            ; line
    v_and_b32 v11, 3, v9              ; s2&3
    v_lshrrev_b32 v9, 2, v9
    s_lshl_b32 s40, {SA}, 4
    s_lshl_b32 s41, {ST}, 1
    s_add_u32 s40, s40, s41
    v_add_u32 v9, s40, v9             ; s1
    v_lshl_add_u32 v9, v9, 5, v11
    s_lshl_b32 s40, {SX}, 2
    v_add_u32 v9, s40, v9
    v_mul_u32_u24 v9, 1280, v9
    v_lshl_add_u32 v9, v10, 7, v9
    buffer_load_dword v254, v9, {R_X}, 0 offen
    s_branch {L2}
    {L1}:
    s_mul_i32 s40, {ST}, 80
    v_add_u32 v8, s40, v8
    v_mul_u32_u24 v8, 3840, v8
    s_lshl_b32 s40, {SI}, 7
    s_cmp_ge_u32 {SI}, 30
    s_cselect_b32 s40, {OOB}, s40
    buffer_load_dword v254, v8, {R_WQKV}, s40 offen
    {L2}:
    """)

class LQ:
    def __init__(s,a): s.a=a; s.q=[]
    def op(s,text,tag): s.a(text); s.q.append(tag)
    def need(s,*tags):
        idx=[i for i,t in enumerate(s.q) if t in tags]
        if not idx: return
        n=len(s.q)-1-max(idx)
        s.a(f"s_waitcnt lgkmcnt({min(n,15)})")
        s.q=s.q[len(s.q)-min(n,15):] if n else []

AC = 24
SB = 44
PF = 84
WQR = 124
def g640_core(a, swapped, vbase, wait_priv=None):
    def rd(j):
        for nt in range(5):
            a(f"ds_read_b128 {v(SB+20*(j&1)+4*nt,4)}, {vbase} offset:{(j*5+nt)*1024}")
    rd(0)
    for j in range(10):
        if j<9: rd(j+1)
        if wait_priv: wait_priv(j)
        a(f"s_waitcnt lgkmcnt({5 if j<9 else 0})")
        for nt in range(5):
            p=v(PF+4*j,4); s=v(SB+20*(j&1)+4*nt,4); d=v(AC+4*nt,4)
            c = d if j else "0"
            if swapped: a(f"{M16} {d}, {s}, {p}, {c}")
            else:       a(f"{M16} {d}, {p}, {s}, {c}")

def xe_prep(a, fraglin, s_res=None, sign=None):
    a(f"""
    v_lshrrev_b32 v10, 3, {VL}
    v_and_b32 v11, 7, {VL}
    s_lshl_b32 s42, s60, 3
    """)
    if sign: a(f"v_and_b32 {sign}, 2, v10\n v_cvt_f32_u32 {sign}, {sign}\n v_subrev_f32 {sign}, 1.0, {sign}")
    if fraglin:
        a(f"""
        v_lshrrev_b32 v9, 1, v11
        v_lshlrev_b32 v9, 8, v9
        v_lshl_add_u32 v9, v10, 4, v9
        v_and_b32 v8, 1, v11
        v_lshl_add_u32 v9, v8, 3, v9
        s_mul_i32 s43, s61, 5120
        s_lshl_b32 s44, s63, 10
        s_add_u32 s43, s43, s44
        s_lshl_b32 s44, s62, 5
        s_add_u32 s43, s43, s44
        v_add_u32 v9, s43, v9
        """)
    else:
        a(f"""
        s_mul_i32 s43, s61, 40960
        s_lshl_b32 s44, s60, 9
        s_add_u32 s43, s43, s44
        v_lshlrev_b32 v9, 3, {VL}
        v_add_u32 v9, s43, v9
        """)
    a(f"""
    v_xor_b32 v11, v11, v10
    v_lshlrev_b32 v11, 4, v11
    v_lshl_add_u32 v10, v10, 7, v11
    s_mul_i32 s43, s61, 10240
    s_lshl_b32 s44, s60, 10
    s_add_u32 s43, s43, s44
    s_add_u32 s43, s43, {RS}
    v_add_u32 v10, s43, v10
    v_lshlrev_b32 v8, 1, {VG}
    s_lshr_b32 s44, s62, 2
    v_add_u32 v8, s44, v8
    v_and_b32 v11, 7, {VN}
    v_xor_b32 v8, v8, v11
    v_lshlrev_b32 v8, 4, v8
    v_lshl_add_u32 v8, {VN}, 7, v8
    s_mul_i32 s43, s61, 20480
    s_mul_i32 s44, s63, 10240
    s_add_u32 s43, s43, s44
    s_add_u32 s43, s43, {RS}
    v_add_u32 v8, s43, v8
    """)
    if s_res:
        a(f"""
        s_add_u32 s46, {s_res}, 4096
        s_cmp_ge_u32 s60, 2
        s_cselect_b32 s46, {OOB}, s46
        buffer_load_dwordx2 v[12:13], v9, {R_WS}, {s_res} offen sc1
        buffer_load_dwordx2 v[14:15], v9, {R_WS}, {s_res} offen offset:2048 sc1
        buffer_load_dwordx2 v[16:17], v9, {R_WS}, s46 offen sc1
        """)

def xtype_epilogue(a, s_dst, res=False, s_var=None, vm0=None, vm1=None, pre_bar=None, AC=AC, T=SB, extra_write=None, extra_work=None, post_bar=None):
    for nt in range(5): a(f"ds_write_b128 v8, {v(AC+4*nt,4)} offset:{nt*2048}")
    if s_var:
        a(f"""
        """)
    if extra_write: extra_write()
    a(f"""
    s_add_u32 s46, {s_dst}, 4096
    s_cmp_ge_u32 s60, 2
    s_cselect_b32 s46, {OOB}, s46
    s_cselect_b32 s47, 0, 1.0
    """)
    if res:
        a("s_waitcnt vmcnt(0)")
        for q in range(6):
            a(f"v_lshlrev_b32 v{T+24+2*q}, 16, v{12+q}")
            a(f"v_and_b32 v{T+25+2*q}, 0xffff0000, v{12+q}")
    if s_var:
        a(f"""
        v_mov_b32 v18, s47
        s_cmp_eq_u32 {ST}, 7
        s_cselect_b32 s47, 1, 99
        s_cmp_eq_u32 s60, s47
        s_cselect_b32 s47, 7, 99
        v_lshrrev_b32 v19, 3, {VL}
        v_cmp_ne_u32 vcc, s47, v19
        v_cndmask_b32 v18, 0, v18, vcc
        v_and_b32 v20, 7, {VL}
        v_lshlrev_b32 v20, 4, v20
        v_lshl_add_u32 v20, {VG}, 2, v20
        s_lshl_b32 s47, s61, 7
        s_lshl_b32 s45, s60, 8
        s_add_u32 s47, s47, s45
        s_add_u32 s47, s47, {VARL}
        v_add_u32 v20, s47, v20
        """)
    D = ("xe" in EXP and res)
    if D: pst(a,1)
    a("s_waitcnt lgkmcnt(0)")
    if D: pst(a,2)
    a("s_barrier")
    if D: pst(a,3)
    if post_bar: post_bar()
    for k in range(3):
        a(f"ds_read_b128 {v(T+4*k,4)}, v10 offset:{4096*k}")
        a(f"ds_read_b128 {v(T+12+4*k,4)}, v10 offset:{20480+4096*k}")
    for k in range(3):
        a(f"s_waitcnt lgkmcnt({4-2*k})")
        for i in range(4*k,4*k+4):
            if vm0: a(f"v_mul_f32 v{T+i}, {vm0}, v{T+i}")
            if vm1: a(f"v_fma_f32 v{T+i}, {vm1}, v{T+12+i}, v{T+i}")
            else: a(f"v_add_f32 v{T+i}, v{T+i}, v{T+12+i}")
            if res: a(f"v_add_f32 v{T+i}, v{T+i}, v{T+24+i}")
        a(f"v_cvt_pk_bf16_f32 v{12+2*k}, v{T+4*k}, v{T+4*k+1}")
        a(f"v_cvt_pk_bf16_f32 v{13+2*k}, v{T+4*k+2}, v{T+4*k+3}")
        if s_var: a(f"v_max_u32 v{12+2*k}, 1, v{12+2*k}\n v_max_u32 v{13+2*k}, 1, v{13+2*k}")
        if k<2: a(f"buffer_store_dwordx2 {v(12+2*k,2)}, v9, {R_WS}, {s_dst} offen offset:{2048*k} sc1")
        else: a(f"buffer_store_dwordx2 {v(12+2*k,2)}, v9, {R_WS}, s46 offen sc1")
    if D: pst(a,4)
    if s_var:
        a("v_cmp_lt_f32 vcc, 0, v18")
        for i in range(4): a(f"v_mul_f32 v{T+i}, v{T+i}, v{T+i}")
        for i in range(4): a(f"v_cndmask_b32{'_e64' if 'valu' in EXP else ''} v{T+8+i}, 0, v{T+8+i}, vcc")
        for i in range(4): a(f"v_fmac_f32 v{T+i}, v{T+4+i}, v{T+4+i}")
        for i in range(4): a(f"v_fmac_f32 v{T+i}, v{T+8+i}, v{T+8+i}")
        a(f"""
        v_permlane32_swap_b32 v{T}, v{T+2}
        v_permlane32_swap_b32 v{T+1}, v{T+3}
        v_add_f32 v{T}, v{T}, v{T+2}
        v_add_f32 v{T+1}, v{T+1}, v{T+3}
        v_permlane16_swap_b32 v{T}, v{T+1}
        v_add_f32 v{T}, v{T}, v{T+1}
        v_add_f32_dpp v{T}, v{T}, v{T} row_ror:8 row_mask:0xf bank_mask:0xf
        ds_write_b32 v20, v{T}
        """)
        Ls=a.newlabel("xv")
        if pre_bar: pre_bar()
        a(f"""
        v_lshlrev_b32 v18, 3, {VL}
        v_add_u32 v18, {VARL}, v18
        v_lshlrev_b32 v11, 2, {VL}
        s_lshl_b32 s47, {ST}, 12
        s_lshl_b32 s46, {SI}, 7
        s_add_u32 s47, s47, s46
        s_add_u32 s47, s47, {s_var}
        s_waitcnt lgkmcnt(0)
        s_barrier
        s_cmp_lg_u32 {SW}, 6
        s_cbranch_scc1 {Ls}
        ds_read_b64 {v(T,2)}, v18
        ds_read_b64 {v(T+2,2)}, v18 offset:256
        ds_read_b64 {v(T+4,2)}, v18 offset:512
        ds_read_b64 {v(T+6,2)}, v18 offset:768
        s_waitcnt lgkmcnt(0)
        v_add_f32 v{T}, v{T}, v{T+2}
        v_add_f32 v{T+1}, v{T+1}, v{T+3}
        v_add_f32 v{T+4}, v{T+4}, v{T+6}
        v_add_f32 v{T+5}, v{T+5}, v{T+7}
        v_add_f32 v{T}, v{T}, v{T+4}
        v_add_f32 v{T+1}, v{T+1}, v{T+5}
        v_cvt_pk_bf16_f32 v10, v{T}, v{T+1}
        v_max_u32 v10, 1, v10
        s_mov_b32 exec_hi, 0
        buffer_store_dword v10, v11, {R_WS}, s47 offen sc1
        s_mov_b32 exec_hi, -1
        {Ls}:
        """)
    if extra_work: extra_work()

def mu_pos(a, dst, s_a, tmp, src=VN):
    a(f"""
    v_lshrrev_b32 {tmp}, 2, {src}
    v_and_b32 {dst}, 3, {src}
    v_lshl_add_u32 {dst}, {tmp}, 3, {dst}
    v_add_u32 {dst}, {s_a}, {dst}
    """)

def vsign(a, dst):
    a(f"""
    v_and_b32 {dst}, 2, {VN}
    v_cvt_f32_u32 {dst}, {dst}
    v_subrev_f32 {dst}, 1.0, {dst}
    """)

def rows_dma(a, srd, rowfn, defer=False):
    a(f"""
    v_lshrrev_b32 v8, 3, {VL}
    v_add_u32 v9, 8, v8
    """)
    rowfn("v6","v8"); rowfn("v7","v9")
    a(f"""
    s_movk_i32 s41, 1280
    v_mul_lo_u32 v6, v6, s41
    v_mul_lo_u32 v7, v7, s41
    v_and_b32 v9, 6, v8
    v_and_b32 v10, 7, {VL}
    v_xor_b32 v9, v9, v10
    v_lshl_add_u32 v6, v9, 4, v6
    v_lshl_add_u32 v7, v9, 4, v7
    s_mul_i32 s52, s61, 640
    s_mul_i32 s53, {SW}, 10240
    s_add_u32 s53, s53, {AL}
    """)
    def ch(c):
        for hf in range(2):
            a(f"s_add_u32 m0, s53, {2048*c+1024*hf-128*c}")
            a(f"buffer_load_dwordx4 v{6+hf}, {srd}, s52 offen offset:{128*c} lds")
    if defer: return ch
    for c in range(5): ch(c)

def rows_read(a, later_vm):
    a(f"""
    v_and_b32 v6, 6, {VN}
    v_xor_b32 v6, v6, {VG}
    v_lshlrev_b32 v6, 4, v6
    v_lshl_add_u32 v6, {VN}, 7, v6
    s_mul_i32 s41, {SW}, 10240
    s_add_u32 s41, s41, {AL}
    v_add_u32 v6, s41, v6
    v_xor_b32 v7, 64, v6
    s_waitcnt vmcnt({later_vm})
    """)
    for j in range(10):
        a(f"ds_read_b128 {v(PF+4*j,4)}, v{6+(j&1)} offset:{2048*(j>>1)}")

def tok_row(a):
    def fn(dst, m):
        a(f"""
        s_lshl_b32 s42, {SA}, 1
        s_add_u32 s42, s42, s63
        s_lshl_b32 s42, s42, 3
        s_add_u32 s42, s42, s62
        s_lshl_b32 s42, s42, 5
        s_lshl_b32 s43, {SX}, 2
        s_add_u32 s42, s42, s43
        v_and_b32 {dst}, 3, {m}
        v_lshlrev_b32 {dst}, 5, {dst}
        v_lshrrev_b32 v11, 2, {m}
        v_add3_u32 {dst}, {dst}, v11, s42
        """)
    return fn

def xtile_base(a, dst):
    a(f"""
    s_mul_i32 {dst}, {SI}, 81920
    s_mul_i32 s40, {ST}, 5120
    s_add_u32 {dst}, {dst}, s40
    """)

def wo_job(a, selector):
    def fn(dst, m):
        a(f"""
        s_lshl_b32 s40, s66, 1
        s_add_u32 s40, s40, s63
        s_lshl_b32 s40, s40, 5
        s_add_u32 s40, s40, s62
        """)
        mu_pos(a, dst, "s40", "v11", m)
    rows_dma(a, R_WO, fn)
    if selector: gen_ftile(a, True)
    xe_prep(a, True, sign="v22")
    rows_read(a, 0)
    a("s_waitcnt lgkmcnt(0)\n s_barrier")
    g640_core(a, False, VL16)
    a(f"""
    s_mul_i32 s64, {ST}, 102400
    s_mul_i32 s65, s66, 10240
    s_add_u32 s64, s64, s65
    s_add_u32 s64, s64, {WOR if selector else WOF}
    """)
    if selector:
        a(f"""
        s_cmp_ge_u32 {ST}, 4
        s_cselect_b32 s40, 0, 1.0
        s_cselect_b32 s41, 1.0, 0
        v_mov_b32 v22, s40
        v_mov_b32 v23, s41
        """)
        xtype_epilogue(a, "s64", vm0="v22", vm1="v23")
    else:
        xtype_epilogue(a, "s64", vm1="v22")

WQL = AL
def wq_loads(a, defer=False):
    a(f"""
    v_lshrrev_b32 v22, 3, {VL}
    v_and_b32 v23, 2, v22
    v_and_b32 v21, 7, {VL}
    v_xor_b32 v23, v23, v21
    s_movk_i32 s41, 3840
    v_mul_lo_u32 v22, v22, s41
    v_lshl_add_u32 v22, v23, 4, v22
    v_xor_b32 v23, 64, v22
    s_mul_i32 s54, {SW}, {80*3840}
    s_lshl_b32 s41, {SI}, 7
    s_add_u32 s54, s54, s41
    s_cmp_ge_u32 {SI}, 30
    s_cselect_b32 s54, {OOB}, s54
    """)
    def ld(j):
        a(f"buffer_load_dwordx4 {v(WQR+4*j,4)}, v{22+(j&1)}, {R_WQKV}, s54 offen")
        if j<9: a(f"s_add_u32 s54, s54, {8*3840}")
    return ld

def wq_stage(a):
    a(f"""
    s_mul_i32 s41, {SW}, 10240
    s_add_u32 s41, s41, {WQL}
    v_add_u32 v6, s41, {VL16}
    """)
    for j in range(10): a(f"ds_write_b128 v6, {v(WQR+4*j,4)} offset:{1024*j}")

def wq_dma(a):
    a(f"""
    v_lshrrev_b32 v22, 3, {VL}
    v_and_b32 v23, 2, v22
    v_and_b32 v21, 7, {VL}
    v_xor_b32 v23, v23, v21
    s_movk_i32 s41, 3840
    v_mul_lo_u32 v22, v22, s41
    v_lshl_add_u32 v22, v23, 4, v22
    v_xor_b32 v23, 64, v22
    s_mul_i32 s54, {SW}, {80*3840}
    s_lshl_b32 s41, {SI}, 7
    s_add_u32 s54, s54, s41
    s_cmp_ge_u32 {SI}, 30
    s_cselect_b32 s54, {OOB}, s54
    s_mul_i32 s55, {SW}, 10240
    s_add_u32 s55, s55, {WQL}
    """)
    for j in range(10):
        a(f"s_add_u32 m0, s55, {1024*j}")
        a(f"buffer_load_dwordx4 v{22+(j&1)}, {R_WQKV}, s54 offen lds")
        if j<9: a(f"s_add_u32 s54, s54, {8*3840}")

def x_regloads(a):
    a(f"v_lshrrev_b32 v8, 3, {VL}\n v_add_u32 v9, 8, v8")
    fn=tok_row(a); fn("v22","v8"); fn("v23","v9")
    a(f"""
    s_movk_i32 s41, 1280
    v_mul_lo_u32 v22, v22, s41
    v_mul_lo_u32 v23, v23, s41
    v_and_b32 v9, 6, v8
    v_and_b32 v10, 7, {VL}
    v_xor_b32 v9, v9, v10
    v_lshl_add_u32 v22, v9, 4, v22
    v_lshl_add_u32 v23, v9, 4, v23
    s_mul_i32 s52, s61, 640
    """)
    return lambda j: a(f"buffer_load_dwordx4 {v(WQR+4*j,4)}, v{22+(j&1)}, {R_X}, s52 offen offset:{128*(j>>1)}")

ACQ = AC
RS2 = 133120
def q_core(a):
    a(f"""
    v_lshrrev_b32 v7, 2, {VN}
    v_lshl_add_u32 v6, {VG}, 3, v7
    v_lshlrev_b32 v6, 7, v6
    v_lshrrev_b32 v7, 1, v7
    v_and_b32 v11, 1, {VG}
    v_lshl_add_u32 v7, v11, 1, v7
    v_xor_b32 v7, s60, v7
    v_lshl_add_u32 v6, v7, 5, v6
    v_and_b32 v7, 3, {VN}
    v_lshl_add_u32 v7, v7, 3, v6
    s_mul_i32 s40, s61, 40960
    s_add_u32 s40, s40, {WQL}
    v_add_u32 v7, s40, v7
    """)
    L=a.newlabel("bz")
    a(f"s_cmp_lg_u32 {SW}, 6\n s_cbranch_scc1 {L}")
    init_wait(a)
    a.label(L)
    drain(a)
    arrive(a, 0)
    for j in range(10):
        a(f"ds_read_b64_tr_b16 {v(PF+4*j,2)}, v7 offset:{4096*j}")
        a(f"ds_read_b64_tr_b16 {v(PF+4*j+2,2)}, v7 offset:{4096*j+512}")
        if j%4==3: a("s_waitcnt lgkmcnt(4)")
    zfill(a, KVP, (ZCEND-KVP)//1024, 1, 12)
    g640_core(a, True, VL16)

def wq_write(a):
    L1=a.newlabel("wq1")
    a(f"""
    s_mul_i32 s40, s60, 5120
    s_add_u32 s40, s40, {RS2}
    v_add_u32 v7, s40, {VL16}
    s_cmp_eq_u32 s61, 0
    s_cbranch_scc1 {L1}
    """)
    for nt in range(5): a(f"ds_write_b128 v7, {v(ACQ+4*nt,4)} offset:{nt*1024}")
    a.label(L1)

def wq_fin(a):
    L2=a.newlabel("wq2"); LZ=a.newlabel("wqz")
    a(f"""
    s_cmp_ge_u32 {SI}, 30
    s_cbranch_scc1 {L2}
    s_cmp_lg_u32 s61, 0
    s_cbranch_scc1 {L2}
    """)
    for nt in range(5): a(f"ds_read_b128 {v(SB+4*nt,4)}, v7 offset:{nt*1024}")
    a(f"""
    s_mul_i32 s41, {SI}, 205
    s_lshr_b32 s41, s41, 11
    s_mul_i32 s42, s41, 10
    s_sub_u32 s42, {SI}, s42
    s_lshl_b32 s42, s42, 6
    s_lshl_b32 s43, s60, 4
    s_add_u32 s42, s42, s43
    v_add_u32 v10, s42, {VN}
    v_mul_u32_u24 v11, 3277, v10
    v_lshrrev_b32 v11, 16, v11
    v_mul_u32_u24 v12, 20, v11
    v_sub_u32 v10, v10, v12
    s_cmp_eq_u32 s41, 0
    s_cselect_b32 s42, 48, 0
    s_cselect_b32 s43, 24, 16
    s_cmp_eq_u32 s41, 2
    s_cselect_b32 s42, 16, s42
    s_cselect_b32 s43, 20, s43
    v_add_u32 v12, s42, v10
    v_add_u32 v13, s43, v10
    v_cmp_gt_u32 vcc, 16, v10
    v_cndmask_b32 v10, v13, v12, vcc
    v_mul_u32_u24 v11, 80, v11
    v_add_u32 v10, v10, v11
    v_lshrrev_b32 v12, 1, {VG}
    v_mul_u32_u24 v12, 2560, v12
    v_add_u32 v10, v10, v12
    v_lshlrev_b32 v10, 4, v10
    v_and_b32 v12, 1, {VG}
    v_lshl_add_u32 v10, v12, 3, v10
    s_mul_i32 s40, {ST}, {5*81920}
    s_add_u32 s40, s40, {WQF}
    s_mov_b32 s42, {f2u(2.0/640)}
    v_mov_b32 v12, s42
    s_cmp_eq_u32 {ST}, 7
    s_cselect_b32 s43, 3, 99
    v_cmp_ne_u32 vcc, s43, {VG}
    v_cndmask_b32 v12, 0, v12, vcc
    s_mul_i32 s44, {ST}, 5
    s_waitcnt lgkmcnt(0)
    """)
    for nt in range(5):
        if nt: a("s_add_u32 s40, s40, 81920")
        for i in range(4):
            op = "v_sub_f32" if i<2 else "v_add_f32"
            a(f"{op} v{16+i}, v{AC+4*nt+i}, v{SB+4*nt+i}")
            a(f"v_mul_f32 v{16+i}, {'v12' if (nt==4 and i==3) else 's42'}, v{16+i}")
        a(f"v_cvt_pk_bf16_f32 v{20+2*(nt&1)}, v16, v17")
        a(f"v_cvt_pk_bf16_f32 v{21+2*(nt&1)}, v18, v19")
        a(f"buffer_store_dwordx2 {v(20+2*(nt&1),2)}, v10, {R_WS}, s40 offen sc1")
    a.label(L2)

def gcol_job(a):
    Lp=a.newlabel("gc")
    a(f"""
    s_sub_u32 s42, s66, 10
    s_lshl_b32 s42, s42, 3
    s_add_u32 s42, s42, {ST}
    s_lshl_b32 s42, s42, 3
    s_add_u32 s42, s42, {SW}
    v_lshl_add_u32 v10, {VG}, 2, 1
    v_mul_u32_u24 v9, 40960, {VG}
    v_mov_b32 v29, 0x3f353f35
    {Lp}:
    s_mul_i32 s40, s42, 1639
    s_lshr_b32 s40, s40, 16           ; kstep
    s_mul_i32 s41, s40, 40
    s_sub_u32 s41, s42, s41           ; dtile
    s_lshl_b32 s43, s41, 4
    v_add_u32 v8, s43, {VN}
    v_mul_u32_u24 v13, 3277, v8
    v_lshrrev_b32 v13, 16, v13
    v_mul_u32_u24 v14, 20, v13
    v_sub_u32 v14, v8, v14
    v_add_u32 v15, 64, v14
    v_add_u32 v24, 28, v14
    v_cmp_gt_u32 vcc, 16, v14
    v_cndmask_b32 v14, v24, v15, vcc
    v_mul_u32_u24 v13, 80, v13
    v_add_u32 v14, v14, v13
    v_lshl_add_u32 v14, v14, 4, v9
    v_cvt_f32_u32 v8, v8
    v_mul_f32 v8, {f2u(1/640)}, v8
    s_lshl_b32 s43, s40, 4
    v_add_u32 v11, s43, v10
    v_cvt_f32_u32 v12, v11
    v_cmp_eq_u32 vcc, 0x13d, v11
    s_mul_i32 s43, s40, {4*40960}
    s_add_u32 s43, s43, {WQF}
    v_mul_f32 v16, v12, v8
    v_fract_f32 v16, v16
    v_add_f32 v17, v16, v8
    v_fma_f32 v18, 2.0, v8, v16
    v_add_f32 v19, v18, v8
    """)
    for i in range(4): a(f"v_sin_f32 v{20+i}, -v{16+i}")
    for i in range(4): a(f"v_cos_f32 v{16+i}, v{16+i}")
    for i in range(4): a(f"v_cvt_pk_bf16_f32 v{32+i}, v{16+i}, v{20+i}")
    a(f"""
    v_and_b32 v28, 0x8000, v35
    v_or_b32 v28, v28, v29
    v_cndmask_b32 v35, v35, v28, vcc
    buffer_store_dwordx4 v[32:35], v14, {R_WS}, s43 offen sc1
    s_add_u32 s42, s42, 128
    s_cmp_lt_u32 s42, 800
    s_cbranch_scc1 {Lp}
    """)

WTR = 164
WTX = 84
def wt_loads(a):
    L=a.newlabel("wtl")
    a(f"""
    """)
    if 'wtside' in EXP:
        a(f"""
        s_cmp_lt_u32 s72, 20
        s_cbranch_scc1 {L}
        s_sub_u32 s79, s72, 20
        s_lshl_b32 s79, s79, 3
        s_add_u32 s79, s79, {ST}
        s_lshl_b32 s79, s79, 3
        s_add_u32 s79, s79, {SW}
        """)
    else:
        a(f"""
        s_cmp_ge_u32 {SW}, 3
        s_cbranch_scc1 {L}
        s_mul_i32 s79, s2, 3
        s_add_u32 s79, s79, {SW}
        """)
    a(f"""
    s_mul_i32 s69, s79, 5462
    s_lshr_b32 s69, s69, 16           ; j1 = task/12
    s_mul_i32 s40, s69, 12
    s_sub_u32 s70, s79, s40
    v_bfe_u32 v6, {VL}, 3, 1
    v_lshrrev_b32 v7, 4, {VL}
    v_lshl_add_u32 v5, v6, 2, v7
    s_mov_b32 s41, {64*642}
    v_mul_lo_u32 v6, v5, s41
    v_and_b32 v7, 7, {VL}
    v_lshl_add_u32 v6, v7, 4, v6
    s_mul_i32 s40, s69, 642
    s_andn2_b32 s40, s40, 127
    s_lshr_b32 s41, s70, 1
    s_lshl_b32 s41, s41, 7
    s_add_u32 s40, s40, s41
    s_and_b32 s41, s70, 1
    s_mul_i32 s41, s41, {16*64*642}
    s_add_u32 s40, s40, s41
    s_add_u32 s41, s40, {8*64*642}
    buffer_load_dwordx4 {v(WTX,4)}, v6, {R_WR}, s40 offen
    buffer_load_dwordx4 {v(WTX+4,4)}, v6, {R_WI}, s40 offen
    buffer_load_dwordx4 {v(WTX+8,4)}, v6, {R_WR}, s41 offen
    buffer_load_dwordx4 {v(WTX+12,4)}, v6, {R_WI}, s41 offen
    {L}:
    """)

def wor_loads(a):
    L=a.newlabel("wol")
    a(f"""
    s_sub_u32 s67, s72, 20
    s_lshl_b32 s67, s67, 3
    s_add_u32 s67, s67, {ST}
    s_lshl_b32 s67, s67, 3
    s_add_u32 s67, s67, {SW}
    v_and_b32 v7, 7, {VL}
    ; WoR: task = (R16 = task/10 (16 rows), lam = task%10): rows hd = 16R + 8*(rho&1) + 4*ld + (rho>>1)
    s_mul_i32 s42, s67, 6554
    s_lshr_b32 s42, s42, 16
    s_mul_i32 s43, s42, 10
    s_sub_u32 s43, s67, s43
    v_bfe_u32 v6, {VL}, 3, 1
    v_lshrrev_b32 v8, 4, {VL}
    v_lshl_add_u32 v6, v6, 3, v8
    v_mul_u32_u24 v6, 1280, v6
    v_lshl_add_u32 v6, v7, 4, v6
    s_mul_i32 s40, s42, {16*1280}
    s_lshl_b32 s41, s43, 7
    s_add_u32 s40, s40, s41
    s_add_u32 s41, s40, {4*1280}
    buffer_load_dwordx4 {v(WTR+16,4)}, v6, {R_WO}, s40 offen
    buffer_load_dwordx4 {v(WTR+20,4)}, v6, {R_WO}, s41 offen
    {L}:
    """)

def side_job(a, wor, vm):
    L=a.newlabel("wtskip"); L2=a.newlabel("wos")
    if not wor: a(f"s_cmp_lt_u32 s72, 20\n s_cbranch_scc1 {L}" if 'wtside' in EXP else f"s_cmp_ge_u32 {SW}, 3\n s_cbranch_scc1 {L}")
    a(f"""
    v_and_b32 v6, 3, {VN}
    v_cmp_eq_u32 vcc, v6, {VG}
    v_lshrrev_b32 v6, 2, {VN}
    v_cndmask_b32 v6, 7, v6, vcc
    v_mov_b32 v28, 0x3f80
    v_mov_b32 v29, 0x3f800000
    v_cmp_eq_u32 vcc, 0, v6
    v_cndmask_b32 v8, 0, v28, vcc
    v_cmp_eq_u32 vcc, 1, v6
    v_cndmask_b32 v8, v8, v29, vcc
    v_cmp_eq_u32 vcc, 2, v6
    v_cndmask_b32 v9, 0, v28, vcc
    v_cmp_eq_u32 vcc, 3, v6
    v_cndmask_b32 v9, v9, v29, vcc
    v_mov_b32 v10, 0
    v_mov_b32 v11, 0
    v_mov_b32 v12, 0
    v_mov_b32 v13, 0
    v_mov_b32 v14, v8
    v_mov_b32 v15, v9
    v_and_b32 v7, 7, {VN}
    v_lshrrev_b32 v17, 3, {VN}
    s_lshr_b32 s40, s70, 1
    s_lshl_b32 s40, s40, 6
    s_sub_u32 s40, s40, s69
    s_sub_u32 s40, s40, 1
    v_lshl_add_u32 v18, v7, 3, {VG}
    v_add_u32 v18, s40, v18
    v_add_u32 v19, 4, v18
    v_and_b32 v20, 1, v18
    v_lshlrev_b32 v20, 5, v20
    v_lshl_add_u32 v20, v17, 4, v20
    v_mov_b32 v21, {OOB}
    v_lshrrev_b32 v16, 1, v18
    v_lshl_add_u32 v16, v16, 14, v20
    v_cmp_gt_u32 vcc, 0x140, v18
    v_cndmask_b32 v16, v21, v16, vcc
    v_lshrrev_b32 v22, 1, v19
    v_lshl_add_u32 v22, v22, 14, v20
    v_cmp_gt_u32 vcc, 0x140, v19
    v_cndmask_b32 v22, v21, v22, vcc
    s_lshl_b32 s40, s69, 8
    s_and_b32 s41, s70, 1
    s_lshl_b32 s41, s41, 7
    s_add_u32 s40, s40, s41
    s_add_u32 s40, s40, {WT}
    s_waitcnt vmcnt({vm})
    """)
    for G in range(2):
        if wor: break
        for mf in range(2):
            for ri in range(2):
                a(f"{M16} {v(32+16*G+8*mf+4*ri,4)}, {v(8+4*mf,4)}, {v(WTX+8*G+4*ri,4)}, 0")
    for mf in range(2):
        if not wor: break
        for ld in range(2):
            a(f"{M16} {v(64+8*mf+4*ld,4)}, {v(8+4*mf,4)}, {v(WTR+16+4*ld,4)}, 0")
    for G in range(2):
        if wor: break
        for mf in range(2):
            b=32+16*G+8*mf; d=64+8*G+4*mf
            for i in range(4): a(f"v_cvt_pk_bf16_f32 v{d+i}, v{b+i}, v{b+4+i}")
            a(f"buffer_store_dwordx4 {v(d,4)}, {'v22' if mf else 'v16'}, {R_WS}, s40 offen offset:{64*G} sc1")
    if not wor:
        a.label(L); return
    a(f"""
    s_cmp_ge_u32 s67, 400
    s_cbranch_scc1 {L}
    s_mul_i32 s42, s67, 6554
    s_lshr_b32 s42, s42, 16
    s_mul_i32 s43, s42, 10
    s_sub_u32 s43, s67, s43
    s_lshl_b32 s43, s43, 4
    s_lshr_b32 s40, s42, 1
    s_mul_i32 s40, s40, 5120
    s_and_b32 s42, s42, 1
    s_lshl_b32 s42, s42, 9
    s_add_u32 s40, s40, s42
    s_add_u32 s40, s40, {WOR}
    s_mov_b32 s41, 102400
    v_lshlrev_b32 v18, 8, v17
    v_lshl_add_u32 v18, {VG}, 4, v18
    """)
    for mf in range(2):
        a(f"""
        v_lshl_add_u32 v19, v7, 1, s43
        v_add_u32 v19, {mf}, v19          ; dq
        v_mul_u32_u24 v20, 205, v19
        v_lshrrev_b32 v20, 10, v20        ; dq/5
        v_mul_u32_u24 v21, 5, v20
        v_sub_u32 v19, v19, v21           ; nt
        v_lshrrev_b32 v21, 2, v20         ; t
        v_and_b32 v20, 3, v20
        v_mul_lo_u32 v21, v21, s41
        v_lshl_add_u32 v21, v19, 10, v21
        v_lshl_add_u32 v21, v20, 6, v21
        v_add_u32 v21, v21, v18
        """)
        d=WTR+40+4*mf
        for q in range(4): a(f"v_cvt_pk_bf16_f32 v{d+q}, v{64+8*mf+2*q}, v{65+8*mf+2*q}")
        a(f"buffer_store_dwordx4 {v(d,4)}, v21, {R_WS}, s40 offen sc1")
    a.label(L)

C64, S64, C32, S32 = 164, 180, 196, 204
TW1C, TW1S, TW2C, TW2S = 212, 220, 228, 236
WP = 244
WL = 81920
N64, N32, WRE, WIM, UP, DA = 64, 80, 88, 96, 104, 120
FSC, FRW, FX1 = 102400, 118784, 135168
def ang8(a, base, step, dst):
    a(f"""
    v_mov_b32 v{dst}, {base}
    v_add_f32 v{dst+1}, {base}, {step}
    v_fma_f32 v{dst+2}, 2.0, {step}, {base}
    v_fma_f32 v{dst+4}, 4.0, {step}, {base}
    v_add_f32 v{dst+3}, v{dst+2}, {step}
    v_add_f32 v{dst+5}, v{dst+4}, {step}
    v_fma_f32 v{dst+6}, 2.0, {step}, v{dst+4}
    v_add_f32 v{dst+7}, v{dst+6}, {step}
    """)

def fft_consts(a):
    a("s_mov_b32 s40, 0")
    mu_pos(a, "v6", "s40", "v7")
    a(f"""
    v_cvt_f32_u32 v6, v6
    v_lshlrev_b32 v7, 3, {VG}
    v_cvt_f32_u32 v7, v7
    s_lshl_b32 s40, s63, 5
    v_cvt_f32_u32 v8, s40
    s_xor_b32 s40, s40, 32
    v_cvt_f32_u32 v9, s40
    v_cvt_f32_u32 v10, s62
    """)
    def cs(step, base, c, s):
        a(f"""
        v_cos_f32 v14, {step}
        v_add_f32 v17, {base}, {step}
        v_sin_f32 v24, {base}
        v_cos_f32 v16, {base}
        v_sin_f32 v25, v17
        v_cos_f32 v17, v17
        v_add_f32 v14, v14, v14
        """)
        for i in range(2,8):
            a(f"v_fma_f32 v{24+i}, v14, v{23+i}, -v{22+i}")
            a(f"v_fma_f32 v{16+i}, v14, v{15+i}, -v{14+i}")
        for i in range(4): a(f"v_cvt_pk_bf16_f32 v{s+i}, v{24+2*i}, v{25+2*i}")
        for i in range(4): a(f"v_cvt_pk_bf16_f32 v{c+i}, v{16+2*i}, v{17+2*i}")
    for aa in range(2):
        a(f"v_add_f32 v11, v8, v6")
        if aa: a("v_add_f32 v11, 4.0, v11")
        a(f"v_mul_f32 v12, {f2u(1/64)}, v11")
        for kk in range(2):
            a(f"v_add_f32 v13, v{8+kk}, v7")
            a(f"v_mul_f32 v13, v13, v12")
            o=8*aa+4*kk
            cs("v12","v13",C64+o,S64+o)
        a(f"v_mov_b32 v11, v6")
        if aa: a("v_add_f32 v11, 4.0, v11")
        a(f"""
        v_mul_f32 v12, {f2u(1/32)}, v11
        v_mul_f32 v13, v7, v12
        """)
        cs("v12","v13",C32+4*aa,S32+4*aa)
        a(f"""
        v_mul_f32 v12, {f2u(1/2048)}, v11
        v_add_f32 v13, v7, v10
        v_add_f32 v13, v13, v8
        v_mul_f32 v16, v13, v12
        v_add_f32 v17, v16, v12
        v_fma_f32 v18, 2.0, v12, v16
        v_add_f32 v19, v18, v12
        """)
        for i in range(4): a(f"v_sin_f32 v{TW2S+4*aa+i}, v{16+i}")
        for i in range(4): a(f"v_cos_f32 v{TW2C+4*aa+i}, v{16+i}")
    for i in range(16): a(f"v_mul_f32 v{TW2C+i}, {f2u(1/2048)}, v{TW2C+i}")
    a(f"""
    v_add_f32 v11, v8, v6
    v_add_f32 v11, v11, v10
    v_mul_f32 v12, {f2u(1/2048)}, v11
    v_mul_f32 v13, v7, v12
    """)
    ang8(a, "v13", "v12", 16)
    for i in range(8): a(f"v_sin_f32 v{TW1S+i}, v{16+i}")
    for i in range(8): a(f"v_cos_f32 v{TW1C+i}, v{16+i}")
    mu_pos(a, "v8", "s62", "v9")
    a(f"""
    s_lshl_b32 s40, s63, 5
    v_add_u32 v8, s40, v8             ; j1
    s_lshl_b32 s40, s61, 1
    v_lshl_add_u32 v9, {VG}, 2, s40
    v_and_b32 v10, 15, v8
    v_xor_b32 v9, v9, v10
    v_lshlrev_b32 v9, 4, v9
    v_lshl_add_u32 v244, v8, 8, v9
    v_add_u32 v244, {WL}, v244
    v_xor_b32 v248, 16, v244
    """)

def fft_prep(a, first):
    mu_pos(a, "v141", "s62", "v140")
    a(f"""
    v_lshrrev_b32 v136, 3, v0
    s_mov_b32 s41, 40960
    v_mul_lo_u32 v136, v136, s41
    v_bfe_u32 v138, v0, 2, 1
    v_mul_u32_u24 v139, 3, v138
    v_xor_b32 v139, v139, {VL}
    v_and_b32 v137, 7, v139
    v_lshl_add_u32 v136, v137, 4, v136
    v_and_b32 v137, 3, v139
    v_lshlrev_b32 v137, 4, v137
    v_lshl_add_u32 v137, v138, 14, v137
    v_lshrrev_b32 v138, 3, v0
    v_lshl_add_u32 v137, v138, 6, v137
    s_lshl_b32 s40, {SW}, 10
    s_lshr_b32 s42, {SW}, 1
    s_lshr_b32 s43, {SW}, 2
    s_xor_b32 s42, s42, s43
    s_lshl_b32 s42, s42, 6
    v_lshlrev_b32 v138, 4, v139
    v_xor_b32 v138, s42, v138
    s_add_u32 s40, s40, {FSC}
    v_add_u32 v138, s40, v138
    v_lshrrev_b32 v141, 2, v141
    s_lshl_b32 s40, s63, 2
    v_add_u32 v140, s40, {VG}
    v_lshl_add_u32 v141, v141, 3, v140
    v_and_b32 v143, 3, {VN}
    v_lshl_add_u32 v139, v141, 3, v143
    v_lshrrev_b32 v144, 2, {VN}
    v_lshrrev_b32 v145, 3, {VN}
    v_xor_b32 v144, v144, v145
    v_lshlrev_b32 v144, 2, v144
    v_xor_b32 v139, v139, v144
    s_lshl_b32 s40, s61, 13
    s_add_u32 s42, s40, {FSC}
    v_lshl_add_u32 v139, v139, 4, s42
    v_xor_b32 v140, 512, v139
    v_mul_lo_u32 v141, v141, s41
    v_lshl_add_u32 v141, v143, 4, v141
    s_lshl_b32 s43, s63, 12
    s_add_u32 s43, s43, s40
    s_add_u32 s43, s43, {FX1}
    s_lshl_b32 s44, s62, 1
    s_add_u32 s45, s44, s43
    v_add_u32 v143, s45, {VL16}
    s_lshl_b32 s45, s62, 9
    s_add_u32 s45, s45, s43
    v_add_u32 v144, s45, {VL16}
    s_lshl_b32 s43, s63, 11
    s_add_u32 s43, s43, s40
    s_add_u32 s43, s43, {FX1}
    s_add_u32 s45, s44, s43
    v_add_u32 v145, s45, {VL16}
    s_lshl_b32 s45, s62, 10
    s_add_u32 s45, s45, s43
    v_add_u32 v146, s45, {VL16}
    v_xor_b32 v147, 2048, v146
    s_cmp_eq_u32 s73, 159
    s_cselect_b32 s40, 4, 99
    v_and_b32 v148, 4, v0
    v_cmp_ne_u32 vcc, s40, v148
    v_cndmask_b32 v148, 0, -1, vcc
    """)

def fft_prep2(a, first):
    a("s_mov_b32 s41, 0x80008000")
    K = "0x80008000" if 'valu' in EXP else "s41"
    for i in range(16): a(f"v_xor_b32 v{N64+i}, {K}, v{S64+i}")
    for i in range(8): a(f"v_xor_b32 v{N32+i}, {K}, v{S32+i}")
    if not first: fft_w_unpack(a)

def fft_w_load(a):
    a(f"""
    s_lshl_b32 s40, s62, 1
    v_add_u32 v8, s40, {VG}
    v_xor_b32 v9, v8, {VN}
    v_lshlrev_b32 v9, 4, v9
    v_lshl_add_u32 v9, {VG}, 8, v9
    v_xor_b32 v10, 64, v9
    s_lshl_b32 s40, s73, 14
    s_lshl_b32 s41, {SW}, 11
    s_add_u32 s40, s40, s41
    s_add_u32 s40, s40, {WT}
    s_add_u32 m0, s41, {WL}
    s_nop 0
    buffer_load_dwordx4 v9, {R_WS}, s40 offen sc1 lds
    buffer_load_dwordx4 v10, {R_WS}, s40 offen offset:1024 sc1 lds
    """)

def fft_w_read(a):
    a(f"ds_read_b128 {v(WP,4)}, v244\n ds_read_b128 {v(WP+4,4)}, v248")

def fft_w_unpack(a):
    for i in range(8):
        a(f"v_lshlrev_b32 v{WRE+i}, 16, v{WP+i}")
        a(f"v_and_b32 v{WIM+i}, 0xffff0000, v{WP+i}")

def cmul(a, xr, xi, cr, ci, outr, outi, conj, n=8):
    for i in range(n):
        a(f"v_mul_f32 v{outr+i}, v{xr+i}, v{cr+i}")
        a(f"v_mul_f32 v{outi+i}, v{xi+i}, v{cr+i}")
    for i in range(n):
        if conj:
            a(f"v_fma_f32 v{outr+i}, -v{xi+i}, v{ci+i}, v{outr+i}")
            a(f"v_fma_f32 v{outi+i}, v{xr+i}, v{ci+i}, v{outi+i}")
        else:
            a(f"v_fma_f32 v{outr+i}, v{xi+i}, v{ci+i}, v{outr+i}")
            a(f"v_fma_f32 v{outi+i}, -v{xr+i}, v{ci+i}, v{outi+i}")

def fft_main(a, xin, xout, var, first):
    DR, DI = DA, DA+8
    a(f"""
    s_lshl_b32 s46, s73, 8
    s_add_u32 s47, s46, {xout}
    s_add_u32 s46, s46, {xin}
    s_mov_b32 s42, {var}
    s_mov_b32 s43, {var+4096}
    s_mov_b32 s44, {var+8192}
    s_mov_b32 s45, {var+12288}
    s_mov_b32 s58, {SPIN}
    """)
    def ldv():
        for k in range(4): a(f"buffer_load_dwordx4 {v(16+4*k,4)}, v137, {R_WS}, s{42+k} offen sc1")
    def ldd():
        a(f"buffer_load_dwordx4 v[48:51], v136, {R_WS}, s46 offen sc1")
        a(f"buffer_load_dwordx4 v[52:55], v136, {R_WS}, s46 offen offset:128 sc1")
    def mn(base,n,t):
        a(f"v_min3_u32 {t}, v{base}, v{base+1}, v{base+2}")
        for k in range(3,n-1,2): a(f"v_min3_u32 {t}, {t}, v{base+k}, v{base+k+1}")
        a(f"v_min_u32 {t}, {t}, v{base+n-1}")
        a(f"v_cmp_eq_u32 vcc, 0, {t}\n s_cmp_lg_u64 vcc, 0")
    fft_prep2(a, first)
    bg = qkv_bload_setup(a, 4 if first else 5)
    a("s_barrier")
    if 'dfirst' in EXP:
        ldd(); a('s_barrier'); ldv()
    else:
        ldv(); ldd()
    ex = 0
    def tick(n=1):
        if "notick" in EXP or (first and 'qtick' not in EXP): return
        for _ in range(n):
            if bg: bg.pop(0)()
    RV=a.newlabel("fvr"); BV=a.newlabel("fvb"); RD=a.newlabel("fdr"); BD=a.newlabel("fdb")
    a(f"""
    s_lshl_b32 s41, s61, 7
    s_add_u32 s47, s47, s41
    s_mov_b32 s40, {f2u(2.0/(640*640))}
    v_mov_b32 v8, {f2u(1e-5)}
    s_waitcnt vmcnt({0 if 'dfirst' in EXP else 2+ex})
    """)
    mn(16,16,"v9")
    a(f"s_cbranch_scc1 {RV}")
    a.label(BV)
    if first and 'qtick' in EXP: probe(a, 1, "v252")
    for q in range(4):
        a(f"v_lshlrev_b32 v{40+2*q}, 16, v{16+q}")
        a(f"v_and_b32 v{41+2*q}, 0xffff0000, v{16+q}")
    for k in range(1,4):
        for q in range(4):
            a(f"v_lshlrev_b32 v{32+2*q}, 16, v{16+4*k+q}")
            a(f"v_and_b32 v{33+2*q}, 0xffff0000, v{16+4*k+q}")
        for i in range(8): a(f"v_add_f32 v{40+i}, v{40+i}, v{32+i}")
    for i in range(8): a(f"v_add_f32_dpp v{40+i}, v{40+i}, v{40+i} row_half_mirror row_mask:0xf bank_mask:0xf")
    for i in range(8): a(f"v_fmamk_f32 v{40+i}, v{40+i}, {f2u(2.0/(640*640))}, v8" if 'valu' in EXP else f"v_fma_f32 v{40+i}, v{40+i}, s40, v8")
    for i in range(8): a(f"v_rsq_f32 v{40+i}, v{40+i}")
    a(f"s_waitcnt vmcnt({ex})")
    mn(48,8,"v9")
    a(f"s_cbranch_scc1 {RD}")
    a.label(BD)
    def late():
        OK=a.newlabel("fvo")
        a.label(RV); ldv(); a("s_waitcnt vmcnt(0)"); mn(16,16,"v9")
        a(f"s_cbranch_scc0 {OK}")
        retry_check(a, None, RV, BV, 60)
        a.label(OK); ldd()
        a(f"s_branch {BV}")
        a.label(RD); ldd(); a("s_waitcnt vmcnt(0)"); mn(48,8,"v9")
        a(f"s_cbranch_scc0 {BD}")
        retry_check(a, None, RD, BD, 61)
    a.late.append(late)
    for c in range(2):
        a(f"ds_write_b128 v138, {v(48+4*c,4)} offset:{FRW-FSC+8192*c}")
        for q in range(4):
            a(f"v_lshlrev_b32 v{16+2*q}, 16, v{48+4*c+q}")
            a(f"v_and_b32 v{17+2*q}, 0xffff0000, v{48+4*c+q}")
        for i in range(8): a(f"v_mul_f32 v{16+i}, v{16+i}, v{40+i}")
        for q in range(4): a(f"v_cvt_pk_bf16_f32 v{56+4*c+q}, v{16+2*q}, v{17+2*q}")
        if c==1:
            for q in range(4): a(f"v_and_b32 v{60+q}, v{60+q}, v148")
        a(f"ds_write_b128 v138, {v(56+4*c,4)} offset:{8192*c}")
    FD = ("fd" in EXP and not first) or ("fd1" in EXP and first)
    if FD: pflush(a,7); pst(a,0)
    if first and 'qtick' in EXP: probe_check(a, 1, "v252", 0)
    else: tick()
    a(f"""
    v_xor_b32 v8, 64, v139
    v_and_b32 v10, 0xfffffbff, v139
    v_xor_b32 v11, 64, v10
    v_xor_b32 v12, 512, v10
    v_xor_b32 v13, 512, v11
    s_waitcnt lgkmcnt(0)
    s_barrier
    ds_read_b128 {v(UP,4)}, v10
    ds_read_b128 {v(UP+4,4)}, v11
    ds_read_b128 v[16:19], v10 offset:1024
    ds_read_b128 v[20:23], v11 offset:1024
    ds_read_b128 {v(UP+8,4)}, v12
    ds_read_b128 {v(UP+12,4)}, v13
    ds_read_b128 v[24:27], v12 offset:1024
    ds_read_b128 v[28:31], v13 offset:1024
    ds_read_b128 v[48:51], v139 offset:{FRW-FSC}
    ds_read_b128 v[52:55], v8 offset:{FRW-FSC}
    """)
    if FD: pst(a,1)
    if first:
        fft_w_read(a)
        if 'qfirst' not in EXP: arrive(a, 1)
    tick(2)
    ur=lambda kk: v(UP+8*kk,4); ui=lambda kk: v(UP+8*kk+4,4)
    xl = 2 + (2 if first else 0)
    LT=a.newlabel("s1t"); LU=a.newlabel("s1u")
    a(f"s_cmp_lg_u32 s62, 0\n s_cbranch_scc1 {LT}")
    for av in range(2):
        if av: a.label(LT)
        for kk in range(2):
            for tt in range(2):
                a(f"s_waitcnt lgkmcnt({xl+6-4*kk-2*tt})")
                b = (UP if tt==0 else 16)+8*kk
                r_,i_ = v(b,4), v(b+4,4)
                dr=v(DR+4*tt,4); di=v(DI+4*tt,4); o=8*av+4*kk
                a(f"{M16} {dr}, {r_}, {v(C64+o,4)}, {dr if kk else 0}")
                a(f"{M16} {di}, {i_}, {v(C64+o,4)}, {di if kk else 0}")
                a(f"{M16} {dr}, {i_}, {v(S64+o,4)}, {dr}")
                a(f"{M16} {di}, {r_}, {v(N64+o,4)}, {di}")
        if not av: a(f"s_branch {LU}")
    a.label(LU)
    tick(2)
    def exch(vw, stride):
        for aa in range(2):
            for ri in range(2):
                b=16+8*ri+4*aa; d=32+4*aa+2*ri
                a(f"v_cvt_pk_bf16_f32 v{d}, v{b}, v{b+1}")
                a(f"v_cvt_pk_bf16_f32 v{d+1}, v{b+2}, v{b+3}")
                a(f"ds_write_b64 {vw}, {v(d,2)} offset:{stride*aa+1024*ri}")
    if FD: pst(a,2)
    cmul(a, DR, DI, TW1C, TW1S, 16, 24, False)
    tick()
    for q in range(8): a(f"v_cvt_pk_bf16_f32 v{UP+q}, v{16+2*q}, v{17+2*q}")
    tick()
    a("s_waitcnt lgkmcnt(0)")
    if FD: pst(a,4)
    tr=v(UP,4); ti=v(UP+4,4)
    for aa in range(2):
        dr=v(DR+4*aa,4); di=v(DI+4*aa,4)
        a(f"{M16} {dr}, {v(C32+4*aa,4)}, {tr}, 0")
        a(f"{M16} {di}, {v(C32+4*aa,4)}, {ti}, 0")
        a(f"{M16} {dr}, {v(S32+4*aa,4)}, {ti}, {dr}")
        a(f"{M16} {di}, {v(N32+4*aa,4)}, {tr}, {di}")
    if first:
        fft_w_unpack(a)
        a(f"""
        v_mov_b32 v32, 0
        v_mov_b32 v33, 0
        v_mov_b32 v34, 0
        v_mov_b32 v35, 0
        s_lshl_b32 s40, s73, 3
        s_add_u32 s40, s40, {SW}
        s_lshl_b32 s40, s40, 11
        s_add_u32 s40, s40, {O2}
        buffer_store_dwordx4 v[32:35], {VL16}, {R_WS}, s40 offen sc1
        buffer_store_dwordx4 v[32:35], {VL16}, {R_WS}, s40 offen offset:1024 sc1
        """)
        L=a.newlabel("p1")
        a(f"""
        s_cmp_lg_u32 {SW}, 7
        s_cbranch_scc1 {L}
        s_and_b32 s59, s2, 3
        s_lshl_b32 s59, s59, 12
        s_add_u32 s59, s59, {CNTB(1)}
        v_lshlrev_b32 v255, 8, {VN}
        buffer_load_dword v252, v255, {R_WS}, s59 offen sc1
        {L}:
        """)
    tick()
    cmul(a, DR, DI, WRE, WIM, 16, 24, True)
    tick()
    for q in range(4): a(f"v_cvt_pk_bf16_f32 v{UP+8+q}, v{16+2*q}, v{17+2*q}")
    for q in range(4): a(f"v_cvt_pk_bf16_f32 v{UP+12+q}, v{24+2*q}, v{25+2*q}")
    yr=v(UP+8,4); yi=v(UP+12,4)
    for aa in range(2):
        dr=v(DR+4*aa,4); di=v(DI+4*aa,4)
        a(f"{M16} {dr}, {yr}, {v(C32+4*aa,4)}, 0")
        a(f"{M16} {di}, {yi}, {v(C32+4*aa,4)}, 0")
        a(f"{M16} {dr}, {yi}, {v(N32+4*aa,4)}, {dr}")
        a(f"{M16} {di}, {yr}, {v(S32+4*aa,4)}, {di}")
    tick()
    cmul(a, DR, DI, TW2C, TW2S, 16, 24, True)
    tick()
    exch("v145", 4096)
    tick(2)
    if first and 'lateb1' not in EXP:
        L=a.newlabel("p1c")
        a(f"""
        s_cmp_lg_u32 {SW}, 7
        s_cbranch_scc1 {L}
        s_waitcnt vmcnt(0)
        v_cmp_gt_u32 vcc, {0 if 'nob1' in EXP else 16}, v252
        s_cmp_eq_u64 vcc, 0
        s_cbranch_scc1 {L}
        """)
        wait(a, 1, bar=False)
        a.label(L)
    if FD: pst(a,5)
    for ri in range(2):
        for q in range(4):
            a(f"v_lshlrev_b32 v{16+8*ri+2*q}, 16, v{48+4*ri+q}")
            a(f"v_and_b32 v{17+8*ri+2*q}, 0xffff0000, v{48+4*ri+q}")
    a(f"""
    s_waitcnt lgkmcnt(0)
    s_barrier
    ds_read_b128 {v(UP,4)}, v146
    ds_read_b128 {v(UP+4,4)}, v146 offset:1024
    ds_read_b128 {v(UP+8,4)}, v147
    ds_read_b128 {v(UP+12,4)}, v147 offset:1024
    """)
    if FD: pst(a,6)
    if first and 'lateb1' in EXP: probe(a, 1, "v252")
    for kk in range(2):
        a(f"s_waitcnt lgkmcnt({2-2*kk})")
        for aa in range(2):
            dr=v(DR+4*aa,4); di=v(DI+4*aa,4); o=8*aa+4*kk
            a(f"{M16} {dr}, {v(C64+o,4)}, {ur(kk)}, {dr if kk else v(16+4*aa,4)}")
            a(f"{M16} {di}, {v(C64+o,4)}, {ui(kk)}, {di if kk else v(24+4*aa,4)}")
            a(f"{M16} {dr}, {v(N64+o,4)}, {ui(kk)}, {dr}")
            a(f"{M16} {di}, {v(S64+o,4)}, {ur(kk)}, {di}")
            if first and kk+aa<2 and 'lateb1' not in EXP: bg.pop(0)()
    for q in range(4): a(f"v_cvt_pk_bf16_f32 v{32+q}, v{DR+2*q}, v{DR+2*q+1}")
    for q in range(4): a(f"v_cvt_pk_bf16_f32 v{36+q}, v{DI+2*q}, v{DI+2*q+1}")
    L=a.newlabel("nyq2")
    a(f"""
    s_lshl_b32 s40, s73, 1
    s_add_u32 s40, s40, s61
    s_cmp_lg_u32 s40, 319
    s_cbranch_scc1 {L}
    """)
    for q in range(4): a(f"v_mov_b32 v{36+q}, v{52+q}")
    a.label(L)
    for q in range(8): a(f"v_max_u32 v{32+q}, 1, v{32+q}")
    if first and 'lateb1' not in EXP: a("s_waitcnt vmcnt(3)")
    a(f"""
    buffer_store_dwordx4 v[32:35], v141, {R_WS}, s47 offen sc1
    buffer_store_dwordx4 v[36:39], v141, {R_WS}, s47 offen offset:64 sc1
    """)
    return bg

QB = 0
def QAb(layer): return 102400
def NRS(layer): return 3
def BST(layer): return 5120 if layer else 4096
KVF = 151552
QACC = 8
QAF = 48
QBF = 72
def qkv_rot(a): pass
def qkv_roles(a, layer):
    RX=RXS[layer]
    a(f"""
    s_lshr_b32 s81, s2, 3
    s_and_b32 {SR}, {SX}, {8//RX-1}
    s_mul_i32 {SR}, {SR}, {RX}
    s_and_b32 s82, s81, {RX-1}
    s_add_u32 {SR}, {SR}, s82
    s_lshr_b32 {SH}, {SX}, {(8//RX).bit_length()-1}
    s_mul_i32 {SH}, {SH}, {32//RX}
    s_lshr_b32 s81, s81, {RX.bit_length()-1}
    s_add_u32 {SH}, {SH}, s81
    s_and_b32 s68, {SH}, 3
    s_mul_i32 s68, s68, 5
    s_lshr_b32 s81, {SH}, 2
    s_add_u32 s68, s68, s81
    s_cmp_ge_u32 s68, 20
    s_cselect_b32 s81, 20, 0
    s_sub_u32 s68, s68, s81
    """)

def qkv_bload_setup(a, NT):
    BS=BST(0 if NT==4 else 1)
    a(f"""
    v_mul_u32_u24 v150, 2560, {VG}
    s_mul_i32 s48, {SH}, 80
    v_add3_u32 v150, v150, {VN}, s48
    v_lshlrev_b32 v150, 4, v150
    s_lshl_b32 s48, s60, 8
    v_add_u32 v149, s48, v150
    v_add_u32 v150, 1024, v150
    s_mov_b32 s51, {WQF+20*163840}
    s_add_u32 s50, s68, s61
    s_mul_i32 s50, s50, 163840
    s_add_u32 s50, s50, {WQF}
    s_add_u32 s76, s68, {SW}
    s_mul_i32 s76, s76, 163840
    s_add_u32 s76, s76, {WQF}
    s_mul_i32 s49, s61, {BS}
    s_lshl_b32 s48, s60, 10
    s_add_u32 s49, s49, s48
    s_mul_i32 s77, {SW}, {BS}
    """)
    def chunk(i):
        def f():
            L=None
            if i<10: src,vo,m,step = "s50","v149",f"s_add_u32 m0, s49, {QB+2*BS*i}",2
            else:    src,vo,m,step = "s76","v150",f"s_add_u32 m0, s77, {QB+8*BS*(i-10)+4096}",8
            if i==12:
                L=a.newlabel("qb"); a(f"s_cmp_ge_u32 {SW}, 4\n s_cbranch_scc1 {L}")
            a(f"""
            s_cmp_ge_u32 {src}, s51
            s_cselect_b32 s48, {20*163840}, 0
            s_sub_u32 {src}, {src}, s48
            {m}
            s_nop 0
            buffer_load_dwordx4 {vo}, {R_WS}, {src} offen sc1 lds
            s_add_u32 {src}, {src}, {step*163840}
            """)
            if L: a.label(L)
        return f
    if 'nob2' in EXP and NT==5: return []
    return [chunk(i) for i in range(10 if NT==4 else 13)]

def qkv_bload(a, NT):
    for c in qkv_bload_setup(a, NT): c()

def qkv_prep(a, layer, bg=None):
    def tk(n=1):
        for _ in range(n):
            if bg: bg.pop(0)()
    tk()
    a(f"""
    s_lshl_b32 s64, {SR}, 3
    s_add_u32 s64, s64, {SW}
    s_mul_i32 s65, {SW}, {2048*NRS(layer)}
    s_add_u32 s65, s65, {QAb(layer)}
    v_lshrrev_b32 v112, 5, {VL}
    v_lshlrev_b32 v112, 5, v112
    {'v_mov_b32 v112, v4' if 'noswz' in EXP else 'v_xor_b32 v112, v112, v4'}
    v_lshrrev_b32 v113, 2, {VN}
    v_lshl_add_u32 v113, {VG}, 3, v113
    v_lshlrev_b32 v113, 6, v113
    v_and_b32 v114, 3, {VN}
    v_lshl_add_u32 v113, v114, 3, v113
    v_and_b32 v114, 1, {VG}
    v_lshl_add_u32 v113, v114, 5, v113
    v_add_u32 v113, s65, v113
    v_xor_b32 v114, 32, v113
    v_add_u32 v115, {10*BST(layer)}, {VL16}
    s_cmp_eq_u32 {SH}, 19
    s_cselect_b32 s40, 3, 99
    v_mov_b32 v116, 0xffff
    v_cmp_ne_u32 vcc, s40, {VG}
    v_cndmask_b32 v116, v116, -1, vcc
    v_lshrrev_b32 v117, 1, {VG}
    v_lshl_add_u32 v117, v117, 4, {VN}
    v_lshlrev_b32 v117, 2, v117
    """)
    tk()
    a(f"""
    v_lshrrev_b32 v8, 2, v0
    v_mul_u32_u24 v9, 781, v8
    v_lshrrev_b32 v9, 14, v9          ; dq
    v_mul_u32_u24 v10, 21, v9
    v_sub_u32 v8, v8, v10             ; rho
    v_lshlrev_b32 v10, 4, v9
    v_subrev_u32 v11, 12, v8
    v_cmp_eq_u32 vcc, 20, v8
    v_cndmask_b32 v11, v11, 0, vcc
    v_add_u32 v11, 128, v11
    v_cmp_gt_u32 vcc, 16, v8
    v_cndmask_b32 v11, v11, v8, vcc
    v_add_u32 v10, v10, v11
    v_and_b32 v11, 3, v0
    v_lshl_add_u32 v10, v10, 2, v11
    v_lshlrev_b32 v10, 2, v10
    v_min_u32 v10, 4092, v10
    v_add_u32 v118, {QAb(layer)}, v10
    """)
    tk()
    a(f"""
    v_lshrrev_b32 v8, 2, {VN}
    v_and_b32 v9, 1, v8
    v_cmp_eq_u32 vcc, 1, v9
    v_mov_b32 v10, {f2u(1e-6)}
    v_mov_b32 v11, 0xff800000
    v_cndmask_b32 v119, v10, 0, vcc
    v_cndmask_b32 v120, v10, v11, vcc
    v_cndmask_b32 v121, 1.0, 0, vcc
    v_cmp_eq_u32 vcc, 3, v8
    v_mov_b32 v10, {f2u(2.0/640)}
    v_cndmask_b32 v122, 1.0, 0, vcc
    v_cndmask_b32 v123, 0, v10, vcc
    """)
    tk()
    a(f"""
    v_lshlrev_b32 v8, 2, {VG}
    v_sub_u32 v8, {VN}, v8
    v_mov_b32 v10, 0x3f80
    v_mov_b32 v11, 0x3f800000
    v_cmp_eq_u32 vcc, 0, v8
    v_cndmask_b32 v124, 0, v10, vcc
    v_cmp_eq_u32 vcc, 1, v8
    v_cndmask_b32 v124, v124, v11, vcc
    v_cmp_eq_u32 vcc, 2, v8
    v_cndmask_b32 v125, 0, v10, vcc
    v_cmp_eq_u32 vcc, 3, v8
    v_cndmask_b32 v125, v125, v11, vcc
    v_mov_b32 v126, 0
    v_mov_b32 v127, 0
    v_mov_b32 v128, 0
    v_mov_b32 v129, 0
    v_mov_b32 v130, v124
    v_mov_b32 v131, v125
    """)
    tk()
    a(f"""
    v_lshrrev_b32 v8, 3, {VL}
    v_mul_u32_u24 v8, 1792, v8
    v_and_b32 v9, 7, {VL}
    v_lshl_add_u32 v132, v9, 4, v8
    s_lshl_b32 s40, {SW}, 8
    v_add_u32 v132, s40, v132
    """)
    tk()
    a(f"""
    v_lshrrev_b32 v8, 5, {VL}
    v_lshl_add_u32 v8, v8, 3, v9
    s_lshl_b32 s40, {SW}, 4
    v_add_u32 v8, s40, v8
    v_mul_u32_u24 v9, 781, v8
    v_lshrrev_b32 v9, 14, v9          ; dq
    v_mul_u32_u24 v10, 21, v9
    v_sub_u32 v8, v8, v10             ; rho
    v_add_u32 v10, 48, v8
    v_cmp_gt_u32 vcc, 16, v8
    v_cndmask_b32 v8, v10, v8, vcc
    v_lshlrev_b32 v8, 4, v8
    v_lshlrev_b32 v10, 8, v9
    v_mov_b32 v11, {2*256+8}
    v_cmp_eq_u32 vcc, 4, v9
    v_cndmask_b32 v10, v10, v11, vcc
    v_mov_b32 v11, 2048
    v_cmp_lt_u32 vcc, 4, v9
    v_cndmask_b32 v10, v10, v11, vcc
    v_add_u32 v8, v8, v10
    v_and_b32 v9, 1, {VG}
    v_lshl_add_u32 v8, v9, 2, v8
    v_add_u32 v133, {KVF}, v8
    v_add_u32 v134, {KVF}, {VL16}
    v_min_u32 v8, 4, {VN}
    v_lshl_add_u32 v8, {VG}, 4, v8
    v_lshlrev_b32 v8, 4, v8
    v_add_u32 v135, {KVF+1024}, v8
    v_mov_b32 v8, 0
    v_lshlrev_b32 v9, 2, v0
    v_add_u32 v9, {KVF}, v9
    ds_write_b32 v9, v8
    """)
    tk()
    a(f"""
    v_bfe_u32 v8, {VN}, 2, 1
    v_mul_u32_u24 v8, 20480, v8
    v_lshrrev_b32 v9, 3, {VN}
    v_lshl_add_u32 v8, v9, 6, v8
    v_and_b32 v9, 3, {VN}
    v_lshl_add_u32 v8, v9, 4, v8
    s_mul_i32 s40, {SH}, 5
    v_add_u32 v9, s40, {VG}
    v_lshrrev_b32 v10, 1, v9
    v_lshl_add_u32 v136, v10, 8, v8
    v_and_b32 v10, 1, v9
    v_lshl_add_u32 v136, v10, 3, v136
    s_add_u32 s40, s40, 4
    s_lshr_b32 s41, s40, 1
    s_lshl_b32 s41, s41, 8
    s_and_b32 s40, s40, 1
    s_lshl_b32 s40, s40, 3
    s_add_u32 s40, s40, s41
    v_add_u32 v137, s40, v8
    v_lshlrev_b32 v138, 3, {VN}
    v_lshl_add_u32 v138, {VG}, 8, v138
    """)
    tk(20)

def qkv_main(a, layer):
    last = layer==1
    NT = 5 if last else 4
    NR = NRS(layer); BS = BST(layer)
    xin = X3 if last else X1; var = VAR3 if last else VAR1
    a(f"""
    s_mul_i32 s52, s64, 40960
    s_add_u32 s52, s52, {xin}
    s_add_u32 s54, s52, 40960
    s_lshl_b32 s53, s68, 11
    s_add_u32 s53, s53, s52
    """)
    def dma0(j):
        a(f"s_add_u32 m0, s65, {(j%NR)*2048}")
        a("s_nop 0")
        a(f"buffer_load_dwordx4 v112, {R_WS}, s53 offen {'' if 'nosc' in EXP else 'sc1'} lds")
    def dma1(j):
        a(f"""
        buffer_load_dwordx4 v112, {R_WS}, s53 offen offset:1024 {'' if 'nosc' in EXP else 'sc1'} lds
        s_add_u32 s53, s53, 2048
        s_cmp_ge_u32 s53, s54
        s_cselect_b32 s53, s52, s53
        """)
    q=LQ(a)
    def rdA(j,k):
        aa,h=k>>1,k&1
        q.op(f"ds_read_b64_tr_b16 {v(QAF+8*(j%3)+4*aa+2*h,2)}, v{113+aa} offset:{(j%NR)*2048+256*h}", ("A",j,aa))
    def rdB(j,t):
        base,off=(VL16,j*BS) if j<10 else ("v115",(j-10)*BS)
        q.op(f"ds_read_b128 {v(QBF+20*(j&1)+4*t,4)}, {base} offset:{QB+off+1024*t}", ("B",j,t))
    for j in range(NR): dma0(j); dma1(j)
    for t in range(NT): rdB(0,t)
    a(f"""
    s_lshl_b32 s55, s64, 7
    s_add_u32 s55, s55, {var}
    s_lshl_b32 s56, s64, 8
    s_add_u32 s56, s56, {LSS + layer*16384}
    s_waitcnt vmcnt({2*NR-2})
    """)
    for k in range(4): rdA(0,k)
    a(f"s_waitcnt vmcnt({2*NR-4})")
    for k in range(4): rdA(1,k)
    q.need(("A",0,0),("A",0,1))
    dma0(NR); dma1(NR)
    if 'prio' in EXP:
        L=a.newlabel("pr"); a(f"s_cmp_lt_u32 {SW}, 4\n s_cbranch_scc1 {L}\n s_setprio 1\n {L}:")
    JC = 16-NR
    for j in range(20):
        aux=[]
        if j+1<20: aux+= [(lambda t=t: (None if ("nob" in EXP and j>0) else rdB(j+1,t))) for t in range(NT)]
        if j+2<20:
            def first():
                a(f"s_waitcnt vmcnt({min(2*NR-2,2*(17-j)) if j<17 else 4})"); rdA(j+2,0)
            aux+= [first, lambda: rdA(j+2,1), lambda: (rdA(j+2,2), rdA(j+2,3))]
        pos_dma = 2
        for m in range(2*NT):
            t,aa=m>>1,m&1
            q.need(("A",j,aa),("B",j,t))
            d=v(QACC+8*t+4*aa,4); bf=v(QBF+20*(j&1)+4*t,4); af=v(QAF+8*(j%3)+4*aa,4); c=d if j else 0
            if "nomm" in EXP and j>0 and m>0: pass
            elif t>=3: a(f"{M16} {d}, {bf}, {af}, {c}")
            else: a(f"{M16} {d}, {af}, {bf}, {c}")
            if m<len(aux): aux[m]()
            if j+NR+1<20 and "nodma" not in EXP:
                if m==pos_dma:
                    q.need(("A",j+1,0),("A",j+1,1)); dma0(j+NR+1)
                if m==pos_dma+1: dma1(j+NR+1)
        if j==0 and 'nossq' not in EXP:
            L=a.newlabel("ssq")
            a(f"""
            s_cmp_ge_u32 {SH}, 20
            s_cbranch_scc1 {L}
            v_mov_b32 v5, 0
            v_mov_b32 v6, 0
            v_and_b32 v7, v116, v{QAF+3}
            v_and_b32 v139, v116, v{QAF+7}
            """)
            for k in range(3):
                a(f"v_dot2c_f32_bf16 v5, v{QAF+k}, v{QAF+k}")
                a(f"v_dot2c_f32_bf16 v6, v{QAF+4+k}, v{QAF+4+k}")
            a(f"""
            v_dot2c_f32_bf16 v5, v7, v7
            v_dot2c_f32_bf16 v6, v139, v139
            v_permlane32_swap_b32 v5, v6
            v_add_f32 v5, v5, v6
            v_mov_b32 v6, v5
            v_permlane16_swap_b32 v5, v6
            v_add_f32 v5, v5, v6
            s_mov_b32 exec_lo, 0xffff
            s_mov_b32 exec_hi, 0xffff
            buffer_atomic_add_f32 v5, v117, {R_WS}, s55 offen
            s_mov_b64 exec, -1
            {L}:
            """)
        if j==JC:
            a(f"v_mov_b32 v5, 0\n buffer_load_dword v140, v5, {R_WS}, s56 offen sc1")
        if j==13:
            WB = 3 if last else 5
            L=a.newlabel("w5c")
            a(f"s_cmp_lg_u32 {SW}, 7\n s_cbranch_scc1 {L}")
            bar_target(a, WB)
            a(f"""
            v_cmp_gt_u32 vcc, v253, v151
            s_cmp_eq_u64 vcc, 0
            s_cbranch_scc1 {L}
            """)
            wait(a, WB, bar=False)
            a.label(L)
            a("s_barrier")
            if 'wpre' in EXP:
                L=a.newlabel("wp")
                a(f"""
                s_cmp_ge_u32 {SW}, 4
                s_cbranch_scc1 {L}
                s_lshl_b32 s40, {SA}, 2
                s_add_u32 s40, s40, {SW}
                s_mul_i32 s40, s40, {50*128}
                s_mul_i32 s41, {ST}, 102400
                s_add_u32 s40, s40, s41
                s_add_u32 s40, s40, {WOR if last else WOF}
                v_min_u32 v5, 49, {VL}
                v_lshlrev_b32 v5, 7, v5
                buffer_load_dword v254, v5, {R_WS}, s40 offen sc1
                {L}:
                """)
        if j==6 and not last and 'bpre' in EXP:
            RX=RXS[1]; nl=(32//RX)*320//128
            for r in range(2):
                L=a.newlabel("bp")
                if r: a(f"s_cmp_ge_u32 {SW}, 2\n s_cbranch_scc1 {L}")
                a(f"""
                s_lshr_b32 s40, s2, 3
                s_mul_i32 s40, s40, 10
                s_add_u32 s40, s40, {SW}
                s_add_u32 s40, s40, {8*r}
                s_mul_i32 s40, s40, 10240
                s_lshr_b32 s41, {SX}, {(8//RX).bit_length()-1}
                s_mul_i32 s41, s41, {(32//RX)*320}
                s_add_u32 s40, s40, s41
                s_add_u32 s40, s40, {WQF}
                v_min_u32 v5, {min(nl,64)-1}, {VL}
                v_lshlrev_b32 v5, 7, v5
                buffer_load_dword v254, v5, {R_WS}, s40 offen sc1
                {L}:
                """)
        ZS=(2,5,9,12) if 'zloop' in EXP else (9,10)
        NZC = 7680 if 'zloop' in EXP else 2560
        if j in ZS and not last:
            L=a.newlabel("zf")
            i=ZS.index(j)
            if i==0:
                a(f"""
                v_mov_b32 v152, 0
                v_mov_b32 v153, 0
                v_mov_b32 v154, 0
                v_mov_b32 v155, 0
                s_lshl_b32 s42, {SW}, 8
                s_add_u32 s42, s42, s2
                s_lshl_b32 s43, s42, 10
                s_add_u32 s43, s43, {X2}
                """)
            if i==len(ZS)-1: a(f"s_cmp_ge_u32 s42, {NZC-i*2048}\n s_cbranch_scc1 {L}")
            a(f"buffer_store_dwordx4 v[152:155], {VL16}, {R_WS}, s43 offen sc1\n s_add_u32 s43, s43, {2048*1024}")
            a.label(L)
        if last and 'zloop2' in EXP and j in (1,3,5):
            L=a.newlabel("zf"); i=(j-1)//2
            if i==0:
                a(f"""
                v_mov_b32 v152, 0
                v_mov_b32 v153, 0
                v_mov_b32 v154, 0
                v_mov_b32 v155, 0
                s_lshl_b32 s42, {SW}, 8
                s_add_u32 s42, s42, s2
                s_lshl_b32 s43, s42, 10
                s_add_u32 s43, s43, {O4}
                """)
            if i==1: a(f"s_cmp_ge_u32 s42, 512\n s_cbranch_scc1 {L}")
            if i<2: a(f"buffer_store_dwordx4 v[152:155], {VL16}, {R_WS}, s43 offen sc1\n s_add_u32 s43, s43, {2048*1024}")
            a.label(L)
        if j==8: probe(a, 3 if last else 5, "v151")
        if j==16:
            L=a.newlabel("ssp")
            a(f"""
            v_cmp_gt_u32 vcc, {0 if 'nossq' in EXP else 20}, v140
            s_cmp_eq_u64 vcc, 0
            s_cbranch_scc1 {L}
            v_mov_b32 v255, 0
            """)
            poll(a, R_WS, "s56", "v255", 20, 20+layer)
            a(f"""
            {L}:
            v_lshlrev_b32 v5, 4, {VG}
            v_lshlrev_b32 v6, 2, {VN}
            buffer_load_dwordx4 v[140:143], v5, {R_WS}, s55 offen sc1
            buffer_load_dwordx4 v[144:147], v5, {R_WS}, s55 offen offset:64 sc1
            buffer_load_dword v148, v6, {R_WS}, s55 offen sc1
            buffer_load_dword v149, v6, {R_WS}, s55 offen offset:64 sc1
            """)
        if j==18:
            a(f"s_mov_b32 s40, {f2u(2.0/(640*640))}\n v_mov_b32 v7, {f2u(1e-5)}\n s_waitcnt vmcnt(0)")
            for i in range(10): a(f"v_fma_f32 v{140+i}, v{140+i}, s40, v7")
            for i in range(10): a(f"v_rsq_f32 v{140+i}, v{140+i}")
        if j==NR+1 and 'nossq' not in EXP:
            L=a.newlabel("ssf")
            a(f"s_cmp_ge_u32 {SH}, 20\n s_cbranch_scc1 {L}")
            larrive(a, "s56")
            a.label(L)

def qkv_tail(a, layer):
    last = layer==1
    if 'prio' in EXP: a("s_setprio 0")
    ob = O4 if last else O2
    A=lambda t,aa,i=0: QACC+8*t+4*aa+i
    RR=140; RL=148; S2=64; E=72; P0_,P1_,P2_,P2o=80,84,88,92; QP=96
    if 'wfirst' in EXP:
        L0=a.newlabel("lead0")
        a(f"s_cmp_ge_u32 {SW}, 4\n s_cbranch_scc1 {L0}")
        ao_wload(a, WOR if last else WOF, 1, layer)
        a.label(L0)
    a(f"""
    v_mov_b32 v58, {f2u(1e-6)}
    s_mov_b32 s41, {f2u(math.log2(math.e))}
    """)
    def phi(t, scale, eps, lo, sel):
        for i in range(8): a(f"v_fma_f32 v{A(t,0,i)}, v{A(t,0,i)}, {scale(i)}, {eps}")
        for i in range(8): a(f"v_mul_f32 v{E+i}, {f2u(math.log2(math.e)) if 'valu' in EXP else 's41'}, v{A(t,0,i)}")
        for i in range(8): a(f"v_exp_f32_e64 v{E+i}, v{E+i} clamp")
        for i in range(8): a(f"v_max_f32 v{A(t,0,i)}, v{A(t,0,i)}, {lo}")
        for i in range(8):
            if sel: a(f"v_fma_f32 v{A(t,0,i)}, v{E+i}, {sel}, v{A(t,0,i)}")
            else: a(f"v_add_f32 v{A(t,0,i)}, v{A(t,0,i)}, v{E+i}")
    def pack(t, dst):
        for q in range(4): a(f"v_cvt_pk_bf16_f32 v{dst+q}, v{A(t,0,2*q)}, v{A(t,0,2*q+1)}")
    for i in range(8): a(f"v_mul_f32 v{A(1,0,i)}, v{A(1,0,i)}, v{RR+i}")
    pack(1,P1_)
    for i in range(8): a(f"v_fma_f32 v{S2+i}, v{RR+i}, v122, v123")
    phi(0, lambda i:f"v{RR+i}", "v58", "v58", None); pack(0,P0_)
    phi(2, lambda i:f"v{S2+i}", "v119", "v120", "v121"); pack(2,P2_)
    if not last:
        a(f"v_cmp_gt_u32 vcc, 12, {VN}")
        for q in range(4): a(f"v_cndmask_b32{'_e64' if 'valu' in EXP else ''} v{P2_+q}, 0, v{P2_+q}, vcc")
    a(f"v_mov_b32 v5, 0x3f803f80\n v_cmp_gt_u32 vcc, 4, {VN}")
    for q in range(4): a(f"v_cndmask_b32{'_e64' if 'valu' in EXP else ''} v{P2o+q}, v{P2_+q}, v5, vcc")
    a(f"""
    {M16} v[8:11], {v(P0_,4)}, {v(P1_,4)}, 0
    {M16} v[12:15], {v(P2_,4)}, {v(P1_,4)}, 0
    {M16} v[16:19], {v(P0_,4)}, {v(P2o,4)}, 0
    {M16} v[20:23], {v(P2_,4)}, {v(P2o,4)}, 0
    {M16} v[24:27], {v(P2_,4)}, v[124:127], 0
    {M16} v[28:31], {v(P2_,4)}, v[128:131], 0
    v_add_u32 v6, s65, {VL16}
    """)
    for q in range(4): a(f"ds_write_b128 v6, {v(8+4*q,4)} offset:{1024*q}")
    KD = "kd" in EXP and last
    if KD: pst(a,0)
    L03=a.newlabel("lead")
    a(f"s_cmp_ge_u32 {SW}, 4\n s_cbranch_scc1 {L03}")
    if 'wfirst' not in EXP: ao_wload(a, WOR if last else WOF, 1, layer)
    a(f"s_mov_b32 s41, {f2u(math.log2(math.e))}")
    a.label(L03)
    if KD: pst(a,1)
    a("s_waitcnt lgkmcnt(0)\n s_barrier")
    if KD: pst(a,5)
    L7=a.newlabel("kv7"); LJ=a.newlabel("kvj"); L=a.newlabel("kvs")
    a(f"""
    s_mul_i32 s57, {SH}, {8*1792}
    s_add_u32 s57, s57, {KVP + layer*256*1792}
    s_cmp_eq_u32 {SW}, 7
    s_cbranch_scc1 {L}
    """)
    for w in range(8): a(f"ds_read_b32 v{8+w}, v118 offset:{w*2048*NRS(layer)}")
    a(f"""
    v_lshlrev_b32 v6, 2, v0
    s_mul_i32 s40, {SR}, 1792
    s_add_u32 s40, s40, s57
    s_waitcnt lgkmcnt(0)
    v_add_f32 v8, v8, v9
    v_add_f32 v10, v10, v11
    v_add_f32 v12, v12, v13
    v_add_f32 v14, v14, v15
    v_add_f32 v8, v8, v10
    v_add_f32 v12, v12, v14
    v_add_f32 v8, v8, v12
    v_max_u32 v8, 1, v8
    buffer_store_dword v8, v6, {R_WS}, s40 offen sc1
    {L}:
    """)
    if KD: pst(a,6)
    if last:
        a(f"""
        s_mul_i32 s42, s64, 40960
        s_mul_i32 s43, {SH}, 1280
        s_add_u32 s42, s42, s43
        s_add_u32 s42, s42, {Y3}
        s_mov_b32 s43, {f2u(2.0/640)}
        """)
        for i in range(8): a(f"v_mul_f32 v{A(4,0,i)}, s43, v{A(4,0,i)}")
        for q in range(4): a(f"v_cvt_pk_bf16_f32 v{60+q}, v{A(4,0,2*q)}, v{A(4,0,2*q+1)}")
        for q in range(4): a(f"v_max_u32 v{60+q}, 1, v{60+q}")
        a(f"buffer_store_dwordx2 v[60:61], v138, {R_WS}, s42 offen sc1")
        a(f"buffer_store_dwordx2 v[62:63], v138, {R_WS}, s42 offen offset:128 sc1")
    phi(3, lambda i:f"v{RL+(i>>2)}", "v58", "v58", None)
    for aa in range(2):
        a(f"v_cvt_pk_bf16_f32 v{QP+4*aa}, v{A(3,aa,0)}, v{A(3,aa,1)}")
        a(f"v_cvt_pk_bf16_f32 v{QP+4*aa+1}, v{A(3,aa,2)}, v{A(3,aa,3)}")
        a(f"v_cvt_pk_bf16_f32 v{QP+4*aa+2}, v{24+4*aa}, v{25+4*aa}")
        a(f"v_cvt_pk_bf16_f32 v{QP+4*aa+3}, v{26+4*aa}, v{27+4*aa}")
    a(f"""
    s_mul_i32 s44, s64, 40960
    s_add_u32 s44, s44, {ob}
    """)
    pst(a,3)
    LP=a.newlabel("kvp"); LD=a.newlabel("kvd")
    a(f"""
    s_cmp_eq_u32 {SW}, 7
    s_cbranch_scc1 {L7}
    s_mov_b32 s58, {SPIN}
    {LP}:
    buffer_load_dwordx4 v[8:11], v132, {R_WS}, s57 offen sc1
    buffer_load_dwordx4 v[12:15], v132, {R_WS}, s57 offen offset:128 sc1
    s_waitcnt vmcnt(0)
    v_min3_u32 v16, v8, v9, v10
    v_min3_u32 v17, v11, v12, v13
    v_min3_u32 v16, v16, v14, v15
    v_min_u32 v16, v16, v17
    v_cmp_eq_u32 vcc, 0, v16
    s_cmp_eq_u64 vcc, 0
    s_cbranch_scc1 {LD}
    """)
    retry_check(a, None, LP, LD, 30+layer)
    a.label(LD)
    if KD: pst(a,7)
    for i in range(4): a(f"v_permlane32_swap_b32 v{8+i}, v{12+i}")
    for i in range(4): a(f"v_add_f32 v{8+i}, v{8+i}, v{12+i}")
    a(f"""
    v_permlane16_swap_b32 v8, v10
    v_permlane16_swap_b32 v9, v11
    v_add_f32 v8, v8, v10
    v_add_f32 v9, v9, v11
    v_add_f32_dpp v8, v8, v8 row_ror:8 row_mask:0xf bank_mask:0xf
    v_add_f32_dpp v9, v9, v9 row_ror:8 row_mask:0xf bank_mask:0xf
    v_cvt_pk_bf16_f32 v8, v8, v9
    ds_write_b32 v133, v8
    s_waitcnt lgkmcnt(0)
    s_branch {LJ}
    {L7}:
    """)
    ao_wload(a, WOR if last else WOF, 0, layer)
    a(f"""
    {LJ}:
    s_barrier
    ds_read_b128 v[28:31], v135
    ds_read_b128 v[24:27], v134
    """)
    pst(a,4)
    if KD: pflush(a,6)
    a("s_waitcnt lgkmcnt(0)")
    for aa in range(2):
        a(f"{M16} {v(36+8*aa,4)}, v[28:31], {v(QP+4*aa,4)}, 0")
    for aa in range(2):
        a(f"{M16} {v(32+8*aa,4)}, v[24:27], {v(QP+4*aa,4)}, 0")
    for aa in range(2):
        D=32+8*aa
        a(f"""
        v_mov_b32 v{8+2*aa}, v{D+4}
        v_mov_b32 v{9+2*aa}, v{D+4}
        """)
    for aa in range(2): a(f"v_permlane16_swap_b32 v{8+2*aa}, v{9+2*aa}")
    for aa in range(2): a(f"v_add_f32 v{9+2*aa}, v{9+2*aa}, v58")
    for aa in range(2): a(f"v_rcp_f32 v{9+2*aa}, v{9+2*aa}")
    for aa in range(2):
        D=32+8*aa
        for i in range(8): a(f"v_mul_f32 v{D+i}, v{D+i}, v{9+2*aa}")
        for q in range(4): a(f"v_cvt_pk_bf16_f32 v{12+4*aa+q}, v{D+2*q}, v{D+2*q+1}")
        for q in range(4): a(f"v_max_u32 v{12+4*aa+q}, 1, v{12+4*aa+q}")
        a(f"buffer_store_dwordx2 {v(12+4*aa,2)}, v136, {R_WS}, s44 offen offset:{128*aa} sc1")
    a(f"""
    s_mov_b64 exec, 0xffff
    buffer_store_dwordx2 v[14:15], v137, {R_WS}, s44 offen sc1
    buffer_store_dwordx2 v[18:19], v137, {R_WS}, s44 offen offset:128 sc1
    s_mov_b64 exec, -1
    """)
    if last:
        for r in (QP+2,QP+3,QP+6,QP+7): a(f"v_max_u32 v{r}, 1, v{r}")
        a(f"""
        s_mov_b32 exec_lo, 0
        s_mov_b32 exec_hi, 0xffff0000
        buffer_store_dwordx2 {v(QP+2,2)}, v138, {R_WS}, s42 offen offset:256 sc1
        buffer_store_dwordx2 {v(QP+6,2)}, v138, {R_WS}, s42 offen offset:384 sc1
        s_mov_b64 exec, -1
        """)

def ao_wload(a, wt, part, layer):
    if 'now' in EXP and layer: return
    a(f"""
    s_mul_i32 s40, {ST}, 102400
    s_add_u32 s40, s40, {wt}
    """)
    if part==0:
        lo = 64 if layer else 48
        for f in range(lo,lo+36):
            if f%4==0: a(f"s_add_u32 s41, s40, {f*1024}\n s_mov_b32 m0, {FT+f*1024}")
            a(f"buffer_load_dwordx4 {VL16}, {R_WS}, s41 offen offset:{1024*(f%4)} sc1 lds")
    else:
        a(f"s_lshl_b32 s41, {SW}, 14")
        if not layer: a(f"s_cmp_eq_u32 {SW}, 3\n s_cselect_b32 s41, {84*1024}, s41")
        a("s_add_u32 s40, s40, s41")
        for j in range(16):
            if j%4==0: a(f"s_add_u32 s45, s40, {j*1024}\n s_add_u32 m0, s41, {FT+j*1024}")
            a(f"buffer_load_dwordx4 {VL16}, {R_WS}, s45 offen offset:{1024*(j%4)} sc1 lds")

def ao_main(a, layer):
    ob = O4 if layer else O2
    a(f"""
    s_lshl_b32 s48, {SI}, 2
    s_add_u32 s48, s48, s60
    s_mul_i32 s48, s48, 20480
    s_mul_i32 s41, s61, 10240
    s_add_u32 s48, s48, s41
    s_add_u32 s48, s48, {ob}
    s_add_u32 s49, s48, 4096
    s_add_u32 s50, s48, 8192
    s_mov_b32 s58, {SPIN}
    """)
    ld=lambda j: a(f"buffer_load_dwordx4 {v(PF+4*j,4)}, {VL16}, {R_WS}, s{48+j//4} offen offset:{1024*(j%4)} sc1")
    a(f"s_waitcnt vmcnt({0 if 'noodrain' not in EXP else (6 if layer else 7)})\n s_barrier")
    if "clk" not in EXP: pst(a,7)
    if layer:
        L=a.newlabel("p6l")
        a(f"s_cmp_lg_u32 s61, 0\n s_cbranch_scc1 {L}")
        p6_resload(a)
        a.label(L)
    AHEAD=4
    for e in EXP:
        if e.startswith('ah'): AHEAD=int(e[2:])
    for j in range(AHEAD): ld(j)
    blocks=[]
    def chk(j):
        a(f"""
        v_min3_u32 v5, v{PF+4*j}, v{PF+4*j+1}, v{PF+4*j+2}
        v_min_u32 v5, v5, v{PF+4*j+3}
        v_cmp_eq_u32 vcc, 0, v5
        s_cmp_lg_u64 vcc, 0
        """)
    def wp(j):
        R=a.newlabel("aor"); B=a.newlabel("aob")
        if j+AHEAD<10: ld(j+AHEAD)
        a(f"s_waitcnt vmcnt({min(AHEAD,9-j)})")
        chk(j)
        a(f"s_cbranch_scc1 {R}")
        a.label(B)
        blocks.append((j,R,B))
    g640_core(a, layer==1, "v21", wait_priv=wp)
    def emit_blocks():
        for j,R,B in blocks:
            OK=a.newlabel("aok")
            a.label(R)
            ld(j)
            a("s_waitcnt vmcnt(0)")
            chk(j)
            a(f"s_cbranch_scc0 {OK}")
            retry_check(a, None, R, B, 40+layer)
            a.label(OK)
            for k in range(j+1,min(10,j+AHEAD+1)): ld(k)
            a(f"s_branch {B}")
    a.late.append(emit_blocks)

def p6_prep(a):
    mu_pos(a, "v10", "s62", "v11")
    a(f"""
    v_mul_u32_u24 v22, 1280, {VG}
    v_lshl_add_u32 v22, v10, 3, v22
    s_lshl_b32 s74, {SI}, 1
    s_add_u32 s74, s74, s63
    s_mul_i32 s74, s74, 40960
    s_mul_i32 s41, {ST}, 5120
    s_add_u32 s74, s74, s41
    s_add_u32 s74, s74, {Y3}
    """)
    tok_row(a)("v10", VN)
    a(f"""
    s_movk_i32 s41, 1280
    v_mul_lo_u32 v10, v10, s41
    v_mul_u32_u24 v12, 40, {VG}
    v_add_u32 v23, v10, v12
    s_mul_i32 s75, {ST}, 160
    s_mul_i32 s40, s60, 5120
    s_add_u32 s40, s40, {RS}
    v_add_u32 v9, s40, {VL16}
    """)

def p6_resload(a):
    for nt in range(5): a(f"buffer_load_dwordx2 {v(10+2*nt,2)}, v22, {R_WS}, s74 offen offset:{256*nt} sc1")

def p6_epilogue(a):
    L1=a.newlabel("p6a"); L2=a.newlabel("p6b"); LR=a.newlabel("p6r"); LK=a.newlabel("p6k")
    a(f"s_cmp_eq_u32 s61, 0\n s_cbranch_scc1 {L1}")
    for nt in range(5): a(f"ds_write_b128 v9, {v(AC+4*nt,4)} offset:{nt*1024}")
    a(f"""
    s_waitcnt lgkmcnt(0)
    s_barrier
    s_branch {L2}
    {LR}:
    """)
    p6_resload(a)
    a("s_waitcnt vmcnt(0)")
    retry_check(a, None, L1, LK, 50)
    a(f"""
    {L1}:
    v_min3_u32 v6, v10, v11, v12
    v_min3_u32 v7, v13, v14, v15
    v_min3_u32 v6, v6, v16, v17
    v_min3_u32 v7, v7, v18, v19
    v_min_u32 v6, v6, v7
    v_cmp_eq_u32 vcc, 0, v6
    s_cmp_lg_u64 vcc, 0
    s_cbranch_scc1 {LR}
    {LK}:
    """)
    for q in range(10):
        a(f"""
        v_lshlrev_b32 v6, 16, v{10+q}
        v_and_b32 v7, 0xffff0000, v{10+q}
        v_add_f32 v{AC+2*q}, v{AC+2*q}, v6
        v_add_f32 v{AC+2*q+1}, v{AC+2*q+1}, v7
        """)
    a("s_barrier")
    for nt in range(5): a(f"ds_read_b128 {v(SB+4*nt,4)}, v9 offset:{nt*1024}")
    a("s_waitcnt lgkmcnt(0)")
    for q in range(10):
        a(f"""
        v_add_f32 v{AC+2*q}, v{AC+2*q}, v{SB+2*q}
        v_add_f32 v{AC+2*q+1}, v{AC+2*q+1}, v{SB+2*q+1}
        v_cvt_pk_bf16_f32 v{64+q}, v{AC+2*q}, v{AC+2*q+1}
        """)
    a(f"""
    buffer_store_dwordx4 v[64:67], v23, {R_OUT}, s75 offen {OSF()}
    buffer_store_dwordx4 v[68:71], v23, {R_OUT}, s75 offen offset:16 {OSF()}
    buffer_store_dwordx2 v[72:73], v23, {R_OUT}, s75 offen offset:32 {OSF()}
    {L2}:
    """)

def probe(a, beta, dst):
    L=a.newlabel("pb")
    a(f"""
    s_cmp_lg_u32 {SW}, 7
    s_cbranch_scc1 {L}
    s_and_b32 s59, s2, 3
    s_lshl_b32 s59, s59, 12
    s_add_u32 s59, s59, {CNTB(beta)}
    v_lshlrev_b32 v255, 8, {VN}
    buffer_load_dword {dst}, v255, {R_WS}, s59 offen sc1
    {L}:
    """)
def probe_check(a, beta, src, vm):
    L=a.newlabel("pc")
    a(f"""
    s_cmp_lg_u32 {SW}, 7
    s_cbranch_scc1 {L}
    s_waitcnt vmcnt({vm})
    v_cmp_gt_u32 vcc, 16, {src}
    s_cmp_eq_u64 vcc, 0
    s_cbranch_scc1 {L}
    """)
    wait(a, beta, bar=False)
    a.label(L)

def code_touch(a):
    L=a.newlabel("ct")
    a(f"""
    s_cmp_lg_u32 {SW}, 1
    s_cbranch_scc1 {L}
    s_getpc_b64 s[64:65]
    ctbase:
    s_lshr_b32 s66, s2, 3
    s_mul_i32 s66, s66, 12
    v_min_u32 v8, 11, {VL}
    v_add_u32 v8, s66, v8
    v_lshlrev_b32 v8, 7, v8
    v_min_u32 v8, kend-ctbase-4, v8
    v_mov_b32 v9, s65
    v_add_co_u32 v8, vcc, s64, v8
    v_addc_co_u32 v9, vcc, 0, v9, vcc
    global_load_dword v254, v[8:9], off
    {L}:
    """)

def p0_qfirst(a):
    pst(a,0)
    l2_touch(a)
    zero_issue(a)
    pst(a,1)
    LE=a.newlabel("ea"); LF=a.newlabel("eb")
    gen_ftile(a)
    zero_signal(a)
    pst(a,2)
    wq_dma(a)
    wt_loads(a)
    xtile_base(a, "s64")
    L=a.newlabel("nc")
    a(f"s_cmp_ge_u32 s72, 20\n s_cbranch_scc1 {L}")
    fft_consts(a)
    a.label(L)
    side_job(a, False, 0)
    pst(a,3)
    xl=x_regloads(a)
    a(f"""
    v_lshrrev_b32 v7, 2, {VN}
    v_lshl_add_u32 v6, {VG}, 3, v7
    v_lshlrev_b32 v6, 7, v6
    v_lshrrev_b32 v7, 1, v7
    v_and_b32 v11, 1, {VG}
    v_lshl_add_u32 v7, v11, 1, v7
    v_xor_b32 v7, s60, v7
    v_lshl_add_u32 v6, v7, 5, v6
    v_and_b32 v7, 3, {VN}
    v_lshl_add_u32 v7, v7, 3, v6
    s_mul_i32 s40, s61, 40960
    s_add_u32 s40, s40, {WQL}
    v_add_u32 v7, s40, v7
    """)
    L6=a.newlabel("w6")
    a(f"s_cmp_lt_u32 {SW}, 3\n s_cbranch_scc1 {L6}\n s_waitcnt vmcnt(0)\n {L6}:")
    for j in range(4): xl(j)
    a("s_waitcnt lgkmcnt(0)\n s_barrier")
    pst(a,4)
    for j in range(10):
        a(f"ds_read_b64_tr_b16 {v(PF+4*j,2)}, v7 offset:{4096*j}")
        a(f"ds_read_b64_tr_b16 {v(PF+4*j+2,2)}, v7 offset:{4096*j+512}")
        if j%4==3: a("s_waitcnt lgkmcnt(4)")
    init_probe(a)
    L=a.newlabel("zx")
    def zx(k):
        if k==0: a(f"""
            v_mov_b32 v12, 0
            v_mov_b32 v13, 0
            s_mul_i32 s43, s61, 40960
            s_lshl_b32 s44, s60, 9
            s_add_u32 s43, s43, s44
            v_lshlrev_b32 v6, 3, {VL}
            v_add_u32 v6, s43, v6
            s_add_u32 s46, s64, 4096
            s_cmp_ge_u32 s60, 2
            s_cselect_b32 s46, {OOB}, s46
            buffer_store_dwordx2 v[12:13], v6, {R_WS}, s64 offen sc1
            """)
        if k==1: a(f"buffer_store_dwordx2 v[12:13], v6, {R_WS}, s64 offen offset:2048 sc1")
        if k==2: a(f"""
            buffer_store_dwordx2 v[12:13], v6, {R_WS}, s46 offen sc1
            s_cmp_lg_u32 {SW}, 6
            s_cbranch_scc1 {L}
            v_lshlrev_b32 v7, 2, {VL}
            s_lshl_b32 s47, {ST}, 12
            s_lshl_b32 s46, {SI}, 7
            s_add_u32 s47, s47, s46
            s_add_u32 s47, s47, {PV0}
            s_mov_b32 exec_hi, 0
            buffer_store_dword v12, v7, {R_WS}, s47 offen sc1
            s_mov_b32 exec_hi, -1
            {L}:
            """)
    def hook(j):
        if j<3: zx(j)
        if j<6: xl(j+4)
    g640_core(a, True, VL16, wait_priv=hook)
    pst(a,5)
    wq_write(a)
    a("s_waitcnt vmcnt(0)")
    L=a.newlabel("bz")
    a(f"s_cmp_lg_u32 {SW}, 6\n s_cbranch_scc1 {L}")
    init_wait(a)
    a.label(L)
    a("s_waitcnt lgkmcnt(0)\n s_barrier")
    arrive(a, 0)
    wq_stage(a)
    wq_fin(a)
    zfill(a, KVP, (ZCEND-KVP)//1024, 1, 12)
    xe_prep(a, False, sign="v5")
    a("s_waitcnt lgkmcnt(0)")
    rows_read(a, 63)
    a("s_waitcnt lgkmcnt(0)\n s_barrier")
    pst(a,6)
    g640_core(a, False, VL16)
    probe(a, 0, "v252")
    a(f"s_mov_b32 s65, {PV0}\n s_waitcnt vmcnt(0)")
    xtype_epilogue(a, "s64", False, "s65", vm1="v5", extra_write=lambda: probe_check(a, 0, "v252", 0), post_bar=lambda: arrive(a, 1))
    a("s_barrier")
    pst(a,7)
    pflush(a,0)

def p0_xfirst(a):
    pst(a,0)
    if 'ctouch' in EXP and 'ctlate' in EXP: code_touch(a)
    if 'tlb' in EXP:
        L=a.newlabel("tlb")
        a(f"""
        s_cmp_lg_u32 {SW}, 1
        s_cbranch_scc1 {L}
        v_lshlrev_b32 v8, 20, {VL}
        s_lshl_b32 s40, s2, 7
        buffer_load_dword v254, v8, {R_WS}, s40 offen sc1
        buffer_load_dword v254, v8, {R_OUT}, s40 offen sc1
        {L}:
        """)
    l2_touch(a)
    if 'wtouch' not in EXP: wt_loads(a)
    zero_issue(a)
    pst(a,1)
    if 'early' in EXP:
        LE=a.newlabel("ea"); LF=a.newlabel("eb")
        a(f"s_cmp_ge_u32 {SW}, 4\n s_cbranch_scc1 {LE}")
        rows_dma(a, R_X, tok_row(a))
        a.label(LE)
    gen_ftile(a)
    zero_signal(a)
    pst(a,2)
    if 'early' in EXP: a(f"s_cmp_lt_u32 {SW}, 4\n s_cbranch_scc1 {LF}")
    rows_dma(a, R_X, tok_row(a))
    if 'early' in EXP: a.label(LF)
    if 'wtouch' in EXP: wt_loads(a)
    xtile_base(a, "s64")
    L=a.newlabel("nc")
    a(f"s_cmp_ge_u32 s72, 20\n s_cbranch_scc1 {L}")
    fft_consts(a)
    a.label(L)
    side_job(a, False, 0)
    pst(a,3)
    wl=wq_loads(a)
    xe_prep(a, False, sign="v5")
    L6=a.newlabel("w6")
    a((f"s_cmp_ge_u32 s72, 20" if 'wtside' in EXP else f"s_cmp_lt_u32 {SW}, 3")+f"\n s_cbranch_scc1 {L6}\n s_waitcnt vmcnt(0)\n {L6}:")
    rows_read(a, 4)
    wl(0); wl(1)
    a("s_waitcnt lgkmcnt(0)\n s_barrier")
    pst(a,4)
    g640_core(a, False, VL16, wait_priv=lambda j: (wl(j+2) if j<8 else None))
    pst(a,5)
    init_probe(a)
    a(f"s_mov_b32 s65, {PV0}")
    xtype_epilogue(a, "s64", False, "s65", vm1="v5")
    pst(a,6)
    a("s_waitcnt vmcnt(3)")
    wq_stage(a)
    q_core(a)
    probe(a, 0, "v252")
    wq_write(a)
    probe_check(a, 0, "v252", 0)
    a("s_waitcnt lgkmcnt(0)\n s_barrier")
    pst(a,7)
    pflush(a,0)

def body(a):
    QF='qfirst' in EXP
    (p0_qfirst if QF else p0_xfirst)(a)
    def fft_phase(layer, k):
        first = layer==0
        xin,xout,var,ba = (X0,X1,PV0,2) if first else (X2,X3,PV2,4)
        S=a.newlabel("side"); J=a.newlabel("join"); S2=a.newlabel("side2")
        qkv_roles(a, layer)
        a(f"s_cmp_ge_u32 s72, 20\n s_cbranch_scc1 {S}")
        if first:
            if not QF: wq_fin(a)
            fft_w_load(a)
        if first:
            fft_prep(a, first)
        pst(a,2)
        bg=fft_main(a, xin, xout, var, first)
        pst(a,3)
        if ("fd" in EXP and not first) or ("fd1" in EXP and first): pflush(a,6)
        nb=len(bg)
        qkv_prep(a, layer)
        if first and 'lateb1' in EXP: probe_check(a, 1, "v252", 2)
        drain(a); arrive(a, ba)
        if 'atouch' in EXP:
            RX=RXS[layer]; L=a.newlabel("at"); nw=(80*RX+63)//64
            a(f"""
            s_cmp_ge_u32 {SW}, {min(nw,6)}
            s_cbranch_scc1 {L}
            s_lshl_b32 s40, {SW}, 6
            v_add_u32 v8, s40, {VL}
            v_min_u32 v8, {80*RX-1}, v8
            v_lshlrev_b32 v8, 7, v8
            s_and_b32 s40, {SX}, {8//RX-1}
            s_mul_i32 s40, s40, {RX*8*40960}
            s_lshr_b32 s41, s2, 3
            s_mul_i32 s41, s41, {80*RX*128}
            s_add_u32 s40, s40, s41
            s_add_u32 s40, s40, {xout}
            buffer_load_dword v254, v8, {R_WS}, s40 offen sc1
            {L}:
            """)
        J6=a.newlabel("j6")
        if nb:
            a("s_barrier")
            for c in bg: c()
        pst(a,4)
        a(f"s_branch {J if nb else J6}")
        a.label(S)
        if first:
            if not QF:
                wq_fin(a)
                drain(a); arrive(a, 1)
            a(f"s_sub_u32 s66, s72, 20\n s_cmp_ge_u32 s66, 10\n s_cbranch_scc1 {S2}")
            wo_job(a, False)
            S3=a.newlabel("side3")
            a(f"s_branch {S3}")
            a.label(S2)
            gcol_job(a)
            a.label(S3)
            a("s_waitcnt lgkmcnt(0)")
            wait(a, 1)
            qkv_bload(a, 4)
            a("s_waitcnt vmcnt(10)\n s_barrier")
            arrive(a, 5)
        else:
            if 'sbar' in EXP: a("s_barrier")
            wor_loads(a)
            side_job(a, True, 0)
            drain(a); arrive(a, 3)
            qkv_bload(a, 5)
            L=a.newlabel("z4")
            a(f"""
            v_mov_b32 v8, 0
            v_mov_b32 v9, 0
            v_mov_b32 v10, 0
            v_mov_b32 v11, 0
            s_lshl_b32 s41, s67, 10
            s_add_u32 s41, s41, {O4}
            """)
            for i in range(7):
                if 'zloop' in EXP: break
                if i==6: a(f"s_cmp_ge_u32 s67, {5120-6*768}\n s_cbranch_scc1 {L}")
                a(f"buffer_store_dwordx4 v[8:11], {VL16}, {R_WS}, s41 offen sc1\n s_add_u32 s41, s41, {768*1024}")
            a.label(L)
        qkv_prep(a, layer)
        a.label(J)
        a("s_waitcnt vmcnt(0)")
        a.label(J6)
        pst(a,5)
        pflush(a,k)
    def attn_phase(layer, k):
        last = layer==1
        pst(a,0)
        wait(a, 4 if last else 2)
        pst(a,1)
        if "clk" in EXP: a("s_memtime s[84:85]")
        qkv_main(a, layer)
        pst(a,2)
        if "clk" in EXP: a("s_memtime s[98:99]")
        qkv_tail(a, layer)
        pst(a,5)
        a(f"s_mul_i32 s40, s61, 51200\n v_add_u32 v21, s40, {VL16}")
        if last:
            p6_prep(a)
        else:
            xtile_base(a, "s64")
            a(f"s_add_u32 s66, s64, {X1}\n s_add_u32 s64, s64, {X2}\n s_mov_b32 s65, {PV2}")
            xe_prep(a, False, "s66")
            fft_prep(a, False)
        pst(a,6)
        pflush(a,k)
        ao_main(a, layer)
        pst(a,0)
        if last:
            p6_epilogue(a)
            pst(a,1)
            if STAMPS: a("s_waitcnt vmcnt(0)")
            pst(a,2)
            pflush(a,k+1)
        else:
            xtype_epilogue(a, "s64", True, "s65")
            pst(a,6)
            if "xe" in EXP: pflush(a,6)
    fft_phase(0,1)
    attn_phase(0,2)
    fft_phase(1,3)
    attn_phase(1,4)

def build(path):
    n=NAME+"_kernel"
    a=Asm(); a.late=[]
    a.l.append(f".globl {n}\n.p2align 8\n.type {n},@function")
    a.label(n)
    prologue(a)
    if STAMPS:
        for i in range(84,100): a(f"s_mov_b32 s{i}, 0")
    body(a)
    a.label("kexit")
    a("s_endpgm")
    for f in a.late: f()
    a.label("kend")
    hdr=open("cdna_kernels/"+NAME+".s.ref").read().split("; Override")[0]
    txt=hdr+"; @launch grid=(256,1,1) block=(512,1,1) lds=163840\n"+'.amdgcn_target "amdgcn-amd-amdhsa--gfx950"\n.text\n'+a.text()
    txt+=f""".section .rodata,"a"
.p2align 6
.amdhsa_kernel {n}
  .amdhsa_next_free_vgpr 256
  .amdhsa_next_free_sgpr 102
  .amdhsa_accum_offset 256
  .amdhsa_group_segment_fixed_size 0
  .amdhsa_kernarg_size 72
  .amdhsa_user_sgpr_count 2
  .amdhsa_user_sgpr_kernarg_segment_ptr 1
  .amdhsa_system_sgpr_workgroup_id_x 1
.end_amdhsa_kernel
"""
    open(path,"w").write(txt)

if __name__=="__main__":
    if len(sys.argv)>2 and sys.argv[2]=='1': STAMPS=True
    if len(sys.argv)>3: EXP=set(sys.argv[3].split(","))
    EXP ^= DEF
    for e in EXP:
        if e.startswith("rx"): RXS=[int(e[2]),int(e[3])]
    build(sys.argv[1])
```

```python
import sys, math
sys.path.insert(0, "gen")
from asmlib import *

NAME = "interleave_layers__spectral_gfnet__linear_attn_block__prompt"
XB = 2621440
X0, X2, X3 = 0, 4*XB, 3*XB
X1 = 13*XB
O4 = 5*XB
O2 = 2*XB
KVP = 14*XB
Y3 = 6*XB
WT = 11*XB
WQF = 8*XB
WOF = WQF + 32*102400
WOR = WOF + 819200
ZA = 10*XB
CNT0 = ZA
PV0 = ZA + 65536
ZC = KVP + 2*256*1792
PV2 = ZC; VAR1 = PV2 + 32768; VAR3 = VAR1 + 8192
LSS = VAR3 + 8192
CNT1 = LSS + 32768
ZCEND = CNT1 + 5*16384
def CNTB(b): return CNT0 + b*16384 if b<2 else CNT1 + (b-1)*16384
RXS = [2,2]
DBGW = 10*XB + 1048576
WS_SIZE = 15*XB
OOB = 0x7ff00000

SW,SX,SA,ST,SI = "s3","s4","s5","s6","s7"
SH = "s71"
SR = "s80"
SROT = "s68"
R_X,R_WR,R_WI,R_WQKV,R_WO,R_OUT,R_WS,R_DBG = ["s[%d:%d]"%(8+4*i,11+4*i) for i in range(8)]
VL,VN,VG,VL16 = "v1","v2","v3","v4"
M16 = "v_mfma_f32_16x16x32_bf16"
STAMPS = False
EXP = set()
DEF = {'wtouch','lateb1','ctouch','p6c','gprio','wqdma','dfirst','st1','b0late'}

def PSL():
    for e in EXP:
        if e.startswith('ps'): return 's_sleep '+e[2:]
    return ''
def OSF(): return 'sc1' if 'osc1' in EXP else 'nt' if 'ont' in EXP else ''
def pst(a, i):
    if STAMPS: a(f"s_memrealtime s[{84+2*i}:{85+2*i}]")
DSEL = {(0,0):1,(0,3):2,(0,5):3,(0,6):5,(1,3):6,(2,1):7,(2,2):8,(3,7):9,(3,6):10,(3,3):11,(4,1):12,(4,2):13,(5,7):14,(5,2):15}
def pflush(a, k):
    if not STAMPS: return
    if "dbg" in EXP:
        L=a.newlabel("df")
        a(f"s_waitcnt lgkmcnt(0)\n s_cmp_lg_u32 {SW}, 4\n s_cbranch_scc1 {L}\n s_and_b32 s58, s2, 0x38\n s_cmp_lg_u32 s58, 0\n s_cbranch_scc1 {L}\n s_mov_b64 exec, 1")
        for (kk,i),w in DSEL.items():
            if kk!=k: continue
            if w==1: a(f"s_not_b32 s{84+2*i}, s{84+2*i}")
            a(f"v_mov_b32 v254, s{84+2*i}\n v_mov_b32 v255, {4*w}\n buffer_atomic_umax v254, v255, {R_DBG}, 0 offen sc1\n s_nop 1")
        a("s_mov_b64 exec, -1")
        a.label(L)
        for i in range(84,100): a(f"s_mov_b32 s{i}, 0")
        return
    a("s_waitcnt lgkmcnt(0)")
    a(f"""
    s_lshl_b32 s58, s2, 3
    s_add_u32 s58, s58, {SW}
    s_lshl_b32 s58, s58, 5
    s_add_u32 s58, s58, {DBGW + k*65536}
    v_lshlrev_b32 v255, 2, {VL}
    """)
    for i in range(8): a(f"v_writelane_b32 v254, s{84+2*i}, {i}")
    a(f"""
    s_mov_b64 exec, 0xff
    buffer_store_dword v254, v255, {R_WS}, s58 offen
    s_mov_b64 exec, -1
    """)
    for i in range(84,100): a(f"s_mov_b32 s{i}, 0")

def prologue(a):
    a(f"""
    s_cmp_ge_u32 s2, 256
    s_cbranch_scc1 kexit
    s_load_dwordx16 s[40:55], s[0:1], 0
    s_load_dwordx2 s[56:57], s[0:1], 64
    v_and_b32 {VL}, 63, v0
    v_lshrrev_b32 v5, 6, v0
    v_and_b32 {VN}, 15, v0
    v_bfe_u32 {VG}, v0, 4, 2
    v_readfirstlane_b32 {SW}, v5
    v_lshlrev_b32 {VL16}, 4, {VL}
    s_and_b32 {SX}, s2, 7
    s_bfe_u32 {SA}, s2, 0x20003
    s_lshr_b32 {ST}, s2, 5
    s_lshl_b32 {SI}, {SX}, 2
    s_add_u32 {SI}, {SI}, {SA}
    s_mov_b32 s83, 0
    s_mov_b32 s79, 0
    s_mov_b32 s69, 0
    s_mov_b32 s70, 0
    v_mov_b32 v252, 0
    v_mov_b32 v244, 0
    s_and_b32 s60, {SW}, 3
    s_lshr_b32 s61, {SW}, 2
    s_and_b32 s62, {SW}, 1
    s_lshl_b32 s62, s62, 2
    s_bfe_u32 s63, {SW}, 0x10001
    s_and_b32 s72, {ST}, 1
    s_lshl_b32 s72, s72, 2
    s_add_u32 s72, s72, {SX}
    s_and_b32 s72, s72, 7
    s_lshl_b32 s73, {SA}, 3
    s_add_u32 s72, s72, s73
    s_mul_i32 s73, {ST}, 20
    s_add_u32 s73, s73, s72
    """)
    if 'ctouch' in EXP and 'ctlate' not in EXP: code_touch(a)
    a("s_waitcnt lgkmcnt(0)")
    for srd, src, size in ((8,40,2621440),(32,56,WS_SIZE),(20,48,2457600),(12,42,1314816),(16,44,1314816),(24,50,819200),(28,52,2621440),(36,54,256)):
        a(f"""
        s_mov_b32 s{srd}, s{src}
        s_and_b32 s{srd+1}, s{src+1}, 0xffff
        s_mov_b32 s{srd+2}, {size}
        s_mov_b32 s{srd+3}, 0x20000
        """)

def zero_issue(a):
    L = a.newlabel("zi")
    a(f"""
    s_cmp_lg_u32 s2, 0
    s_cbranch_scc1 {L}
    s_cmp_lg_u32 {SW}, 6
    s_cbranch_scc1 {L}
    v_mov_b32 v8, 0
    v_mov_b32 v9, 0
    v_mov_b32 v10, 0
    v_mov_b32 v11, 0
    s_mov_b32 s42, {CNT0}
    v_lshlrev_b32 v12, 8, {VL}
    buffer_store_dword v8, v12, {R_WS}, s42 offen sc1
    s_mov_b32 s42, {CNT0+16384}
    buffer_store_dword v8, v12, {R_WS}, s42 offen sc1
    """)
    a.label(L)

def zero_signal(a):
    L = a.newlabel("zs")
    a(f"""
    s_cmp_lg_u32 s2, 0
    s_cbranch_scc1 {L}
    s_cmp_lg_u32 {SW}, 6
    s_cbranch_scc1 {L}
    s_waitcnt vmcnt(0)
    v_mov_b32 v254, 1
    v_mov_b32 v255, 0
    s_mov_b64 exec, 1
    buffer_store_dword v254, v255, {R_DBG}, 0 offen sc1
    s_mov_b64 exec, -1
    {L}:
    """)

def zfill(a, base, nchunks, rounds, zr):
    for k in range(4): a(f"v_mov_b32 v{zr+k}, 0")
    a(f"""
    s_lshl_b32 s40, {SW}, 8
    s_add_u32 s40, s40, s2
    s_lshl_b32 s41, s40, 10
    s_add_u32 s41, s41, {base}
    """)
    L=a.newlabel("zf")
    for i in range(rounds):
        if (i+1)*2048>nchunks: a(f"s_cmp_ge_u32 s40, {nchunks-i*2048}\n s_cbranch_scc1 {L}")
        a(f"buffer_store_dwordx4 {v(zr,4)}, {VL16}, {R_WS}, s41 offen sc1")
        if i<rounds-1: a(f"s_add_u32 s41, s41, {2048*1024}")
    a.label(L)

SPIN = 40000
def retry_check(a, Lfail_tag, Lback, Ldone, tag):
    a(f"""
    s_cmp_lg_u32 s83, 0
    s_cbranch_scc1 {Ldone}
    {'s_sleep 4' if 'sleep' in EXP else ''}
    s_sub_u32 s58, s58, 1
    s_cmp_lg_u32 s58, 0
    s_cbranch_scc1 {Lback}
    s_mov_b32 s83, {tag}
    v_mov_b32 v254, {tag}
    v_mov_b32 v255, 16
    buffer_store_dword v254, v255, {R_DBG}, 0 offen
    s_branch {Ldone}
    """)

def poll(a, srd, soff, vaddr, target, tag):
    Lp=a.newlabel("poll"); Ld=a.newlabel("polld")
    a(f"""
    s_mov_b32 s58, {SPIN}
    s_cmp_lg_u32 s83, 0
    s_cbranch_scc1 {Ld}
    {Lp}:
    buffer_load_dword v254, {vaddr}, {srd}, {soff} offen sc1
    s_waitcnt vmcnt(0)
    v_cmp_gt_u32 vcc, {target}, v254
    s_cmp_eq_u64 vcc, 0
    s_cbranch_scc1 {Ld}
    {PSL()}
    s_sub_u32 s58, s58, 1
    s_cmp_lg_u32 s58, 0
    s_cbranch_scc1 {Lp}
    s_mov_b32 s83, {tag}
    v_mov_b32 v254, {tag}
    v_mov_b32 v255, 16
    buffer_store_dword v254, v255, {R_DBG}, 0 offen
    {Ld}:
    """)

def poll_pipe(a, srd, soff, vaddr, target, tag, tr, D=4):
    Lp=a.newlabel("pp"); Ld=a.newlabel("ppd")
    a(f"""
    s_mov_b32 s58, {SPIN}
    s_cmp_lg_u32 s83, 0
    s_cbranch_scc1 {Ld}
    """)
    for k in range(D-1):
        a(f"buffer_load_dword v{tr+k}, {vaddr}, {srd}, {soff} offen sc1\n s_sleep 3")
    a.label(Lp)
    for k in range(D):
        a(f"""
        buffer_load_dword v{tr+(k+D-1)%D}, {vaddr}, {srd}, {soff} offen sc1
        s_waitcnt vmcnt({D-1})
        v_cmp_gt_u32 vcc, {target}, v{tr+k}
        s_cmp_eq_u64 vcc, 0
        s_cbranch_scc1 {Ld}
        """)
    a(f"""
    s_sub_u32 s58, s58, 1
    s_cmp_lg_u32 s58, 0
    s_cbranch_scc1 {Lp}
    s_mov_b32 s83, {tag}
    v_mov_b32 v254, {tag}
    v_mov_b32 v255, 16
    buffer_store_dword v254, v255, {R_DBG}, 0 offen
    {Ld}:
    """)

def init_probe(a):
    L=a.newlabel("ip")
    a(f"""
    s_cmp_lg_u32 {SW}, 6
    s_cbranch_scc1 {L}
    v_mov_b32 v255, 0
    buffer_load_dword v253, v255, {R_DBG}, 0 offen sc1
    {L}:
    """)

def init_wait(a):
    L=a.newlabel("iw")
    a(f"""
    v_cmp_gt_u32 vcc, 1, v253
    s_cmp_eq_u64 vcc, 0
    s_cbranch_scc1 {L}
    v_mov_b32 v255, 0
    """)
    poll(a, R_DBG, 0, "v255", 1, 100)
    a.label(L)

def drain(a): a("s_waitcnt vmcnt(0) lgkmcnt(0)\n s_barrier")

def arrive(a, beta):
    L=a.newlabel("arr")
    a(f"""
    s_cmp_lg_u32 {SW}, 6
    s_cbranch_scc1 {L}
    s_and_b32 s59, s2, 15
    s_lshl_b32 s59, s59, 8
    s_add_u32 s59, s59, {CNTB(beta)}
    v_lshlrev_b32 v255, 12, {VL}
    v_mov_b32 v254, 1
    s_mov_b64 exec, 15
    buffer_atomic_add v254, v255, {R_WS}, s59 offen sc1
    s_mov_b64 exec, -1
    {L}:
    """)

def bar_target(a, beta):
    lo = 4 if beta in (3,5) else 12
    a(f"v_cmp_gt_u32 vcc, 8, {VN}\n v_mov_b32 v253, {lo}\n v_cndmask_b32 v253, 8, v253, vcc")

def wait(a, beta, bar=True, target=16):
    L=a.newlabel("wt")
    a(f"""
    s_cmp_lg_u32 {SW}, 7
    s_cbranch_scc1 {L}
    s_and_b32 s59, s2, 3
    s_lshl_b32 s59, s59, 12
    s_add_u32 s59, s59, {CNTB(beta)}
    v_lshlrev_b32 v255, 8, {VN}
    """)
    if beta in (2,3,4,5):
        bar_target(a, beta); target="v253"
    if beta in (2,4) and 'ppipe' in EXP: poll_pipe(a, R_WS, "s59", "v255", target, beta+1, 8)
    else: poll(a, R_WS, "s59", "v255", target, beta+1)
    a.label(L)
    if bar: a("s_barrier")

def larrive(a, soff):
    a(f"""
    v_mov_b32 v255, 0
    v_mov_b32 v254, 1
    s_mov_b64 exec, 1
    buffer_atomic_add v254, v255, {R_WS}, {soff} offen sc1
    s_mov_b64 exec, -1
    """)

FT = 0
AL = 51200
RS = 102400
VARL = 147456
def gen_ftile(a, selector=False, mid=None):
    Lp=a.newlabel("ft")
    a(f"s_mov_b32 s40, {SW}")
    if not selector:
        a(f"""
        v_and_b32 v8, 1, {VN}
        v_cvt_f32_u32 v8, v8
        v_mul_f32 v8, 0.25, v8
        v_lshrrev_b32 v9, 1, {VN}
        s_mul_i32 s44, {ST}, 40
        s_add_u32 s44, s44, 1
        v_add_u32 v9, s44, v9
        v_lshlrev_b32 v10, 3, {VG}
        s_mov_b32 s45, {f2u(1.0/640)}
        v_mov_b32 v28, 0.125
        v_sub_f32 v29, 0.5, v8
        v_sub_f32 v29, v29, v8
        """)
    else:
        a(f"""
        v_lshrrev_b32 v9, 2, {VN}
        v_mul_u32_u24 v9, 20, v9
        v_and_b32 v8, 3, {VN}
        v_add_u32 v9, v9, v8
        s_and_b32 s44, {ST}, 3
        s_mul_i32 s44, s44, 80
        v_add_u32 v9, s44, v9
        v_lshlrev_b32 v10, 3, {VG}
        v_sub_u32 v9, v9, v10
        v_mov_b32 v28, 0x3f80
        v_mov_b32 v29, 0x3f800000
        """)
    a.label(Lp)
    a(f"""
    s_mul_i32 s41, s40, 52
    s_lshr_b32 s41, s41, 8
    s_mul_i32 s42, s41, 5
    s_sub_u32 s42, s40, s42
    s_lshl_b32 s43, s40, 10
    v_add_u32 v30, s43, {VL16}
    """)
    if not selector:
        a(f"""
        s_lshl_b32 s42, s42, 3
        s_lshl_b32 s41, s41, 5
        v_add_u32 v11, s42, v9
        v_add_u32 v12, s41, v10
        v_cmp_eq_u32 vcc, 0x140, v11
        v_cvt_f32_u32 v13, v11
        v_cvt_f32_u32 v12, v12
        v_mul_f32 v13, s45, v13
        v_cndmask_b32 v14, v8, v28, vcc
        v_cndmask_b32 v13, v13, v29, vcc
        v_fma_f32 v16, v12, v13, v14
        v_cos_f32 v15, v13
        v_add_f32 v17, v16, v13
        v_cos_f32 v16, v16
        v_cos_f32 v17, v17
        v_add_f32 v15, v15, v15
        """)
        for i in range(2,8): a(f"v_fma_f32 v{16+i}, v15, v{15+i}, -v{14+i}")
        for i in range(4): a(f"v_cvt_pk_bf16_f32 v{24+i}, v{16+2*i}, v{17+2*i}")
    else:
        a(f"""
        s_lshl_b32 s42, s42, 2
        s_lshl_b32 s41, s41, 5
        s_sub_u32 s42, s42, s41
        v_add_u32 v11, s42, v9
        """)
        for q in range(4):
            a(f"""
            v_cmp_eq_u32 vcc, {2*q}, v11
            v_cndmask_b32 v{24+q}, 0, v28, vcc
            v_cmp_eq_u32 vcc, {2*q+1}, v11
            v_cndmask_b32 v{24+q}, v{24+q}, v29, vcc
            """)
    a(f"""
    ds_write_b128 v30, v[24:27] offset:{FT}
    s_add_u32 s40, s40, 8
    s_cmp_lt_u32 s40, 50
    s_cbranch_scc1 {Lp}
    """)

def l2_touch(a):
    L1=a.newlabel("tc1"); L2=a.newlabel("tc2"); L3=a.newlabel("tc3"); L4=a.newlabel("tc4")
    a(f"""
    s_cmp_ge_u32 {SW}, 4
    s_cbranch_scc1 {L3}
    v_lshlrev_b32 v8, 7, {VL}
    s_cmp_eq_u32 {SW}, 3
    s_cbranch_scc1 {L4}
    s_cmp_eq_u32 {SW}, {99 if 'wtouch' not in EXP else 2}
    s_cbranch_scc0 {L2}
    s_mul_i32 s40, s2, {41*128}
    v_min_u32 v9, {40*128}, v8
    buffer_load_dword v254, v9, {R_WR}, s40 offen
    buffer_load_dword v254, v9, {R_WI}, s40 offen
    s_branch {L2}
    {L4}:
    s_mul_i32 s40, s2, 3200
    v_min_u32 v9, {24*128}, v8
    buffer_load_dword v254, v9, {R_WO}, s40 offen
    s_branch {L2}
    {L3}:
    s_and_b32 s40, {SW}, 1
    s_lshl_b32 s40, s40, 6
    v_add_u32 v8, s40, {VL}
    v_min_u32 v8, 79, v8
    s_cmp_ge_u32 {SW}, 6
    s_cbranch_scc1 {L1}
    v_mul_u32_u24 v9, 205, v8
    v_lshrrev_b32 v9, 11, v9
    v_mul_u32_u24 v10, 10, v9
    v_sub_u32 v10, v8, v10            ; line
    v_and_b32 v11, 3, v9              ; s2&3
    v_lshrrev_b32 v9, 2, v9
    s_lshl_b32 s40, {SA}, 4
    s_lshl_b32 s41, {ST}, 1
    s_add_u32 s40, s40, s41
    v_add_u32 v9, s40, v9             ; s1
    v_lshl_add_u32 v9, v9, 5, v11
    s_lshl_b32 s40, {SX}, 2
    v_add_u32 v9, s40, v9
    v_mul_u32_u24 v9, 1280, v9
    v_lshl_add_u32 v9, v10, 7, v9
    buffer_load_dword v254, v9, {R_X}, 0 offen
    s_branch {L2}
    {L1}:
    s_mul_i32 s40, {ST}, 80
    v_add_u32 v8, s40, v8
    v_mul_u32_u24 v8, 3840, v8
    s_lshl_b32 s40, {SI}, 7
    s_cmp_ge_u32 {SI}, 30
    s_cselect_b32 s40, {OOB}, s40
    buffer_load_dword v254, v8, {R_WQKV}, s40 offen
    {L2}:
    """)

def touch_x(a):
    L2=a.newlabel("tx")
    a(f"""
    s_cmp_ge_u32 {SW}, 2
    s_cbranch_scc1 {L2}
    s_lshl_b32 s40, {SW}, 6
    v_add_u32 v8, s40, {VL}
    v_min_u32 v8, 79, v8
    v_cmp_lt_u32 vcc, 39, v8
    v_lshlrev_b32 v9, 7, v8
    v_add_u32 v10, {40960-5120}, v9
    v_cndmask_b32 v9, v9, v10, vcc
    s_lshl_b32 s40, {SA}, 4
    s_lshl_b32 s41, {ST}, 1
    s_add_u32 s40, s40, s41
    s_lshl_b32 s40, s40, 5
    s_lshl_b32 s41, {SX}, 2
    s_add_u32 s40, s40, s41
    s_mul_i32 s40, s40, 1280
    buffer_load_dword v254, v9, {R_X}, s40 offen
    {L2}:
    """)

def touch_w(a, w0):
    L2=a.newlabel("tw"); L4=a.newlabel("tw4")
    a(f"""
    v_lshlrev_b32 v8, 7, {VL}
    s_cmp_eq_u32 {SW}, {w0+1}
    s_cbranch_scc1 {L4}
    s_cmp_eq_u32 {SW}, {w0}
    s_cbranch_scc0 {L2}
    s_mul_i32 s40, s2, {41*128}
    v_min_u32 v9, {40*128}, v8
    buffer_load_dword v254, v9, {R_WR}, s40 offen
    buffer_load_dword v254, v9, {R_WI}, s40 offen
    s_branch {L2}
    {L4}:
    s_mul_i32 s40, s2, 3200
    v_min_u32 v9, {24*128}, v8
    buffer_load_dword v254, v9, {R_WO}, s40 offen
    {L2}:
    """)

def touch_q(a, w0):
    L2=a.newlabel("tq")
    a(f"""
    s_sub_u32 s40, {SW}, {w0}
    s_cmp_ge_u32 s40, 2
    s_cbranch_scc1 {L2}
    s_lshl_b32 s40, s40, 6
    v_add_u32 v8, s40, {VL}
    v_min_u32 v8, 79, v8
    v_lshrrev_b32 v9, 2, v8
    v_mul_u32_u24 v9, 3840, v9
    v_and_b32 v8, 3, v8
    v_lshl_add_u32 v9, v8, 7, v9
    s_lshr_b32 s40, s2, 3
    s_mul_i32 s40, s40, {20*3840}
    s_lshl_b32 s41, {SX}, 9
    s_add_u32 s40, s40, s41
    buffer_load_dword v254, v9, {R_WQKV}, s40 offen
    {L2}:
    """)

class LQ:
    def __init__(s,a): s.a=a; s.q=[]
    def op(s,text,tag): s.a(text); s.q.append(tag)
    def need(s,*tags):
        idx=[i for i,t in enumerate(s.q) if t in tags]
        if not idx: return
        n=len(s.q)-1-max(idx)
        s.a(f"s_waitcnt lgkmcnt({min(n,15)})")
        s.q=s.q[len(s.q)-min(n,15):] if n else []

AC = 24
SB = 44
PF = 84
WQR = 124
def g640_core(a, swapped, vbase, wait_priv=None):
    def rd(j):
        for nt in range(5):
            a(f"ds_read_b128 {v(SB+20*(j&1)+4*nt,4)}, {vbase} offset:{(j*5+nt)*1024}")
    if 'gprio' in EXP:
        L=a.newlabel("gp"); a(f"s_cmp_lt_u32 {SW}, 4\n s_cbranch_scc1 {L}\n s_setprio 1\n {L}:")
    rd(0)
    for j in range(10):
        if j==5 and 'gprio' in EXP: a("s_setprio 0")
        if j<9: rd(j+1)
        if wait_priv: wait_priv(j)
        a(f"s_waitcnt lgkmcnt({5 if j<9 else 0})")
        for nt in range(5):
            p=v(PF+4*j,4); s=v(SB+20*(j&1)+4*nt,4); d=v(AC+4*nt,4)
            c = d if j else "0"
            if swapped: a(f"{M16} {d}, {s}, {p}, {c}")
            else:       a(f"{M16} {d}, {p}, {s}, {c}")

def xe_prep(a, fraglin, s_res=None, sign=None):
    a(f"""
    v_lshrrev_b32 v10, 3, {VL}
    v_and_b32 v11, 7, {VL}
    s_lshl_b32 s42, s60, 3
    """)
    if sign: a(f"v_and_b32 {sign}, 2, v10\n v_cvt_f32_u32 {sign}, {sign}\n v_subrev_f32 {sign}, 1.0, {sign}")
    if fraglin:
        a(f"""
        v_lshrrev_b32 v9, 1, v11
        v_lshlrev_b32 v9, 8, v9
        v_lshl_add_u32 v9, v10, 4, v9
        v_and_b32 v8, 1, v11
        v_lshl_add_u32 v9, v8, 3, v9
        s_mul_i32 s43, s61, 5120
        s_lshl_b32 s44, s63, 10
        s_add_u32 s43, s43, s44
        s_lshl_b32 s44, s62, 5
        s_add_u32 s43, s43, s44
        v_add_u32 v9, s43, v9
        """)
    else:
        a(f"""
        s_mul_i32 s43, s61, 40960
        s_lshl_b32 s44, s60, 9
        s_add_u32 s43, s43, s44
        v_lshlrev_b32 v9, 3, {VL}
        v_add_u32 v9, s43, v9
        """)
    a(f"""
    v_xor_b32 v11, v11, v10
    v_lshlrev_b32 v11, 4, v11
    v_lshl_add_u32 v10, v10, 7, v11
    s_mul_i32 s43, s61, 10240
    s_lshl_b32 s44, s60, 10
    s_add_u32 s43, s43, s44
    s_add_u32 s43, s43, {RS}
    v_add_u32 v10, s43, v10
    v_lshlrev_b32 v8, 1, {VG}
    s_lshr_b32 s44, s62, 2
    v_add_u32 v8, s44, v8
    v_and_b32 v11, 7, {VN}
    v_xor_b32 v8, v8, v11
    v_lshlrev_b32 v8, 4, v8
    v_lshl_add_u32 v8, {VN}, 7, v8
    s_mul_i32 s43, s61, 20480
    s_mul_i32 s44, s63, 10240
    s_add_u32 s43, s43, s44
    s_add_u32 s43, s43, {RS}
    v_add_u32 v8, s43, v8
    """)
    if s_res:
        a(f"""
        s_add_u32 s46, {s_res}, 4096
        s_cmp_ge_u32 s60, 2
        s_cselect_b32 s46, {OOB}, s46
        buffer_load_dwordx2 v[12:13], v9, {R_WS}, {s_res} offen sc1
        buffer_load_dwordx2 v[14:15], v9, {R_WS}, {s_res} offen offset:2048 sc1
        buffer_load_dwordx2 v[16:17], v9, {R_WS}, s46 offen sc1
        """)

def xtype_epilogue(a, s_dst, res=False, s_var=None, vm0=None, vm1=None, pre_bar=None, AC=AC, T=SB, extra_write=None, extra_work=None, post_bar=None):
    for nt in range(5): a(f"ds_write_b128 v8, {v(AC+4*nt,4)} offset:{nt*2048}")
    if s_var:
        a(f"""
        """)
    if extra_write: extra_write()
    a(f"""
    s_add_u32 s46, {s_dst}, 4096
    s_cmp_ge_u32 s60, 2
    s_cselect_b32 s46, {OOB}, s46
    s_cselect_b32 s47, 0, 1.0
    """)
    if res:
        a("s_waitcnt vmcnt(0)")
        for q in range(6):
            a(f"v_lshlrev_b32 v{T+24+2*q}, 16, v{12+q}")
            a(f"v_and_b32 v{T+25+2*q}, 0xffff0000, v{12+q}")
    if s_var:
        a(f"""
        v_mov_b32 v18, s47
        s_cmp_eq_u32 {ST}, 7
        s_cselect_b32 s47, 1, 99
        s_cmp_eq_u32 s60, s47
        s_cselect_b32 s47, 7, 99
        v_lshrrev_b32 v19, 3, {VL}
        v_cmp_ne_u32 vcc, s47, v19
        v_cndmask_b32 v18, 0, v18, vcc
        v_and_b32 v20, 7, {VL}
        v_lshlrev_b32 v20, 4, v20
        v_lshl_add_u32 v20, {VG}, 2, v20
        s_lshl_b32 s47, s61, 7
        s_lshl_b32 s45, s60, 8
        s_add_u32 s47, s47, s45
        s_add_u32 s47, s47, {VARL}
        v_add_u32 v20, s47, v20
        """)
    D = ("xe" in EXP and res)
    if D: pst(a,1)
    a("s_waitcnt lgkmcnt(0)")
    if D: pst(a,2)
    a("s_barrier")
    if D: pst(a,3)
    if post_bar: post_bar()
    for k in range(3):
        a(f"ds_read_b128 {v(T+4*k,4)}, v10 offset:{4096*k}")
        a(f"ds_read_b128 {v(T+12+4*k,4)}, v10 offset:{20480+4096*k}")
    for k in range(3):
        a(f"s_waitcnt lgkmcnt({4-2*k})")
        for i in range(4*k,4*k+4):
            if vm0: a(f"v_mul_f32 v{T+i}, {vm0}, v{T+i}")
            if vm1: a(f"v_fma_f32 v{T+i}, {vm1}, v{T+12+i}, v{T+i}")
            else: a(f"v_add_f32 v{T+i}, v{T+i}, v{T+12+i}")
            if res: a(f"v_add_f32 v{T+i}, v{T+i}, v{T+24+i}")
        a(f"v_cvt_pk_bf16_f32 v{12+2*k}, v{T+4*k}, v{T+4*k+1}")
        a(f"v_cvt_pk_bf16_f32 v{13+2*k}, v{T+4*k+2}, v{T+4*k+3}")
        if s_var: a(f"v_max_u32 v{12+2*k}, 1, v{12+2*k}\n v_max_u32 v{13+2*k}, 1, v{13+2*k}")
        if k<2: a(f"buffer_store_dwordx2 {v(12+2*k,2)}, v9, {R_WS}, {s_dst} offen offset:{2048*k} sc1")
        else: a(f"buffer_store_dwordx2 {v(12+2*k,2)}, v9, {R_WS}, s46 offen sc1")
    if D: pst(a,4)
    if s_var:
        a("v_cmp_lt_f32 vcc, 0, v18")
        for i in range(4): a(f"v_mul_f32 v{T+i}, v{T+i}, v{T+i}")
        for i in range(4): a(f"v_cndmask_b32{'_e64' if 'valu' in EXP else ''} v{T+8+i}, 0, v{T+8+i}, vcc")
        for i in range(4): a(f"v_fmac_f32 v{T+i}, v{T+4+i}, v{T+4+i}")
        for i in range(4): a(f"v_fmac_f32 v{T+i}, v{T+8+i}, v{T+8+i}")
        a(f"""
        v_permlane32_swap_b32 v{T}, v{T+2}
        v_permlane32_swap_b32 v{T+1}, v{T+3}
        v_add_f32 v{T}, v{T}, v{T+2}
        v_add_f32 v{T+1}, v{T+1}, v{T+3}
        v_permlane16_swap_b32 v{T}, v{T+1}
        v_add_f32 v{T}, v{T}, v{T+1}
        v_add_f32_dpp v{T}, v{T}, v{T} row_ror:8 row_mask:0xf bank_mask:0xf
        ds_write_b32 v20, v{T}
        """)
        Ls=a.newlabel("xv")
        if pre_bar: pre_bar()
        a(f"""
        v_lshlrev_b32 v18, 3, {VL}
        v_add_u32 v18, {VARL}, v18
        v_lshlrev_b32 v11, 2, {VL}
        s_lshl_b32 s47, {ST}, 12
        s_lshl_b32 s46, {SI}, 7
        s_add_u32 s47, s47, s46
        s_add_u32 s47, s47, {s_var}
        s_waitcnt lgkmcnt(0)
        s_barrier
        s_cmp_lg_u32 {SW}, 6
        s_cbranch_scc1 {Ls}
        ds_read_b64 {v(T,2)}, v18
        ds_read_b64 {v(T+2,2)}, v18 offset:256
        ds_read_b64 {v(T+4,2)}, v18 offset:512
        ds_read_b64 {v(T+6,2)}, v18 offset:768
        s_waitcnt lgkmcnt(0)
        v_add_f32 v{T}, v{T}, v{T+2}
        v_add_f32 v{T+1}, v{T+1}, v{T+3}
        v_add_f32 v{T+4}, v{T+4}, v{T+6}
        v_add_f32 v{T+5}, v{T+5}, v{T+7}
        v_add_f32 v{T}, v{T}, v{T+4}
        v_add_f32 v{T+1}, v{T+1}, v{T+5}
        v_cvt_pk_bf16_f32 v10, v{T}, v{T+1}
        v_max_u32 v10, 1, v10
        s_mov_b32 exec_hi, 0
        buffer_store_dword v10, v11, {R_WS}, s47 offen sc1
        s_mov_b32 exec_hi, -1
        {Ls}:
        """)
    if extra_work: extra_work()

def mu_pos(a, dst, s_a, tmp, src=VN):
    a(f"""
    v_lshrrev_b32 {tmp}, 2, {src}
    v_and_b32 {dst}, 3, {src}
    v_lshl_add_u32 {dst}, {tmp}, 3, {dst}
    v_add_u32 {dst}, {s_a}, {dst}
    """)

def vsign(a, dst):
    a(f"""
    v_and_b32 {dst}, 2, {VN}
    v_cvt_f32_u32 {dst}, {dst}
    v_subrev_f32 {dst}, 1.0, {dst}
    """)

def rows_dma(a, srd, rowfn, defer=False):
    a(f"""
    v_lshrrev_b32 v8, 3, {VL}
    v_add_u32 v9, 8, v8
    """)
    rowfn("v6","v8"); rowfn("v7","v9")
    a(f"""
    s_movk_i32 s41, 1280
    v_mul_lo_u32 v6, v6, s41
    v_mul_lo_u32 v7, v7, s41
    v_and_b32 v9, 6, v8
    v_and_b32 v10, 7, {VL}
    v_xor_b32 v9, v9, v10
    v_lshl_add_u32 v6, v9, 4, v6
    v_lshl_add_u32 v7, v9, 4, v7
    s_mul_i32 s52, s61, 640
    s_mul_i32 s53, {SW}, 10240
    s_add_u32 s53, s53, {AL}
    """)
    def ch(c):
        for hf in range(2):
            a(f"s_add_u32 m0, s53, {2048*c+1024*hf-128*c}")
            a(f"buffer_load_dwordx4 v{6+hf}, {srd}, s52 offen offset:{128*c} lds")
    if defer: return ch
    for c in range(5): ch(c)

def rows_read(a, later_vm):
    a(f"""
    v_and_b32 v6, 6, {VN}
    v_xor_b32 v6, v6, {VG}
    v_lshlrev_b32 v6, 4, v6
    v_lshl_add_u32 v6, {VN}, 7, v6
    s_mul_i32 s41, {SW}, 10240
    s_add_u32 s41, s41, {AL}
    v_add_u32 v6, s41, v6
    v_xor_b32 v7, 64, v6
    s_waitcnt vmcnt({later_vm})
    """)
    for j in range(10):
        a(f"ds_read_b128 {v(PF+4*j,4)}, v{6+(j&1)} offset:{2048*(j>>1)}")

def tok_row(a):
    def fn(dst, m):
        a(f"""
        s_lshl_b32 s42, {SA}, 1
        s_add_u32 s42, s42, s63
        s_lshl_b32 s42, s42, 3
        s_add_u32 s42, s42, s62
        s_lshl_b32 s42, s42, 5
        s_lshl_b32 s43, {SX}, 2
        s_add_u32 s42, s42, s43
        v_and_b32 {dst}, 3, {m}
        v_lshlrev_b32 {dst}, 5, {dst}
        v_lshrrev_b32 v11, 2, {m}
        v_add3_u32 {dst}, {dst}, v11, s42
        """)
    return fn

def xtile_base(a, dst):
    a(f"""
    s_mul_i32 {dst}, {SI}, 81920
    s_mul_i32 s40, {ST}, 5120
    s_add_u32 {dst}, {dst}, s40
    """)

def wo_job(a, selector):
    def fn(dst, m):
        a(f"""
        s_lshl_b32 s40, s66, 1
        s_add_u32 s40, s40, s63
        s_lshl_b32 s40, s40, 5
        s_add_u32 s40, s40, s62
        """)
        mu_pos(a, dst, "s40", "v11", m)
    rows_dma(a, R_WO, fn)
    if selector: gen_ftile(a, True)
    xe_prep(a, True, sign="v22")
    rows_read(a, 0)
    a("s_waitcnt lgkmcnt(0)\n s_barrier")
    g640_core(a, False, VL16)
    a(f"""
    s_mul_i32 s64, {ST}, 102400
    s_mul_i32 s65, s66, 10240
    s_add_u32 s64, s64, s65
    s_add_u32 s64, s64, {WOR if selector else WOF}
    """)
    if selector:
        a(f"""
        s_cmp_ge_u32 {ST}, 4
        s_cselect_b32 s40, 0, 1.0
        s_cselect_b32 s41, 1.0, 0
        v_mov_b32 v22, s40
        v_mov_b32 v23, s41
        """)
        xtype_epilogue(a, "s64", vm0="v22", vm1="v23")
    else:
        xtype_epilogue(a, "s64", vm1="v22")

WQL = AL
def wq_loads(a, defer=False):
    a(f"""
    v_lshrrev_b32 v22, 3, {VL}
    v_and_b32 v23, 2, v22
    v_and_b32 v21, 7, {VL}
    v_xor_b32 v23, v23, v21
    s_movk_i32 s41, 3840
    v_mul_lo_u32 v22, v22, s41
    v_lshl_add_u32 v22, v23, 4, v22
    v_xor_b32 v23, 64, v22
    s_mul_i32 s54, {SW}, {80*3840}
    s_lshl_b32 s41, {SI}, 7
    s_add_u32 s54, s54, s41
    s_cmp_ge_u32 {SI}, 30
    s_cselect_b32 s54, {OOB}, s54
    """)
    a(f"s_mul_i32 s55, {SW}, 10240\n s_add_u32 s55, s55, {WQL}")
    def ld(j):
        if 'wqdma' in EXP:
            L1=a.newlabel("wa"); L2=a.newlabel("wb")
            a(f"""
            s_cmp_ge_u32 {SW}, 5
            s_cbranch_scc1 {L1}
            s_add_u32 m0, s55, {1024*j}
            s_nop 0
            buffer_load_dwordx4 v{22+(j&1)}, {R_WQKV}, s54 offen lds
            s_branch {L2}
            {L1}:
            buffer_load_dwordx4 {v(WQR+4*j,4)}, v{22+(j&1)}, {R_WQKV}, s54 offen
            {L2}:
            """)
        else: a(f"buffer_load_dwordx4 {v(WQR+4*j,4)}, v{22+(j&1)}, {R_WQKV}, s54 offen")
        if j<9: a(f"s_add_u32 s54, s54, {8*3840}")
    return ld

def wq_stage(a):
    a(f"""
    s_mul_i32 s41, {SW}, 10240
    s_add_u32 s41, s41, {WQL}
    v_add_u32 v6, s41, {VL16}
    """)
    for j in range(10): a(f"ds_write_b128 v6, {v(WQR+4*j,4)} offset:{1024*j}")

def wq_dma(a):
    a(f"""
    v_lshrrev_b32 v22, 3, {VL}
    v_and_b32 v23, 2, v22
    v_and_b32 v21, 7, {VL}
    v_xor_b32 v23, v23, v21
    s_movk_i32 s41, 3840
    v_mul_lo_u32 v22, v22, s41
    v_lshl_add_u32 v22, v23, 4, v22
    v_xor_b32 v23, 64, v22
    s_mul_i32 s54, {SW}, {80*3840}
    s_lshl_b32 s41, {SI}, 7
    s_add_u32 s54, s54, s41
    s_cmp_ge_u32 {SI}, 30
    s_cselect_b32 s54, {OOB}, s54
    s_mul_i32 s55, {SW}, 10240
    s_add_u32 s55, s55, {WQL}
    """)
    for j in range(10):
        a(f"s_add_u32 m0, s55, {1024*j}")
        a(f"buffer_load_dwordx4 v{22+(j&1)}, {R_WQKV}, s54 offen lds")
        if j<9: a(f"s_add_u32 s54, s54, {8*3840}")

def x_regloads(a):
    a(f"v_lshrrev_b32 v8, 3, {VL}\n v_add_u32 v9, 8, v8")
    fn=tok_row(a); fn("v22","v8"); fn("v23","v9")
    a(f"""
    s_movk_i32 s41, 1280
    v_mul_lo_u32 v22, v22, s41
    v_mul_lo_u32 v23, v23, s41
    v_and_b32 v9, 6, v8
    v_and_b32 v10, 7, {VL}
    v_xor_b32 v9, v9, v10
    v_lshl_add_u32 v22, v9, 4, v22
    v_lshl_add_u32 v23, v9, 4, v23
    s_mul_i32 s52, s61, 640
    """)
    return lambda j: a(f"buffer_load_dwordx4 {v(WQR+4*j,4)}, v{22+(j&1)}, {R_X}, s52 offen offset:{128*(j>>1)}")

ACQ = AC
RS2 = 133120
def q_core(a):
    a(f"""
    v_lshrrev_b32 v7, 2, {VN}
    v_lshl_add_u32 v6, {VG}, 3, v7
    v_lshlrev_b32 v6, 7, v6
    v_lshrrev_b32 v7, 1, v7
    v_and_b32 v11, 1, {VG}
    v_lshl_add_u32 v7, v11, 1, v7
    v_xor_b32 v7, s60, v7
    v_lshl_add_u32 v6, v7, 5, v6
    v_and_b32 v7, 3, {VN}
    v_lshl_add_u32 v7, v7, 3, v6
    s_mul_i32 s40, s61, 40960
    s_add_u32 s40, s40, {WQL}
    v_add_u32 v7, s40, v7
    """)
    L=a.newlabel("bz")
    a(f"s_cmp_lg_u32 {SW}, 6\n s_cbranch_scc1 {L}")
    init_wait(a)
    a.label(L)
    BM='b0mid' in EXP
    if BM: a("s_waitcnt lgkmcnt(0)\n s_barrier")
    else:
        drain(a)
        arrive(a, 0)
    for j in range(10):
        a(f"ds_read_b64_tr_b16 {v(PF+4*j,2)}, v7 offset:{4096*j}")
        a(f"ds_read_b64_tr_b16 {v(PF+4*j+2,2)}, v7 offset:{4096*j+512}")
        if j%4==3: a("s_waitcnt lgkmcnt(4)")
    def hk(j):
        if j==1:
            a("s_waitcnt vmcnt(0)\n s_barrier"); arrive(a, 0); zfill(a, KVP, (ZCEND-KVP)//1024, 1, 12)
    if not BM: zfill(a, KVP, (ZCEND-KVP)//1024, 1, 12)
    g640_core(a, True, VL16, wait_priv=hk if BM else None)

def wq_write(a):
    L1=a.newlabel("wq1")
    a(f"""
    s_mul_i32 s40, s60, 5120
    s_add_u32 s40, s40, {RS2}
    v_add_u32 v7, s40, {VL16}
    s_cmp_eq_u32 s61, 0
    s_cbranch_scc1 {L1}
    """)
    for nt in range(5): a(f"ds_write_b128 v7, {v(ACQ+4*nt,4)} offset:{nt*1024}")
    a.label(L1)

def wq_fin(a):
    L2=a.newlabel("wq2"); LZ=a.newlabel("wqz")
    a(f"""
    s_cmp_ge_u32 {SI}, 30
    s_cbranch_scc1 {L2}
    s_cmp_lg_u32 s61, 0
    s_cbranch_scc1 {L2}
    """)
    for nt in range(5): a(f"ds_read_b128 {v(SB+4*nt,4)}, v7 offset:{nt*1024}")
    a(f"""
    s_mul_i32 s41, {SI}, 205
    s_lshr_b32 s41, s41, 11
    s_mul_i32 s42, s41, 10
    s_sub_u32 s42, {SI}, s42
    s_lshl_b32 s42, s42, 6
    s_lshl_b32 s43, s60, 4
    s_add_u32 s42, s42, s43
    v_add_u32 v10, s42, {VN}
    v_mul_u32_u24 v11, 3277, v10
    v_lshrrev_b32 v11, 16, v11
    v_mul_u32_u24 v12, 20, v11
    v_sub_u32 v10, v10, v12
    s_cmp_eq_u32 s41, 0
    s_cselect_b32 s42, 48, 0
    s_cselect_b32 s43, 24, 16
    s_cmp_eq_u32 s41, 2
    s_cselect_b32 s42, 16, s42
    s_cselect_b32 s43, 20, s43
    v_add_u32 v12, s42, v10
    v_add_u32 v13, s43, v10
    v_cmp_gt_u32 vcc, 16, v10
    v_cndmask_b32 v10, v13, v12, vcc
    v_mul_u32_u24 v11, 80, v11
    v_add_u32 v10, v10, v11
    v_lshrrev_b32 v12, 1, {VG}
    v_mul_u32_u24 v12, 2560, v12
    v_add_u32 v10, v10, v12
    v_lshlrev_b32 v10, 4, v10
    v_and_b32 v12, 1, {VG}
    v_lshl_add_u32 v10, v12, 3, v10
    s_mul_i32 s40, {ST}, {5*81920}
    s_add_u32 s40, s40, {WQF}
    s_mov_b32 s42, {f2u(2.0/640)}
    v_mov_b32 v12, s42
    s_cmp_eq_u32 {ST}, 7
    s_cselect_b32 s43, 3, 99
    v_cmp_ne_u32 vcc, s43, {VG}
    v_cndmask_b32 v12, 0, v12, vcc
    s_mul_i32 s44, {ST}, 5
    s_waitcnt lgkmcnt(0)
    """)
    for nt in range(5):
        if nt: a("s_add_u32 s40, s40, 81920")
        for i in range(4):
            op = "v_sub_f32" if i<2 else "v_add_f32"
            a(f"{op} v{16+i}, v{AC+4*nt+i}, v{SB+4*nt+i}")
            a(f"v_mul_f32 v{16+i}, {'v12' if (nt==4 and i==3) else 's42'}, v{16+i}")
        a(f"v_cvt_pk_bf16_f32 v{20+2*(nt&1)}, v16, v17")
        a(f"v_cvt_pk_bf16_f32 v{21+2*(nt&1)}, v18, v19")
        a(f"buffer_store_dwordx2 {v(20+2*(nt&1),2)}, v10, {R_WS}, s40 offen sc1")
    a.label(L2)

def gcol_job(a):
    Lp=a.newlabel("gc")
    a(f"""
    s_sub_u32 s42, s66, 10
    s_lshl_b32 s42, s42, 3
    s_add_u32 s42, s42, {ST}
    s_lshl_b32 s42, s42, 3
    s_add_u32 s42, s42, {SW}
    v_lshl_add_u32 v10, {VG}, 2, 1
    v_mul_u32_u24 v9, 40960, {VG}
    v_mov_b32 v29, 0x3f353f35
    {Lp}:
    s_mul_i32 s40, s42, 1639
    s_lshr_b32 s40, s40, 16           ; kstep
    s_mul_i32 s41, s40, 40
    s_sub_u32 s41, s42, s41           ; dtile
    s_lshl_b32 s43, s41, 4
    v_add_u32 v8, s43, {VN}
    v_mul_u32_u24 v13, 3277, v8
    v_lshrrev_b32 v13, 16, v13
    v_mul_u32_u24 v14, 20, v13
    v_sub_u32 v14, v8, v14
    v_add_u32 v15, 64, v14
    v_add_u32 v24, 28, v14
    v_cmp_gt_u32 vcc, 16, v14
    v_cndmask_b32 v14, v24, v15, vcc
    v_mul_u32_u24 v13, 80, v13
    v_add_u32 v14, v14, v13
    v_lshl_add_u32 v14, v14, 4, v9
    v_cvt_f32_u32 v8, v8
    v_mul_f32 v8, {f2u(1/640)}, v8
    s_lshl_b32 s43, s40, 4
    v_add_u32 v11, s43, v10
    v_cvt_f32_u32 v12, v11
    v_cmp_eq_u32 vcc, 0x13d, v11
    s_mul_i32 s43, s40, {4*40960}
    s_add_u32 s43, s43, {WQF}
    v_mul_f32 v16, v12, v8
    v_fract_f32 v16, v16
    v_add_f32 v17, v16, v8
    v_fma_f32 v18, 2.0, v8, v16
    v_add_f32 v19, v18, v8
    """)
    for i in range(4): a(f"v_sin_f32 v{20+i}, -v{16+i}")
    for i in range(4): a(f"v_cos_f32 v{16+i}, v{16+i}")
    for i in range(4): a(f"v_cvt_pk_bf16_f32 v{32+i}, v{16+i}, v{20+i}")
    a(f"""
    v_and_b32 v28, 0x8000, v35
    v_or_b32 v28, v28, v29
    v_cndmask_b32 v35, v35, v28, vcc
    buffer_store_dwordx4 v[32:35], v14, {R_WS}, s43 offen sc1
    s_add_u32 s42, s42, 128
    s_cmp_lt_u32 s42, 800
    s_cbranch_scc1 {Lp}
    """)

WTR = 164
WTX = 84
def wt_loads(a):
    L=a.newlabel("wtl")
    a(f"""
    """)
    if 'wtside' in EXP:
        a(f"""
        s_cmp_lt_u32 s72, 20
        s_cbranch_scc1 {L}
        s_sub_u32 s79, s72, 20
        s_lshl_b32 s79, s79, 3
        s_add_u32 s79, s79, {ST}
        s_lshl_b32 s79, s79, 3
        s_add_u32 s79, s79, {SW}
        """)
    else:
        a(f"""
        s_cmp_ge_u32 {SW}, 3
        s_cbranch_scc1 {L}
        s_mul_i32 s79, s2, 3
        s_add_u32 s79, s79, {SW}
        """)
    a(f"""
    s_mul_i32 s69, s79, 5462
    s_lshr_b32 s69, s69, 16           ; j1 = task/12
    s_mul_i32 s40, s69, 12
    s_sub_u32 s70, s79, s40
    v_bfe_u32 v6, {VL}, 3, 1
    v_lshrrev_b32 v7, 4, {VL}
    v_lshl_add_u32 v5, v6, 2, v7
    s_mov_b32 s41, {64*642}
    v_mul_lo_u32 v6, v5, s41
    v_and_b32 v7, 7, {VL}
    v_lshl_add_u32 v6, v7, 4, v6
    s_mul_i32 s40, s69, 642
    s_andn2_b32 s40, s40, 127
    s_lshr_b32 s41, s70, 1
    s_lshl_b32 s41, s41, 7
    s_add_u32 s40, s40, s41
    s_and_b32 s41, s70, 1
    s_mul_i32 s41, s41, {16*64*642}
    s_add_u32 s40, s40, s41
    s_add_u32 s41, s40, {8*64*642}
    buffer_load_dwordx4 {v(WTX,4)}, v6, {R_WR}, s40 offen
    buffer_load_dwordx4 {v(WTX+4,4)}, v6, {R_WI}, s40 offen
    buffer_load_dwordx4 {v(WTX+8,4)}, v6, {R_WR}, s41 offen
    buffer_load_dwordx4 {v(WTX+12,4)}, v6, {R_WI}, s41 offen
    {L}:
    """)

def wor_loads(a):
    L=a.newlabel("wol")
    a(f"""
    s_sub_u32 s67, s72, 20
    s_lshl_b32 s67, s67, 3
    s_add_u32 s67, s67, {ST}
    s_lshl_b32 s67, s67, 3
    s_add_u32 s67, s67, {SW}
    v_and_b32 v7, 7, {VL}
    ; WoR: task = (R16 = task/10 (16 rows), lam = task%10): rows hd = 16R + 8*(rho&1) + 4*ld + (rho>>1)
    s_mul_i32 s42, s67, 6554
    s_lshr_b32 s42, s42, 16
    s_mul_i32 s43, s42, 10
    s_sub_u32 s43, s67, s43
    v_bfe_u32 v6, {VL}, 3, 1
    v_lshrrev_b32 v8, 4, {VL}
    v_lshl_add_u32 v6, v6, 3, v8
    v_mul_u32_u24 v6, 1280, v6
    v_lshl_add_u32 v6, v7, 4, v6
    s_mul_i32 s40, s42, {16*1280}
    s_lshl_b32 s41, s43, 7
    s_add_u32 s40, s40, s41
    s_add_u32 s41, s40, {4*1280}
    buffer_load_dwordx4 {v(WTR+16,4)}, v6, {R_WO}, s40 offen
    buffer_load_dwordx4 {v(WTR+20,4)}, v6, {R_WO}, s41 offen
    {L}:
    """)

def side_job(a, wor, vm):
    L=a.newlabel("wtskip"); L2=a.newlabel("wos")
    if not wor: a(f"s_cmp_lt_u32 s72, 20\n s_cbranch_scc1 {L}" if 'wtside' in EXP else f"s_cmp_ge_u32 {SW}, 3\n s_cbranch_scc1 {L}")
    a(f"""
    v_and_b32 v6, 3, {VN}
    v_cmp_eq_u32 vcc, v6, {VG}
    v_lshrrev_b32 v6, 2, {VN}
    v_cndmask_b32 v6, 7, v6, vcc
    v_mov_b32 v28, 0x3f80
    v_mov_b32 v29, 0x3f800000
    v_cmp_eq_u32 vcc, 0, v6
    v_cndmask_b32 v8, 0, v28, vcc
    v_cmp_eq_u32 vcc, 1, v6
    v_cndmask_b32 v8, v8, v29, vcc
    v_cmp_eq_u32 vcc, 2, v6
    v_cndmask_b32 v9, 0, v28, vcc
    v_cmp_eq_u32 vcc, 3, v6
    v_cndmask_b32 v9, v9, v29, vcc
    v_mov_b32 v10, 0
    v_mov_b32 v11, 0
    v_mov_b32 v12, 0
    v_mov_b32 v13, 0
    v_mov_b32 v14, v8
    v_mov_b32 v15, v9
    v_and_b32 v7, 7, {VN}
    v_lshrrev_b32 v17, 3, {VN}
    s_lshr_b32 s40, s70, 1
    s_lshl_b32 s40, s40, 6
    s_sub_u32 s40, s40, s69
    s_sub_u32 s40, s40, 1
    v_lshl_add_u32 v18, v7, 3, {VG}
    v_add_u32 v18, s40, v18
    v_add_u32 v19, 4, v18
    v_and_b32 v20, 1, v18
    v_lshlrev_b32 v20, 5, v20
    v_lshl_add_u32 v20, v17, 4, v20
    v_mov_b32 v21, {OOB}
    v_lshrrev_b32 v16, 1, v18
    v_lshl_add_u32 v16, v16, 14, v20
    v_cmp_gt_u32 vcc, 0x140, v18
    v_cndmask_b32 v16, v21, v16, vcc
    v_lshrrev_b32 v22, 1, v19
    v_lshl_add_u32 v22, v22, 14, v20
    v_cmp_gt_u32 vcc, 0x140, v19
    v_cndmask_b32 v22, v21, v22, vcc
    s_lshl_b32 s40, s69, 8
    s_and_b32 s41, s70, 1
    s_lshl_b32 s41, s41, 7
    s_add_u32 s40, s40, s41
    s_add_u32 s40, s40, {WT}
    s_waitcnt vmcnt({vm})
    """)
    for G in range(2):
        if wor: break
        for mf in range(2):
            for ri in range(2):
                a(f"{M16} {v(32+16*G+8*mf+4*ri,4)}, {v(8+4*mf,4)}, {v(WTX+8*G+4*ri,4)}, 0")
    for mf in range(2):
        if not wor: break
        for ld in range(2):
            a(f"{M16} {v(64+8*mf+4*ld,4)}, {v(8+4*mf,4)}, {v(WTR+16+4*ld,4)}, 0")
    for G in range(2):
        if wor: break
        for mf in range(2):
            b=32+16*G+8*mf; d=64+8*G+4*mf
            for i in range(4): a(f"v_cvt_pk_bf16_f32 v{d+i}, v{b+i}, v{b+4+i}")
            a(f"buffer_store_dwordx4 {v(d,4)}, {'v22' if mf else 'v16'}, {R_WS}, s40 offen offset:{64*G} sc1")
    if not wor:
        a.label(L); return
    a(f"""
    s_cmp_ge_u32 s67, 400
    s_cbranch_scc1 {L}
    s_mul_i32 s42, s67, 6554
    s_lshr_b32 s42, s42, 16
    s_mul_i32 s43, s42, 10
    s_sub_u32 s43, s67, s43
    s_lshl_b32 s43, s43, 4
    s_lshr_b32 s40, s42, 1
    s_mul_i32 s40, s40, 5120
    s_and_b32 s42, s42, 1
    s_lshl_b32 s42, s42, 9
    s_add_u32 s40, s40, s42
    s_add_u32 s40, s40, {WOR}
    s_mov_b32 s41, 102400
    v_lshlrev_b32 v18, 8, v17
    v_lshl_add_u32 v18, {VG}, 4, v18
    """)
    for mf in range(2):
        a(f"""
        v_lshl_add_u32 v19, v7, 1, s43
        v_add_u32 v19, {mf}, v19          ; dq
        v_mul_u32_u24 v20, 205, v19
        v_lshrrev_b32 v20, 10, v20        ; dq/5
        v_mul_u32_u24 v21, 5, v20
        v_sub_u32 v19, v19, v21           ; nt
        v_lshrrev_b32 v21, 2, v20         ; t
        v_and_b32 v20, 3, v20
        v_mul_lo_u32 v21, v21, s41
        v_lshl_add_u32 v21, v19, 10, v21
        v_lshl_add_u32 v21, v20, 6, v21
        v_add_u32 v21, v21, v18
        """)
        d=WTR+40+4*mf
        for q in range(4): a(f"v_cvt_pk_bf16_f32 v{d+q}, v{64+8*mf+2*q}, v{65+8*mf+2*q}")
        a(f"buffer_store_dwordx4 {v(d,4)}, v21, {R_WS}, s40 offen sc1")
    a.label(L)

C64, S64, C32, S32 = 164, 180, 196, 204
TW1C, TW1S, TW2C, TW2S = 212, 220, 228, 236
WP = 244
WL = 81920
N64, N32, WRE, WIM, UP, DA = 64, 80, 88, 96, 104, 120
FSC, FRW, FX1 = 102400, 118784, 135168
def ang8(a, base, step, dst):
    a(f"""
    v_mov_b32 v{dst}, {base}
    v_add_f32 v{dst+1}, {base}, {step}
    v_fma_f32 v{dst+2}, 2.0, {step}, {base}
    v_fma_f32 v{dst+4}, 4.0, {step}, {base}
    v_add_f32 v{dst+3}, v{dst+2}, {step}
    v_add_f32 v{dst+5}, v{dst+4}, {step}
    v_fma_f32 v{dst+6}, 2.0, {step}, v{dst+4}
    v_add_f32 v{dst+7}, v{dst+6}, {step}
    """)

def fft_consts(a):
    a("s_mov_b32 s40, 0")
    mu_pos(a, "v6", "s40", "v7")
    a(f"""
    v_cvt_f32_u32 v6, v6
    v_lshlrev_b32 v7, 3, {VG}
    v_cvt_f32_u32 v7, v7
    s_lshl_b32 s40, s63, 5
    v_cvt_f32_u32 v8, s40
    s_xor_b32 s40, s40, 32
    v_cvt_f32_u32 v9, s40
    v_cvt_f32_u32 v10, s62
    """)
    def cs(step, base, c, s):
        a(f"""
        v_cos_f32 v14, {step}
        v_add_f32 v17, {base}, {step}
        v_sin_f32 v24, {base}
        v_cos_f32 v16, {base}
        v_sin_f32 v25, v17
        v_cos_f32 v17, v17
        v_add_f32 v14, v14, v14
        """)
        for i in range(2,8):
            a(f"v_fma_f32 v{24+i}, v14, v{23+i}, -v{22+i}")
            a(f"v_fma_f32 v{16+i}, v14, v{15+i}, -v{14+i}")
        for i in range(4): a(f"v_cvt_pk_bf16_f32 v{s+i}, v{24+2*i}, v{25+2*i}")
        for i in range(4): a(f"v_cvt_pk_bf16_f32 v{c+i}, v{16+2*i}, v{17+2*i}")
    for aa in range(2):
        a(f"v_add_f32 v11, v8, v6")
        if aa: a("v_add_f32 v11, 4.0, v11")
        a(f"v_mul_f32 v12, {f2u(1/64)}, v11")
        for kk in range(2):
            a(f"v_add_f32 v13, v{8+kk}, v7")
            a(f"v_mul_f32 v13, v13, v12")
            o=8*aa+4*kk
            cs("v12","v13",C64+o,S64+o)
        a(f"v_mov_b32 v11, v6")
        if aa: a("v_add_f32 v11, 4.0, v11")
        a(f"""
        v_mul_f32 v12, {f2u(1/32)}, v11
        v_mul_f32 v13, v7, v12
        """)
        cs("v12","v13",C32+4*aa,S32+4*aa)
        a(f"""
        v_mul_f32 v12, {f2u(1/2048)}, v11
        v_add_f32 v13, v7, v10
        v_add_f32 v13, v13, v8
        v_mul_f32 v16, v13, v12
        v_add_f32 v17, v16, v12
        v_fma_f32 v18, 2.0, v12, v16
        v_add_f32 v19, v18, v12
        """)
        for i in range(4): a(f"v_sin_f32 v{TW2S+4*aa+i}, v{16+i}")
        for i in range(4): a(f"v_cos_f32 v{TW2C+4*aa+i}, v{16+i}")
    for i in range(16): a(f"v_mul_f32 v{TW2C+i}, {f2u(1/2048)}, v{TW2C+i}")
    a(f"""
    v_add_f32 v11, v8, v6
    v_add_f32 v11, v11, v10
    v_mul_f32 v12, {f2u(1/2048)}, v11
    v_mul_f32 v13, v7, v12
    """)
    ang8(a, "v13", "v12", 16)
    for i in range(8): a(f"v_sin_f32 v{TW1S+i}, v{16+i}")
    for i in range(8): a(f"v_cos_f32 v{TW1C+i}, v{16+i}")
    mu_pos(a, "v8", "s62", "v9")
    a(f"""
    s_lshl_b32 s40, s63, 5
    v_add_u32 v8, s40, v8             ; j1
    s_lshl_b32 s40, s61, 1
    v_lshl_add_u32 v9, {VG}, 2, s40
    v_and_b32 v10, 15, v8
    v_xor_b32 v9, v9, v10
    v_lshlrev_b32 v9, 4, v9
    v_lshl_add_u32 v244, v8, 8, v9
    v_add_u32 v244, {WL}, v244
    v_xor_b32 v248, 16, v244
    """)

def fft_prep(a, first):
    mu_pos(a, "v141", "s62", "v140")
    a(f"""
    v_lshrrev_b32 v136, 3, v0
    s_mov_b32 s41, 40960
    v_mul_lo_u32 v136, v136, s41
    v_bfe_u32 v138, v0, 2, 1
    v_mul_u32_u24 v139, 3, v138
    v_xor_b32 v139, v139, {VL}        ; lane with c mirrored for ri=1
    v_and_b32 v137, 7, v139
    v_lshl_add_u32 v136, v137, 4, v136
    v_and_b32 v137, 3, v139
    v_lshlrev_b32 v137, 4, v137
    v_lshl_add_u32 v137, v138, 14, v137
    v_lshrrev_b32 v138, 3, v0
    v_lshl_add_u32 v137, v138, 6, v137
    s_lshl_b32 s40, {SW}, 10
    s_lshr_b32 s42, {SW}, 1
    s_lshr_b32 s43, {SW}, 2
    s_xor_b32 s42, s42, s43
    s_lshl_b32 s42, s42, 6
    v_lshlrev_b32 v138, 4, v139
    v_xor_b32 v138, s42, v138
    s_add_u32 s40, s40, {FSC}
    v_add_u32 v138, s40, v138
    v_lshrrev_b32 v141, 2, v141
    s_lshl_b32 s40, s63, 2
    v_add_u32 v140, s40, {VG}
    v_lshl_add_u32 v141, v141, 3, v140
    v_and_b32 v143, 3, {VN}
    v_lshl_add_u32 v139, v141, 3, v143
    v_lshrrev_b32 v144, 2, {VN}
    v_lshrrev_b32 v145, 3, {VN}
    v_xor_b32 v144, v144, v145
    v_lshlrev_b32 v144, 2, v144
    v_xor_b32 v139, v139, v144
    s_lshl_b32 s40, s61, 13
    s_add_u32 s42, s40, {FSC}
    v_lshl_add_u32 v139, v139, 4, s42
    v_xor_b32 v140, 512, v139
    v_mul_lo_u32 v141, v141, s41
    v_lshl_add_u32 v141, v143, 4, v141
    s_lshl_b32 s43, s63, 12
    s_add_u32 s43, s43, s40
    s_add_u32 s43, s43, {FX1}
    s_lshl_b32 s44, s62, 1
    s_add_u32 s45, s44, s43
    v_add_u32 v143, s45, {VL16}
    s_lshl_b32 s45, s62, 9
    s_add_u32 s45, s45, s43
    v_add_u32 v144, s45, {VL16}
    s_lshl_b32 s43, s63, 11
    s_add_u32 s43, s43, s40
    s_add_u32 s43, s43, {FX1}
    s_add_u32 s45, s44, s43
    v_add_u32 v145, s45, {VL16}
    s_lshl_b32 s45, s62, 10
    s_add_u32 s45, s45, s43
    v_add_u32 v146, s45, {VL16}
    v_xor_b32 v147, 2048, v146
    s_cmp_eq_u32 s73, 159
    s_cselect_b32 s40, 4, 99
    v_and_b32 v148, 4, v0
    v_cmp_ne_u32 vcc, s40, v148
    v_cndmask_b32 v148, 0, -1, vcc
    """)

def fft_prep2(a, first):
    a("s_mov_b32 s41, 0x80008000")
    K = "0x80008000" if 'valu' in EXP else "s41"
    for i in range(16): a(f"v_xor_b32 v{N64+i}, {K}, v{S64+i}")
    for i in range(8): a(f"v_xor_b32 v{N32+i}, {K}, v{S32+i}")
    if not first: fft_w_unpack(a)

def fft_w_load(a):
    a(f"""
    s_lshl_b32 s40, s62, 1
    v_add_u32 v8, s40, {VG}
    v_xor_b32 v9, v8, {VN}
    v_lshlrev_b32 v9, 4, v9
    v_lshl_add_u32 v9, {VG}, 8, v9
    v_xor_b32 v10, 64, v9
    s_lshl_b32 s40, s73, 14
    s_lshl_b32 s41, {SW}, 11
    s_add_u32 s40, s40, s41
    s_add_u32 s40, s40, {WT}
    s_add_u32 m0, s41, {WL}
    s_nop 0
    buffer_load_dwordx4 v9, {R_WS}, s40 offen sc1 lds
    buffer_load_dwordx4 v10, {R_WS}, s40 offen offset:1024 sc1 lds
    """)

def fft_w_read(a):
    a(f"ds_read_b128 {v(WP,4)}, v244\n ds_read_b128 {v(WP+4,4)}, v248")

def fft_w_unpack(a):
    for i in range(8):
        a(f"v_lshlrev_b32 v{WRE+i}, 16, v{WP+i}")
        a(f"v_and_b32 v{WIM+i}, 0xffff0000, v{WP+i}")

def cmul(a, xr, xi, cr, ci, outr, outi, conj, n=8):
    for i in range(n):
        a(f"v_mul_f32 v{outr+i}, v{xr+i}, v{cr+i}")
        a(f"v_mul_f32 v{outi+i}, v{xi+i}, v{cr+i}")
    for i in range(n):
        if conj:
            a(f"v_fma_f32 v{outr+i}, -v{xi+i}, v{ci+i}, v{outr+i}")
            a(f"v_fma_f32 v{outi+i}, v{xr+i}, v{ci+i}, v{outi+i}")
        else:
            a(f"v_fma_f32 v{outr+i}, v{xi+i}, v{ci+i}, v{outr+i}")
            a(f"v_fma_f32 v{outi+i}, -v{xr+i}, v{ci+i}, v{outi+i}")

def fft_main(a, xin, xout, var, first):
    DR, DI = DA, DA+8
    a(f"""
    s_lshl_b32 s46, s73, 8
    s_add_u32 s47, s46, {xout}
    s_add_u32 s46, s46, {xin}
    s_mov_b32 s42, {var}
    s_mov_b32 s43, {var+4096}
    s_mov_b32 s44, {var+8192}
    s_mov_b32 s45, {var+12288}
    s_mov_b32 s58, {SPIN}
    """)
    def ldv():
        for k in range(4): a(f"buffer_load_dwordx4 {v(16+4*k,4)}, v137, {R_WS}, s{42+k} offen sc1")
    def ldd():
        a(f"buffer_load_dwordx4 v[48:51], v136, {R_WS}, s46 offen sc1")
        a(f"buffer_load_dwordx4 v[52:55], v136, {R_WS}, s46 offen offset:128 sc1")
    def mn(base,n,t):
        a(f"v_min3_u32 {t}, v{base}, v{base+1}, v{base+2}")
        for k in range(3,n-1,2): a(f"v_min3_u32 {t}, {t}, v{base+k}, v{base+k+1}")
        a(f"v_min_u32 {t}, {t}, v{base+n-1}")
        a(f"v_cmp_eq_u32 vcc, 0, {t}\n s_cmp_lg_u64 vcc, 0")
    fft_prep2(a, first)
    bg = qkv_bload_setup(a, 4 if first else 5)
    if first and 'b0late' in EXP: probe_check(a, 0, "v252", 0)
    a("s_barrier")
    if 'dfirst' in EXP:
        ldd(); a('s_barrier'); ldv()
        if first and 'b0late' in EXP: fft_w_load(a)
    else:
        ldv(); ldd()
    ex = 0
    def tick(n=1):
        if "notick" in EXP or (first and 'qtick' not in EXP): return
        for _ in range(n):
            if bg: bg.pop(0)()
    RV=a.newlabel("fvr"); BV=a.newlabel("fvb"); RD=a.newlabel("fdr"); BD=a.newlabel("fdb")
    a(f"""
    s_lshl_b32 s41, s61, 7
    s_add_u32 s47, s47, s41
    s_mov_b32 s40, {f2u(2.0/(640*640))}
    v_mov_b32 v8, {f2u(1e-5)}
    s_waitcnt vmcnt({0 if 'dfirst' in EXP else 2+ex})
    """)
    mn(16,16,"v9")
    a(f"s_cbranch_scc1 {RV}")
    a.label(BV)
    if first and 'qtick' in EXP: probe(a, 1, "v252")
    for q in range(4):
        a(f"v_lshlrev_b32 v{40+2*q}, 16, v{16+q}")
        a(f"v_and_b32 v{41+2*q}, 0xffff0000, v{16+q}")
    for k in range(1,4):
        for q in range(4):
            a(f"v_lshlrev_b32 v{32+2*q}, 16, v{16+4*k+q}")
            a(f"v_and_b32 v{33+2*q}, 0xffff0000, v{16+4*k+q}")
        for i in range(8): a(f"v_add_f32 v{40+i}, v{40+i}, v{32+i}")
    for i in range(8): a(f"v_add_f32_dpp v{40+i}, v{40+i}, v{40+i} row_half_mirror row_mask:0xf bank_mask:0xf")
    for i in range(8): a(f"v_fmamk_f32 v{40+i}, v{40+i}, {f2u(2.0/(640*640))}, v8" if 'valu' in EXP else f"v_fma_f32 v{40+i}, v{40+i}, s40, v8")
    for i in range(8): a(f"v_rsq_f32 v{40+i}, v{40+i}")
    a(f"s_waitcnt vmcnt({ex})")
    mn(48,8,"v9")
    a(f"s_cbranch_scc1 {RD}")
    a.label(BD)
    def late():
        OK=a.newlabel("fvo")
        a.label(RV); ldv(); a("s_waitcnt vmcnt(0)"); mn(16,16,"v9")
        a(f"s_cbranch_scc0 {OK}")
        retry_check(a, None, RV, BV, 60)
        a.label(OK); ldd()
        a(f"s_branch {BV}")
        a.label(RD); ldd(); a("s_waitcnt vmcnt(0)"); mn(48,8,"v9")
        a(f"s_cbranch_scc0 {BD}")
        retry_check(a, None, RD, BD, 61)
    a.late.append(late)
    for c in range(2):
        a(f"ds_write_b128 v138, {v(48+4*c,4)} offset:{FRW-FSC+8192*c}")
        for q in range(4):
            a(f"v_lshlrev_b32 v{16+2*q}, 16, v{48+4*c+q}")
            a(f"v_and_b32 v{17+2*q}, 0xffff0000, v{48+4*c+q}")
        for i in range(8): a(f"v_mul_f32 v{16+i}, v{16+i}, v{40+i}")
        for q in range(4): a(f"v_cvt_pk_bf16_f32 v{56+4*c+q}, v{16+2*q}, v{17+2*q}")
        if c==1:
            for q in range(4): a(f"v_and_b32 v{60+q}, v{60+q}, v148")
        a(f"ds_write_b128 v138, {v(56+4*c,4)} offset:{8192*c}")
    FD = ("fd" in EXP and not first) or ("fd1" in EXP and first)
    if FD: pflush(a,7); pst(a,0)
    if first and 'qtick' in EXP: probe_check(a, 1, "v252", 0)
    else: tick()
    a(f"""
    v_xor_b32 v8, 64, v139
    v_and_b32 v10, 0xfffffbff, v139
    v_xor_b32 v11, 64, v10
    v_xor_b32 v12, 512, v10
    v_xor_b32 v13, 512, v11
    s_waitcnt lgkmcnt(0)
    s_barrier
    ds_read_b128 {v(UP,4)}, v10
    ds_read_b128 {v(UP+4,4)}, v11
    ds_read_b128 v[16:19], v10 offset:1024
    ds_read_b128 v[20:23], v11 offset:1024
    ds_read_b128 {v(UP+8,4)}, v12
    ds_read_b128 {v(UP+12,4)}, v13
    ds_read_b128 v[24:27], v12 offset:1024
    ds_read_b128 v[28:31], v13 offset:1024
    ds_read_b128 v[48:51], v139 offset:{FRW-FSC}
    ds_read_b128 v[52:55], v8 offset:{FRW-FSC}
    """)
    if FD: pst(a,1)
    if first:
        fft_w_read(a)
        if 'qfirst' not in EXP: arrive(a, 1)
    tick(2)
    ur=lambda kk: v(UP+8*kk,4); ui=lambda kk: v(UP+8*kk+4,4)
    xl = 2 + (2 if first else 0)
    LT=a.newlabel("s1t"); LU=a.newlabel("s1u")
    a(f"s_cmp_lg_u32 s62, 0\n s_cbranch_scc1 {LT}")
    for av in range(2):
        if av: a.label(LT)
        for kk in range(2):
            for tt in range(2):
                a(f"s_waitcnt lgkmcnt({xl+6-4*kk-2*tt})")
                b = (UP if tt==0 else 16)+8*kk
                r_,i_ = v(b,4), v(b+4,4)
                dr=v(DR+4*tt,4); di=v(DI+4*tt,4); o=8*av+4*kk
                a(f"{M16} {dr}, {r_}, {v(C64+o,4)}, {dr if kk else 0}")
                a(f"{M16} {di}, {i_}, {v(C64+o,4)}, {di if kk else 0}")
                a(f"{M16} {dr}, {i_}, {v(S64+o,4)}, {dr}")
                a(f"{M16} {di}, {r_}, {v(N64+o,4)}, {di}")
        if not av: a(f"s_branch {LU}")
    a.label(LU)
    tick(2)
    def exch(vw, stride):
        for aa in range(2):
            for ri in range(2):
                b=16+8*ri+4*aa; d=32+4*aa+2*ri
                a(f"v_cvt_pk_bf16_f32 v{d}, v{b}, v{b+1}")
                a(f"v_cvt_pk_bf16_f32 v{d+1}, v{b+2}, v{b+3}")
                a(f"ds_write_b64 {vw}, {v(d,2)} offset:{stride*aa+1024*ri}")
    if FD: pst(a,2)
    cmul(a, DR, DI, TW1C, TW1S, 16, 24, False)
    tick()
    for q in range(8): a(f"v_cvt_pk_bf16_f32 v{UP+q}, v{16+2*q}, v{17+2*q}")
    tick()
    a("s_waitcnt lgkmcnt(0)")
    if FD: pst(a,4)
    tr=v(UP,4); ti=v(UP+4,4)
    for aa in range(2):
        dr=v(DR+4*aa,4); di=v(DI+4*aa,4)
        a(f"{M16} {dr}, {v(C32+4*aa,4)}, {tr}, 0")
        a(f"{M16} {di}, {v(C32+4*aa,4)}, {ti}, 0")
        a(f"{M16} {dr}, {v(S32+4*aa,4)}, {ti}, {dr}")
        a(f"{M16} {di}, {v(N32+4*aa,4)}, {tr}, {di}")
    if first:
        fft_w_unpack(a)
        a(f"""
        v_mov_b32 v32, 0
        v_mov_b32 v33, 0
        v_mov_b32 v34, 0
        v_mov_b32 v35, 0
        s_lshl_b32 s40, s73, 3
        s_add_u32 s40, s40, {SW}
        s_lshl_b32 s40, s40, 11
        s_add_u32 s40, s40, {O2}
        buffer_store_dwordx4 v[32:35], {VL16}, {R_WS}, s40 offen sc1
        buffer_store_dwordx4 v[32:35], {VL16}, {R_WS}, s40 offen offset:1024 sc1
        """)
        L=a.newlabel("p1")
        a(f"""
        s_cmp_lg_u32 {SW}, 7
        s_cbranch_scc1 {L}
        s_and_b32 s59, s2, 3
        s_lshl_b32 s59, s59, 12
        s_add_u32 s59, s59, {CNTB(1)}
        v_lshlrev_b32 v255, 8, {VN}
        buffer_load_dword v252, v255, {R_WS}, s59 offen sc1
        {L}:
        """)
    tick()
    cmul(a, DR, DI, WRE, WIM, 16, 24, True)
    tick()
    for q in range(4): a(f"v_cvt_pk_bf16_f32 v{UP+8+q}, v{16+2*q}, v{17+2*q}")
    for q in range(4): a(f"v_cvt_pk_bf16_f32 v{UP+12+q}, v{24+2*q}, v{25+2*q}")
    yr=v(UP+8,4); yi=v(UP+12,4)
    for aa in range(2):
        dr=v(DR+4*aa,4); di=v(DI+4*aa,4)
        a(f"{M16} {dr}, {yr}, {v(C32+4*aa,4)}, 0")
        a(f"{M16} {di}, {yi}, {v(C32+4*aa,4)}, 0")
        a(f"{M16} {dr}, {yi}, {v(N32+4*aa,4)}, {dr}")
        a(f"{M16} {di}, {yr}, {v(S32+4*aa,4)}, {di}")
    tick()
    cmul(a, DR, DI, TW2C, TW2S, 16, 24, True)
    tick()
    exch("v145", 4096)
    tick(2)
    if first and 'lateb1' not in EXP:
        L=a.newlabel("p1c")
        a(f"""
        s_cmp_lg_u32 {SW}, 7
        s_cbranch_scc1 {L}
        s_waitcnt vmcnt(0)
        v_cmp_gt_u32 vcc, {0 if 'nob1' in EXP else 16}, v252
        s_cmp_eq_u64 vcc, 0
        s_cbranch_scc1 {L}
        """)
        wait(a, 1, bar=False)
        a.label(L)
    if FD: pst(a,5)
    for ri in range(2):
        for q in range(4):
            a(f"v_lshlrev_b32 v{16+8*ri+2*q}, 16, v{48+4*ri+q}")
            a(f"v_and_b32 v{17+8*ri+2*q}, 0xffff0000, v{48+4*ri+q}")
    a(f"""
    s_waitcnt lgkmcnt(0)
    s_barrier
    ds_read_b128 {v(UP,4)}, v146
    ds_read_b128 {v(UP+4,4)}, v146 offset:1024
    ds_read_b128 {v(UP+8,4)}, v147
    ds_read_b128 {v(UP+12,4)}, v147 offset:1024
    """)
    if FD: pst(a,6)
    if first and 'lateb1' in EXP: probe(a, 1, "v252")
    for kk in range(2):
        a(f"s_waitcnt lgkmcnt({2-2*kk})")
        for aa in range(2):
            dr=v(DR+4*aa,4); di=v(DI+4*aa,4); o=8*aa+4*kk
            a(f"{M16} {dr}, {v(C64+o,4)}, {ur(kk)}, {dr if kk else v(16+4*aa,4)}")
            a(f"{M16} {di}, {v(C64+o,4)}, {ui(kk)}, {di if kk else v(24+4*aa,4)}")
            a(f"{M16} {dr}, {v(N64+o,4)}, {ui(kk)}, {dr}")
            a(f"{M16} {di}, {v(S64+o,4)}, {ur(kk)}, {di}")
            if first and kk+aa<2 and 'lateb1' not in EXP: bg.pop(0)()
    for q in range(4): a(f"v_cvt_pk_bf16_f32 v{32+q}, v{DR+2*q}, v{DR+2*q+1}")
    for q in range(4): a(f"v_cvt_pk_bf16_f32 v{36+q}, v{DI+2*q}, v{DI+2*q+1}")
    L=a.newlabel("nyq2")
    a(f"""
    s_lshl_b32 s40, s73, 1
    s_add_u32 s40, s40, s61
    s_cmp_lg_u32 s40, 319
    s_cbranch_scc1 {L}
    """)
    for q in range(4): a(f"v_mov_b32 v{36+q}, v{52+q}")
    a.label(L)
    for q in range(8): a(f"v_max_u32 v{32+q}, 1, v{32+q}")
    if first and 'lateb1' not in EXP: a("s_waitcnt vmcnt(3)")
    a(f"""
    buffer_store_dwordx4 v[32:35], v141, {R_WS}, s47 offen sc1
    buffer_store_dwordx4 v[36:39], v141, {R_WS}, s47 offen offset:64 sc1
    """)
    return bg

QB = 0
def QAb(layer): return 102400
def NRS(layer): return 3
def BST(layer): return 5120 if layer else 4096
KVF = 151552
QACC = 8
QAF = 48
QBF = 72
def qkv_rot(a): pass
def qkv_roles(a, layer):
    RX=RXS[layer]
    a(f"""
    s_lshr_b32 s81, s2, 3
    s_and_b32 {SR}, {SX}, {8//RX-1}
    s_mul_i32 {SR}, {SR}, {RX}
    s_and_b32 s82, s81, {RX-1}
    s_add_u32 {SR}, {SR}, s82
    s_lshr_b32 {SH}, {SX}, {(8//RX).bit_length()-1}
    s_mul_i32 {SH}, {SH}, {32//RX}
    s_lshr_b32 s81, s81, {RX.bit_length()-1}
    s_add_u32 {SH}, {SH}, s81
    s_and_b32 s68, {SH}, 3
    s_mul_i32 s68, s68, 5
    s_lshr_b32 s81, {SH}, 2
    s_add_u32 s68, s68, s81
    s_cmp_ge_u32 s68, 20
    s_cselect_b32 s81, 20, 0
    s_sub_u32 s68, s68, s81
    """)

def qkv_bload_setup(a, NT):
    BS=BST(0 if NT==4 else 1)
    a(f"""
    v_mul_u32_u24 v150, 2560, {VG}
    s_mul_i32 s48, {SH}, 80
    v_add3_u32 v150, v150, {VN}, s48
    v_lshlrev_b32 v150, 4, v150
    s_lshl_b32 s48, s60, 8
    v_add_u32 v149, s48, v150
    v_add_u32 v150, 1024, v150
    s_mov_b32 s51, {WQF+20*163840}
    s_add_u32 s50, s68, s61
    s_mul_i32 s50, s50, 163840
    s_add_u32 s50, s50, {WQF}
    s_add_u32 s76, s68, {SW}
    s_mul_i32 s76, s76, 163840
    s_add_u32 s76, s76, {WQF}
    s_mul_i32 s49, s61, {BS}
    s_lshl_b32 s48, s60, 10
    s_add_u32 s49, s49, s48
    s_mul_i32 s77, {SW}, {BS}
    """)
    def chunk(i):
        def f():
            L=None
            if i<10: src,vo,m,step = "s50","v149",f"s_add_u32 m0, s49, {QB+2*BS*i}",2
            else:    src,vo,m,step = "s76","v150",f"s_add_u32 m0, s77, {QB+8*BS*(i-10)+4096}",8
            if i==12:
                L=a.newlabel("qb"); a(f"s_cmp_ge_u32 {SW}, 4\n s_cbranch_scc1 {L}")
            a(f"""
            s_cmp_ge_u32 {src}, s51
            s_cselect_b32 s48, {20*163840}, 0
            s_sub_u32 {src}, {src}, s48
            {m}
            s_nop 0
            buffer_load_dwordx4 {vo}, {R_WS}, {src} offen sc1 lds
            s_add_u32 {src}, {src}, {step*163840}
            """)
            if L: a.label(L)
        return f
    if 'nob2' in EXP and NT==5: return []
    return [chunk(i) for i in range(10 if NT==4 else 13)]

def qkv_bload(a, NT):
    for c in qkv_bload_setup(a, NT): c()

def qkv_prep(a, layer, bg=None):
    def tk(n=1):
        for _ in range(n):
            if bg: bg.pop(0)()
    tk()
    a(f"""
    s_lshl_b32 s64, {SR}, 3
    s_add_u32 s64, s64, {SW}
    s_mul_i32 s65, {SW}, {2048*NRS(layer)}
    s_add_u32 s65, s65, {QAb(layer)}
    v_lshrrev_b32 v112, 5, {VL}
    v_lshlrev_b32 v112, 5, v112
    {'v_mov_b32 v112, v4' if 'noswz' in EXP else 'v_xor_b32 v112, v112, v4'}
    v_lshrrev_b32 v113, 2, {VN}
    v_lshl_add_u32 v113, {VG}, 3, v113
    v_lshlrev_b32 v113, 6, v113
    v_and_b32 v114, 3, {VN}
    v_lshl_add_u32 v113, v114, 3, v113
    v_and_b32 v114, 1, {VG}
    v_lshl_add_u32 v113, v114, 5, v113
    v_add_u32 v113, s65, v113
    v_xor_b32 v114, 32, v113
    v_add_u32 v115, {10*BST(layer)}, {VL16}
    s_cmp_eq_u32 {SH}, 19
    s_cselect_b32 s40, 3, 99
    v_mov_b32 v116, 0xffff
    v_cmp_ne_u32 vcc, s40, {VG}
    v_cndmask_b32 v116, v116, -1, vcc
    v_lshrrev_b32 v117, 1, {VG}
    v_lshl_add_u32 v117, v117, 4, {VN}
    v_lshlrev_b32 v117, 2, v117
    """)
    tk()
    a(f"""
    v_lshrrev_b32 v8, 2, v0
    v_mul_u32_u24 v9, 781, v8
    v_lshrrev_b32 v9, 14, v9          ; dq
    v_mul_u32_u24 v10, 21, v9
    v_sub_u32 v8, v8, v10             ; rho
    v_lshlrev_b32 v10, 4, v9          ; dq*16  (dq==4 -> 64 = tile 1, lane group 0)
    v_subrev_u32 v11, 12, v8
    v_cmp_eq_u32 vcc, 20, v8
    v_cndmask_b32 v11, v11, 0, vcc
    v_add_u32 v11, 128, v11
    v_cmp_gt_u32 vcc, 16, v8
    v_cndmask_b32 v11, v11, v8, vcc
    v_add_u32 v10, v10, v11
    v_and_b32 v11, 3, v0
    v_lshl_add_u32 v10, v10, 2, v11
    v_lshlrev_b32 v10, 2, v10
    v_min_u32 v10, 4092, v10
    v_add_u32 v118, {QAb(layer)}, v10
    """)
    tk()
    a(f"""
    ; T2 lane constants: n>>2 = 0 k, 1 v, 2 q, 3 g
    v_lshrrev_b32 v8, 2, {VN}
    v_and_b32 v9, 1, v8
    v_cmp_eq_u32 vcc, 1, v9
    v_mov_b32 v10, {f2u(1e-6)}
    v_mov_b32 v11, 0xff800000
    v_cndmask_b32 v119, v10, 0, vcc
    v_cndmask_b32 v120, v10, v11, vcc
    v_cndmask_b32 v121, 1.0, 0, vcc
    v_cmp_eq_u32 vcc, 3, v8
    v_mov_b32 v10, {f2u(2.0/640)}
    v_cndmask_b32 v122, 1.0, 0, vcc
    v_cndmask_b32 v123, 0, v10, vcc
    """)
    tk()
    a(f"""
    ; transposition selectors: slot (g,ii) <-> token 16*(ii>>2) + 4g + (ii&3) ; half a: lane n == 4g + (ii&3), ii>>2 == a
    v_lshlrev_b32 v8, 2, {VG}
    v_sub_u32 v8, {VN}, v8
    v_mov_b32 v10, 0x3f80
    v_mov_b32 v11, 0x3f800000
    v_cmp_eq_u32 vcc, 0, v8
    v_cndmask_b32 v124, 0, v10, vcc
    v_cmp_eq_u32 vcc, 1, v8
    v_cndmask_b32 v124, v124, v11, vcc
    v_cmp_eq_u32 vcc, 2, v8
    v_cndmask_b32 v125, 0, v10, vcc
    v_cmp_eq_u32 vcc, 3, v8
    v_cndmask_b32 v125, v125, v11, vcc
    v_mov_b32 v126, 0
    v_mov_b32 v127, 0
    v_mov_b32 v128, 0
    v_mov_b32 v129, 0
    v_mov_b32 v130, v124
    v_mov_b32 v131, v125
    """)
    tk()
    a(f"""
    v_lshrrev_b32 v8, 3, {VL}
    v_mul_u32_u24 v8, 1792, v8
    v_and_b32 v9, 7, {VL}
    v_lshl_add_u32 v132, v9, 4, v8
    s_lshl_b32 s40, {SW}, 8
    v_add_u32 v132, s40, v132
    """)
    tk()
    a(f"""
    v_lshrrev_b32 v8, 5, {VL}
    v_lshl_add_u32 v8, v8, 3, v9
    s_lshl_b32 s40, {SW}, 4
    v_add_u32 v8, s40, v8
    v_mul_u32_u24 v9, 781, v8
    v_lshrrev_b32 v9, 14, v9          ; dq
    v_mul_u32_u24 v10, 21, v9
    v_sub_u32 v8, v8, v10             ; rho
    v_add_u32 v10, 48, v8
    v_cmp_gt_u32 vcc, 16, v8
    v_cndmask_b32 v8, v10, v8, vcc
    v_lshlrev_b32 v8, 4, v8
    v_lshlrev_b32 v10, 8, v9
    v_mov_b32 v11, {2*256+8}
    v_cmp_eq_u32 vcc, 4, v9
    v_cndmask_b32 v10, v10, v11, vcc
    v_mov_b32 v11, 2048
    v_cmp_lt_u32 vcc, 4, v9
    v_cndmask_b32 v10, v10, v11, vcc
    v_add_u32 v8, v8, v10
    v_and_b32 v9, 1, {VG}
    v_lshl_add_u32 v8, v9, 2, v8
    v_add_u32 v133, {KVF}, v8
    v_add_u32 v134, {KVF}, {VL16}
    v_min_u32 v8, 4, {VN}
    v_lshl_add_u32 v8, {VG}, 4, v8
    v_lshlrev_b32 v8, 4, v8
    v_add_u32 v135, {KVF+1024}, v8
    v_mov_b32 v8, 0
    v_lshlrev_b32 v9, 2, v0
    v_add_u32 v9, {KVF}, v9
    ds_write_b32 v9, v8
    """)
    tk()
    a(f"""
    ; O store: token part: a' = bit2(n), n' = 4*(2a + (n>>3)) + (n&3) ; quad qd = 5h + j
    v_bfe_u32 v8, {VN}, 2, 1
    v_mul_u32_u24 v8, 20480, v8
    v_lshrrev_b32 v9, 3, {VN}
    v_lshl_add_u32 v8, v9, 6, v8
    v_and_b32 v9, 3, {VN}
    v_lshl_add_u32 v8, v9, 4, v8
    s_mul_i32 s40, {SH}, 5
    v_add_u32 v9, s40, {VG}
    v_lshrrev_b32 v10, 1, v9
    v_lshl_add_u32 v136, v10, 8, v8
    v_and_b32 v10, 1, v9
    v_lshl_add_u32 v136, v10, 3, v136
    s_add_u32 s40, s40, 4
    s_lshr_b32 s41, s40, 1
    s_lshl_b32 s41, s41, 8
    s_and_b32 s40, s40, 1
    s_lshl_b32 s40, s40, 3
    s_add_u32 s40, s40, s41
    v_add_u32 v137, s40, v8
    v_lshlrev_b32 v138, 3, {VN}
    v_lshl_add_u32 v138, {VG}, 8, v138
    """)
    tk(20)

def qkv_main(a, layer):
    last = layer==1
    NT = 5 if last else 4
    NR = NRS(layer); BS = BST(layer)
    xin = X3 if last else X1; var = VAR3 if last else VAR1
    a(f"""
    s_mul_i32 s52, s64, 40960
    s_add_u32 s52, s52, {xin}
    s_add_u32 s54, s52, 40960
    s_lshl_b32 s53, s68, 11
    s_add_u32 s53, s53, s52
    """)
    def dma0(j):
        a(f"s_add_u32 m0, s65, {(j%NR)*2048}")
        a("s_nop 0")
        a(f"buffer_load_dwordx4 v112, {R_WS}, s53 offen {'' if 'nosc' in EXP else 'sc1'} lds")
    def dma1(j):
        a(f"""
        buffer_load_dwordx4 v112, {R_WS}, s53 offen offset:1024 {'' if 'nosc' in EXP else 'sc1'} lds
        s_add_u32 s53, s53, 2048
        s_cmp_ge_u32 s53, s54
        s_cselect_b32 s53, s52, s53
        """)
    q=LQ(a)
    def rdA(j,k):
        aa,h=k>>1,k&1
        q.op(f"ds_read_b64_tr_b16 {v(QAF+8*(j%3)+4*aa+2*h,2)}, v{113+aa} offset:{(j%NR)*2048+256*h}", ("A",j,aa))
    def rdB(j,t):
        base,off=(VL16,j*BS) if j<10 else ("v115",(j-10)*BS)
        q.op(f"ds_read_b128 {v(QBF+20*(j&1)+4*t,4)}, {base} offset:{QB+off+1024*t}", ("B",j,t))
    if 'st1' in EXP:
        dma0(0); dma1(0)
        for t in range(NT): rdB(0,t)
        a("s_barrier")
        for j in range(1,NR): dma0(j); dma1(j)
    else:
        for j in range(NR): dma0(j); dma1(j)
        for t in range(NT): rdB(0,t)
    a(f"""
    s_lshl_b32 s55, s64, 7
    s_add_u32 s55, s55, {var}
    s_lshl_b32 s56, s64, 8
    s_add_u32 s56, s56, {LSS + layer*16384}
    s_waitcnt vmcnt({2*NR-2})
    """)
    for k in range(4): rdA(0,k)
    a(f"s_waitcnt vmcnt({2*NR-4})")
    for k in range(4): rdA(1,k)
    q.need(("A",0,0),("A",0,1))
    dma0(NR); dma1(NR)
    if 'prio' in EXP:
        L=a.newlabel("pr"); a(f"s_cmp_lt_u32 {SW}, 4\n s_cbranch_scc1 {L}\n s_setprio 1\n {L}:")
    JC = 16-NR
    for j in range(20):
        aux=[]
        if j+1<20: aux+= [(lambda t=t: (None if ("nob" in EXP and j>0) else rdB(j+1,t))) for t in range(NT)]
        if j+2<20:
            def first():
                a(f"s_waitcnt vmcnt({min(2*NR-2,2*(17-j)) if j<17 else 4})"); rdA(j+2,0)
            aux+= [first, lambda: rdA(j+2,1), lambda: (rdA(j+2,2), rdA(j+2,3))]
        pos_dma = 2
        for m in range(2*NT):
            t,aa=m>>1,m&1
            q.need(("A",j,aa),("B",j,t))
            d=v(QACC+8*t+4*aa,4); bf=v(QBF+20*(j&1)+4*t,4); af=v(QAF+8*(j%3)+4*aa,4); c=d if j else 0
            if "nomm" in EXP and j>0 and m>0: pass
            elif t>=3: a(f"{M16} {d}, {bf}, {af}, {c}")
            else: a(f"{M16} {d}, {af}, {bf}, {c}")
            if m<len(aux): aux[m]()
            if j+NR+1<20 and "nodma" not in EXP:
                if m==pos_dma:
                    q.need(("A",j+1,0),("A",j+1,1)); dma0(j+NR+1)
                if m==pos_dma+1: dma1(j+NR+1)
        if j==0 and 'nossq' not in EXP:
            L=a.newlabel("ssq")
            a(f"""
            s_cmp_ge_u32 {SH}, 20
            s_cbranch_scc1 {L}
            v_mov_b32 v5, 0
            v_mov_b32 v6, 0
            v_and_b32 v7, v116, v{QAF+3}
            v_and_b32 v139, v116, v{QAF+7}
            """)
            for k in range(3):
                a(f"v_dot2c_f32_bf16 v5, v{QAF+k}, v{QAF+k}")
                a(f"v_dot2c_f32_bf16 v6, v{QAF+4+k}, v{QAF+4+k}")
            a(f"""
            v_dot2c_f32_bf16 v5, v7, v7
            v_dot2c_f32_bf16 v6, v139, v139
            v_permlane32_swap_b32 v5, v6
            v_add_f32 v5, v5, v6
            v_mov_b32 v6, v5
            v_permlane16_swap_b32 v5, v6
            v_add_f32 v5, v5, v6
            s_mov_b32 exec_lo, 0xffff
            s_mov_b32 exec_hi, 0xffff
            buffer_atomic_add_f32 v5, v117, {R_WS}, s55 offen
            s_mov_b64 exec, -1
            {L}:
            """)
        if j==JC:
            a(f"v_mov_b32 v5, 0\n buffer_load_dword v140, v5, {R_WS}, s56 offen sc1")
        if j==13:
            WB = 3 if last else 5
            L=a.newlabel("w5c")
            a(f"s_cmp_lg_u32 {SW}, 7\n s_cbranch_scc1 {L}")
            bar_target(a, WB)
            a(f"""
            v_cmp_gt_u32 vcc, v253, v151
            s_cmp_eq_u64 vcc, 0
            s_cbranch_scc1 {L}
            """)
            wait(a, WB, bar=False)
            a.label(L)
            a("s_barrier")
            if 'wpre' in EXP:
                L=a.newlabel("wp")
                a(f"""
                s_cmp_ge_u32 {SW}, 4
                s_cbranch_scc1 {L}
                s_lshl_b32 s40, {SA}, 2
                s_add_u32 s40, s40, {SW}
                s_mul_i32 s40, s40, {50*128}
                s_mul_i32 s41, {ST}, 102400
                s_add_u32 s40, s40, s41
                s_add_u32 s40, s40, {WOR if last else WOF}
                v_min_u32 v5, 49, {VL}
                v_lshlrev_b32 v5, 7, v5
                buffer_load_dword v254, v5, {R_WS}, s40 offen sc1
                {L}:
                """)
        if j==6 and not last and 'bpre' in EXP:
            RX=RXS[1]; nl=(32//RX)*320//128
            for r in range(2):
                L=a.newlabel("bp")
                if r: a(f"s_cmp_ge_u32 {SW}, 2\n s_cbranch_scc1 {L}")
                a(f"""
                s_lshr_b32 s40, s2, 3
                s_mul_i32 s40, s40, 10
                s_add_u32 s40, s40, {SW}
                s_add_u32 s40, s40, {8*r}
                s_mul_i32 s40, s40, 10240
                s_lshr_b32 s41, {SX}, {(8//RX).bit_length()-1}
                s_mul_i32 s41, s41, {(32//RX)*320}
                s_add_u32 s40, s40, s41
                s_add_u32 s40, s40, {WQF}
                v_min_u32 v5, {min(nl,64)-1}, {VL}
                v_lshlrev_b32 v5, 7, v5
                buffer_load_dword v254, v5, {R_WS}, s40 offen sc1
                {L}:
                """)
        ZS=(2,5,9,12) if 'zloop' in EXP else (9,10)
        NZC = 7680 if 'zloop' in EXP else 2560
        if j in ZS and not last:
            L=a.newlabel("zf")
            i=ZS.index(j)
            if i==0:
                a(f"""
                v_mov_b32 v152, 0
                v_mov_b32 v153, 0
                v_mov_b32 v154, 0
                v_mov_b32 v155, 0
                s_lshl_b32 s42, {SW}, 8
                s_add_u32 s42, s42, s2
                s_lshl_b32 s43, s42, 10
                s_add_u32 s43, s43, {X2}
                """)
            if i==len(ZS)-1: a(f"s_cmp_ge_u32 s42, {NZC-i*2048}\n s_cbranch_scc1 {L}")
            a(f"buffer_store_dwordx4 v[152:155], {VL16}, {R_WS}, s43 offen sc1\n s_add_u32 s43, s43, {2048*1024}")
            a.label(L)
        if last and 'zloop2' in EXP and j in (1,3,5):
            L=a.newlabel("zf"); i=(j-1)//2
            if i==0:
                a(f"""
                v_mov_b32 v152, 0
                v_mov_b32 v153, 0
                v_mov_b32 v154, 0
                v_mov_b32 v155, 0
                s_lshl_b32 s42, {SW}, 8
                s_add_u32 s42, s42, s2
                s_lshl_b32 s43, s42, 10
                s_add_u32 s43, s43, {O4}
                """)
            if i==1: a(f"s_cmp_ge_u32 s42, 512\n s_cbranch_scc1 {L}")
            if i<2: a(f"buffer_store_dwordx4 v[152:155], {VL16}, {R_WS}, s43 offen sc1\n s_add_u32 s43, s43, {2048*1024}")
            a.label(L)
        if j==8: probe(a, 3 if last else 5, "v151")
        if j==16:
            L=a.newlabel("ssp")
            a(f"""
            v_cmp_gt_u32 vcc, {0 if 'nossq' in EXP else 20}, v140
            s_cmp_eq_u64 vcc, 0
            s_cbranch_scc1 {L}
            v_mov_b32 v255, 0
            """)
            poll(a, R_WS, "s56", "v255", 20, 20+layer)
            a(f"""
            {L}:
            v_lshlrev_b32 v5, 4, {VG}
            v_lshlrev_b32 v6, 2, {VN}
            buffer_load_dwordx4 v[140:143], v5, {R_WS}, s55 offen sc1
            buffer_load_dwordx4 v[144:147], v5, {R_WS}, s55 offen offset:64 sc1
            buffer_load_dword v148, v6, {R_WS}, s55 offen sc1
            buffer_load_dword v149, v6, {R_WS}, s55 offen offset:64 sc1
            """)
        if j==18:
            a(f"s_mov_b32 s40, {f2u(2.0/(640*640))}\n v_mov_b32 v7, {f2u(1e-5)}\n s_waitcnt vmcnt(0)")
            for i in range(10): a(f"v_fma_f32 v{140+i}, v{140+i}, s40, v7")
            for i in range(10): a(f"v_rsq_f32 v{140+i}, v{140+i}")
        if j==NR+1 and 'nossq' not in EXP:
            L=a.newlabel("ssf")
            a(f"s_cmp_ge_u32 {SH}, 20\n s_cbranch_scc1 {L}")
            larrive(a, "s56")
            a.label(L)

def qkv_tail(a, layer):
    last = layer==1
    if 'prio' in EXP: a("s_setprio 0")
    ob = O4 if last else O2
    A=lambda t,aa,i=0: QACC+8*t+4*aa+i
    RR=140; RL=148; S2=64; E=72; P0_,P1_,P2_,P2o=80,84,88,92; QP=96
    if 'wfirst' in EXP:
        L0=a.newlabel("lead0")
        a(f"s_cmp_ge_u32 {SW}, 4\n s_cbranch_scc1 {L0}")
        ao_wload(a, WOR if last else WOF, 1, layer)
        a.label(L0)
    a(f"""
    v_mov_b32 v58, {f2u(1e-6)}
    s_mov_b32 s41, {f2u(math.log2(math.e))}
    """)
    def phi(t, scale, eps, lo, sel):
        for i in range(8): a(f"v_fma_f32 v{A(t,0,i)}, v{A(t,0,i)}, {scale(i)}, {eps}")
        for i in range(8): a(f"v_mul_f32 v{E+i}, {f2u(math.log2(math.e)) if 'valu' in EXP else 's41'}, v{A(t,0,i)}")
        for i in range(8): a(f"v_exp_f32_e64 v{E+i}, v{E+i} clamp")
        for i in range(8): a(f"v_max_f32 v{A(t,0,i)}, v{A(t,0,i)}, {lo}")
        for i in range(8):
            if sel: a(f"v_fma_f32 v{A(t,0,i)}, v{E+i}, {sel}, v{A(t,0,i)}")
            else: a(f"v_add_f32 v{A(t,0,i)}, v{A(t,0,i)}, v{E+i}")
    def pack(t, dst):
        for q in range(4): a(f"v_cvt_pk_bf16_f32 v{dst+q}, v{A(t,0,2*q)}, v{A(t,0,2*q+1)}")
    for i in range(8): a(f"v_mul_f32 v{A(1,0,i)}, v{A(1,0,i)}, v{RR+i}")
    pack(1,P1_)
    for i in range(8): a(f"v_fma_f32 v{S2+i}, v{RR+i}, v122, v123")
    phi(0, lambda i:f"v{RR+i}", "v58", "v58", None); pack(0,P0_)
    phi(2, lambda i:f"v{S2+i}", "v119", "v120", "v121"); pack(2,P2_)
    if not last:
        a(f"v_cmp_gt_u32 vcc, 12, {VN}")
        for q in range(4): a(f"v_cndmask_b32{'_e64' if 'valu' in EXP else ''} v{P2_+q}, 0, v{P2_+q}, vcc")
    a(f"v_mov_b32 v5, 0x3f803f80\n v_cmp_gt_u32 vcc, 4, {VN}")
    for q in range(4): a(f"v_cndmask_b32{'_e64' if 'valu' in EXP else ''} v{P2o+q}, v{P2_+q}, v5, vcc")
    a(f"""
    {M16} v[8:11], {v(P0_,4)}, {v(P1_,4)}, 0
    {M16} v[12:15], {v(P2_,4)}, {v(P1_,4)}, 0
    {M16} v[16:19], {v(P0_,4)}, {v(P2o,4)}, 0
    {M16} v[20:23], {v(P2_,4)}, {v(P2o,4)}, 0
    {M16} v[24:27], {v(P2_,4)}, v[124:127], 0
    {M16} v[28:31], {v(P2_,4)}, v[128:131], 0
    v_add_u32 v6, s65, {VL16}
    """)
    for q in range(4): a(f"ds_write_b128 v6, {v(8+4*q,4)} offset:{1024*q}")
    KD = "kd" in EXP and last
    if KD: pst(a,0)
    L03=a.newlabel("lead")
    a(f"s_cmp_ge_u32 {SW}, 4\n s_cbranch_scc1 {L03}")
    if 'wfirst' not in EXP: ao_wload(a, WOR if last else WOF, 1, layer)
    a(f"s_mov_b32 s41, {f2u(math.log2(math.e))}")
    a.label(L03)
    if KD: pst(a,1)
    a("s_waitcnt lgkmcnt(0)\n s_barrier")
    if KD: pst(a,5)
    L7=a.newlabel("kv7"); LJ=a.newlabel("kvj"); L=a.newlabel("kvs")
    a(f"""
    s_mul_i32 s57, {SH}, {8*1792}
    s_add_u32 s57, s57, {KVP + layer*256*1792}
    s_cmp_eq_u32 {SW}, 7
    s_cbranch_scc1 {L}
    """)
    for w in range(8): a(f"ds_read_b32 v{8+w}, v118 offset:{w*2048*NRS(layer)}")
    a(f"""
    v_lshlrev_b32 v6, 2, v0
    s_mul_i32 s40, {SR}, 1792
    s_add_u32 s40, s40, s57
    s_waitcnt lgkmcnt(0)
    v_add_f32 v8, v8, v9
    v_add_f32 v10, v10, v11
    v_add_f32 v12, v12, v13
    v_add_f32 v14, v14, v15
    v_add_f32 v8, v8, v10
    v_add_f32 v12, v12, v14
    v_add_f32 v8, v8, v12
    v_max_u32 v8, 1, v8
    buffer_store_dword v8, v6, {R_WS}, s40 offen sc1
    {L}:
    """)
    if KD: pst(a,6)
    if last:
        a(f"""
        s_mul_i32 s42, s64, 40960
        s_mul_i32 s43, {SH}, 1280
        s_add_u32 s42, s42, s43
        s_add_u32 s42, s42, {Y3}
        s_mov_b32 s43, {f2u(2.0/640)}
        """)
        for i in range(8): a(f"v_mul_f32 v{A(4,0,i)}, s43, v{A(4,0,i)}")
        for q in range(4): a(f"v_cvt_pk_bf16_f32 v{60+q}, v{A(4,0,2*q)}, v{A(4,0,2*q+1)}")
        for q in range(4): a(f"v_max_u32 v{60+q}, 1, v{60+q}")
        a(f"buffer_store_dwordx2 v[60:61], v138, {R_WS}, s42 offen sc1")
        a(f"buffer_store_dwordx2 v[62:63], v138, {R_WS}, s42 offen offset:128 sc1")
    phi(3, lambda i:f"v{RL+(i>>2)}", "v58", "v58", None)
    for aa in range(2):
        a(f"v_cvt_pk_bf16_f32 v{QP+4*aa}, v{A(3,aa,0)}, v{A(3,aa,1)}")
        a(f"v_cvt_pk_bf16_f32 v{QP+4*aa+1}, v{A(3,aa,2)}, v{A(3,aa,3)}")
        a(f"v_cvt_pk_bf16_f32 v{QP+4*aa+2}, v{24+4*aa}, v{25+4*aa}")
        a(f"v_cvt_pk_bf16_f32 v{QP+4*aa+3}, v{26+4*aa}, v{27+4*aa}")
    a(f"""
    s_mul_i32 s44, s64, 40960
    s_add_u32 s44, s44, {ob}
    """)
    pst(a,3)
    LP=a.newlabel("kvp"); LD=a.newlabel("kvd")
    a(f"""
    s_cmp_eq_u32 {SW}, 7
    s_cbranch_scc1 {L7}
    s_mov_b32 s58, {SPIN}
    {LP}:
    buffer_load_dwordx4 v[8:11], v132, {R_WS}, s57 offen sc1
    buffer_load_dwordx4 v[12:15], v132, {R_WS}, s57 offen offset:128 sc1
    s_waitcnt vmcnt(0)
    v_min3_u32 v16, v8, v9, v10
    v_min3_u32 v17, v11, v12, v13
    v_min3_u32 v16, v16, v14, v15
    v_min_u32 v16, v16, v17
    v_cmp_eq_u32 vcc, 0, v16
    s_cmp_eq_u64 vcc, 0
    s_cbranch_scc1 {LD}
    """)
    retry_check(a, None, LP, LD, 30+layer)
    a.label(LD)
    if KD: pst(a,7)
    for i in range(4): a(f"v_permlane32_swap_b32 v{8+i}, v{12+i}")
    for i in range(4): a(f"v_add_f32 v{8+i}, v{8+i}, v{12+i}")
    a(f"""
    v_permlane16_swap_b32 v8, v10
    v_permlane16_swap_b32 v9, v11
    v_add_f32 v8, v8, v10
    v_add_f32 v9, v9, v11
    v_add_f32_dpp v8, v8, v8 row_ror:8 row_mask:0xf bank_mask:0xf
    v_add_f32_dpp v9, v9, v9 row_ror:8 row_mask:0xf bank_mask:0xf
    v_cvt_pk_bf16_f32 v8, v8, v9
    ds_write_b32 v133, v8
    s_waitcnt lgkmcnt(0)
    s_branch {LJ}
    {L7}:
    """)
    ao_wload(a, WOR if last else WOF, 0, layer)
    a(f"""
    {LJ}:
    s_barrier
    ds_read_b128 v[28:31], v135
    ds_read_b128 v[24:27], v134
    """)
    pst(a,4)
    if KD: pflush(a,6)
    a("s_waitcnt lgkmcnt(0)")
    for aa in range(2):
        a(f"{M16} {v(36+8*aa,4)}, v[28:31], {v(QP+4*aa,4)}, 0")
    for aa in range(2):
        a(f"{M16} {v(32+8*aa,4)}, v[24:27], {v(QP+4*aa,4)}, 0")
    for aa in range(2):
        D=32+8*aa
        a(f"""
        v_mov_b32 v{8+2*aa}, v{D+4}
        v_mov_b32 v{9+2*aa}, v{D+4}
        """)
    for aa in range(2): a(f"v_permlane16_swap_b32 v{8+2*aa}, v{9+2*aa}")
    for aa in range(2): a(f"v_add_f32 v{9+2*aa}, v{9+2*aa}, v58")
    for aa in range(2): a(f"v_rcp_f32 v{9+2*aa}, v{9+2*aa}")
    for aa in range(2):
        D=32+8*aa
        for i in range(8): a(f"v_mul_f32 v{D+i}, v{D+i}, v{9+2*aa}")
        for q in range(4): a(f"v_cvt_pk_bf16_f32 v{12+4*aa+q}, v{D+2*q}, v{D+2*q+1}")
        for q in range(4): a(f"v_max_u32 v{12+4*aa+q}, 1, v{12+4*aa+q}")
        a(f"buffer_store_dwordx2 {v(12+4*aa,2)}, v136, {R_WS}, s44 offen offset:{128*aa} sc1")
    a(f"""
    s_mov_b64 exec, 0xffff
    buffer_store_dwordx2 v[14:15], v137, {R_WS}, s44 offen sc1
    buffer_store_dwordx2 v[18:19], v137, {R_WS}, s44 offen offset:128 sc1
    s_mov_b64 exec, -1
    """)
    if last:
        for r in (QP+2,QP+3,QP+6,QP+7): a(f"v_max_u32 v{r}, 1, v{r}")
        a(f"""
        s_mov_b32 exec_lo, 0
        s_mov_b32 exec_hi, 0xffff0000
        buffer_store_dwordx2 {v(QP+2,2)}, v138, {R_WS}, s42 offen offset:256 sc1
        buffer_store_dwordx2 {v(QP+6,2)}, v138, {R_WS}, s42 offen offset:384 sc1
        s_mov_b64 exec, -1
        """)

def ao_wload(a, wt, part, layer):
    if 'now' in EXP and layer: return
    a(f"""
    s_mul_i32 s40, {ST}, 102400
    s_add_u32 s40, s40, {wt}
    """)
    if part==0:
        lo = 64 if layer else 48
        for f in range(lo,lo+36):
            if f%4==0: a(f"s_add_u32 s41, s40, {f*1024}\n s_mov_b32 m0, {FT+f*1024}")
            a(f"buffer_load_dwordx4 {VL16}, {R_WS}, s41 offen offset:{1024*(f%4)} sc1 lds")
    else:
        a(f"s_lshl_b32 s41, {SW}, 14")
        if not layer: a(f"s_cmp_eq_u32 {SW}, 3\n s_cselect_b32 s41, {84*1024}, s41")
        a("s_add_u32 s40, s40, s41")
        for j in range(16):
            if j%4==0: a(f"s_add_u32 s45, s40, {j*1024}\n s_add_u32 m0, s41, {FT+j*1024}")
            a(f"buffer_load_dwordx4 {VL16}, {R_WS}, s45 offen offset:{1024*(j%4)} sc1 lds")

def ao_main(a, layer):
    ob = O4 if layer else O2
    a(f"""
    s_lshl_b32 s48, {SI}, 2
    s_add_u32 s48, s48, s60
    s_mul_i32 s48, s48, 20480
    s_mul_i32 s41, s61, 10240
    s_add_u32 s48, s48, s41
    s_add_u32 s48, s48, {ob}
    s_add_u32 s49, s48, 4096
    s_add_u32 s50, s48, 8192
    s_mov_b32 s58, {SPIN}
    """)
    ld=lambda j: a(f"buffer_load_dwordx4 {v(PF+4*j,4)}, {VL16}, {R_WS}, s{48+j//4} offen offset:{1024*(j%4)} sc1")
    a(f"s_waitcnt vmcnt({0 if 'noodrain' not in EXP else (6 if layer else 7)})\n s_barrier")
    if "clk" not in EXP: pst(a,7)
    if layer:
        L=a.newlabel("p6l")
        a(f"s_cmp_lg_u32 s61, 0\n s_cbranch_scc1 {L}")
        p6_resload(a)
        a.label(L)
    AHEAD=4
    for e in EXP:
        if e.startswith('ah'): AHEAD=int(e[2:])
    for j in range(AHEAD): ld(j)
    blocks=[]
    def chk(j):
        a(f"""
        v_min3_u32 v5, v{PF+4*j}, v{PF+4*j+1}, v{PF+4*j+2}
        v_min_u32 v5, v5, v{PF+4*j+3}
        v_cmp_eq_u32 vcc, 0, v5
        s_cmp_lg_u64 vcc, 0
        """)
    def wp(j):
        R=a.newlabel("aor"); B=a.newlabel("aob")
        if j+AHEAD<10: ld(j+AHEAD)
        a(f"s_waitcnt vmcnt({min(AHEAD,9-j)})")
        chk(j)
        a(f"s_cbranch_scc1 {R}")
        a.label(B)
        blocks.append((j,R,B))
    g640_core(a, layer==1, "v21", wait_priv=wp)
    def emit_blocks():
        for j,R,B in blocks:
            OK=a.newlabel("aok")
            a.label(R)
            ld(j)
            a("s_waitcnt vmcnt(0)")
            chk(j)
            a(f"s_cbranch_scc0 {OK}")
            retry_check(a, None, R, B, 40+layer)
            a.label(OK)
            for k in range(j+1,min(10,j+AHEAD+1)): ld(k)
            a(f"s_branch {B}")
    a.late.append(emit_blocks)

def p6_prep(a):
    mu_pos(a, "v10", "s62", "v11")
    a(f"""
    v_mul_u32_u24 v22, 1280, {VG}
    v_lshl_add_u32 v22, v10, 3, v22
    s_lshl_b32 s74, {SI}, 1
    s_add_u32 s74, s74, s63
    s_mul_i32 s74, s74, 40960
    s_mul_i32 s41, {ST}, 5120
    s_add_u32 s74, s74, s41
    s_add_u32 s74, s74, {Y3}
    """)
    tok_row(a)("v10", VN)
    a(f"""
    s_movk_i32 s41, 1280
    v_mul_lo_u32 v10, v10, s41
    v_mul_u32_u24 v12, 40, {VG}
    v_add_u32 v23, v10, v12
    s_mul_i32 s75, {ST}, 160
    s_mul_i32 s40, s60, 5120
    s_add_u32 s40, s40, {RS}
    v_add_u32 v9, s40, {VL16}
    """)
    if 'p6c' in EXP:
        a(f"""
        v_mul_u32_u24 v9, 336, {VN}
        v_mul_u32_u24 v10, 80, {VG}
        s_mul_i32 s40, {SW}, {16*336}
        s_add_u32 s40, s40, {RS}
        v_add3_u32 v9, v9, v10, s40
        s_lshl_b32 s42, {SA}, 9
        s_lshl_b32 s43, {SX}, 2
        s_add_u32 s42, s42, s43
        """)
        for k in range(2):
            a(f"""
            v_add_u32 v10, {512*k}, v0
            v_mul_u32_u24 v11, 6554, v10
            v_lshrrev_b32 v11, 16, v11        ; row
            v_mul_u32_u24 v12, 10, v11
            v_sub_u32 v10, v10, v12           ; c
            v_mul_u32_u24 v12, 336, v11
            v_lshl_add_u32 v12, v10, 5, v12
            v_add_u32 v{124+k}, {RS}, v12
            v_lshrrev_b32 v12, 4, v11
            v_and_b32 v13, 3, v11
            v_lshl_add_u32 v12, v12, 2, v13
            v_lshlrev_b32 v12, 5, v12
            v_bfe_u32 v13, v11, 2, 2
            v_add3_u32 v12, v12, v13, s42
            v_mul_u32_u24 v12, 1280, v12
            v_lshl_add_u32 v{126+k}, v10, 4, v12
            """)

def p6_resload(a):
    for nt in range(5): a(f"buffer_load_dwordx2 {v(10+2*nt,2)}, v22, {R_WS}, s74 offen offset:{256*nt} sc1")

def p6_epilogue(a):
    L1=a.newlabel("p6a"); L2=a.newlabel("p6b"); LR=a.newlabel("p6r"); LK=a.newlabel("p6k")
    C='p6c' in EXP
    a(f"s_cmp_eq_u32 s61, 0\n s_cbranch_scc1 {L1}")
    if not C:
        for nt in range(5): a(f"ds_write_b128 v9, {v(AC+4*nt,4)} offset:{nt*1024}")
        a("s_waitcnt lgkmcnt(0)\n s_barrier")
    a(f"""
    s_branch {L2}
    {LR}:
    """)
    p6_resload(a)
    a("s_waitcnt vmcnt(0)")
    retry_check(a, None, L1, LK, 50)
    a(f"""
    {L1}:
    v_min3_u32 v6, v10, v11, v12
    v_min3_u32 v7, v13, v14, v15
    v_min3_u32 v6, v6, v16, v17
    v_min3_u32 v7, v7, v18, v19
    v_min_u32 v6, v6, v7
    v_cmp_eq_u32 vcc, 0, v6
    s_cmp_lg_u64 vcc, 0
    s_cbranch_scc1 {LR}
    {LK}:
    """)
    for q in range(10):
        a(f"""
        v_lshlrev_b32 v6, 16, v{10+q}
        v_and_b32 v7, 0xffff0000, v{10+q}
        v_add_f32 v{AC+2*q}, v{AC+2*q}, v6
        v_add_f32 v{AC+2*q+1}, v{AC+2*q+1}, v7
        """)
    if C:
        a.label(L2)
        for nt in range(5): a(f"ds_write_b128 v9, {v(AC+4*nt,4)} offset:{nt*16}")
        a("s_waitcnt lgkmcnt(0)\n s_barrier")
        LE=a.newlabel("p6e")
        for k in range(2):
            if k: a(f"s_cmp_ge_u32 {SW}, 2\n s_cbranch_scc1 {LE}")
            T=SB+20*k
            a(f"""
            ds_read_b128 {v(T,4)}, v{124+k}
            ds_read_b128 {v(T+4,4)}, v{124+k} offset:16
            ds_read_b128 {v(T+8,4)}, v{124+k} offset:{64*336}
            ds_read_b128 {v(T+12,4)}, v{124+k} offset:{64*336+16}
            s_waitcnt lgkmcnt(0)
            """)
            for i in range(8): a(f"v_add_f32 v{T+i}, v{T+i}, v{T+8+i}")
            for q in range(4): a(f"v_cvt_pk_bf16_f32 v{T+16+q}, v{T+2*q}, v{T+2*q+1}")
            a(f"buffer_store_dwordx4 {v(T+16,4)}, v{126+k}, {R_OUT}, s75 offen {OSF()}")
        a.label(LE)
        return
    a("s_barrier")
    for nt in range(5): a(f"ds_read_b128 {v(SB+4*nt,4)}, v9 offset:{nt*1024}")
    a("s_waitcnt lgkmcnt(0)")
    for q in range(10):
        a(f"""
        v_add_f32 v{AC+2*q}, v{AC+2*q}, v{SB+2*q}
        v_add_f32 v{AC+2*q+1}, v{AC+2*q+1}, v{SB+2*q+1}
        v_cvt_pk_bf16_f32 v{64+q}, v{AC+2*q}, v{AC+2*q+1}
        """)
    a(f"""
    buffer_store_dwordx4 v[64:67], v23, {R_OUT}, s75 offen {OSF()}
    buffer_store_dwordx4 v[68:71], v23, {R_OUT}, s75 offen offset:16 {OSF()}
    buffer_store_dwordx2 v[72:73], v23, {R_OUT}, s75 offen offset:32 {OSF()}
    {L2}:
    """)

def probe(a, beta, dst):
    L=a.newlabel("pb")
    a(f"""
    s_cmp_lg_u32 {SW}, 7
    s_cbranch_scc1 {L}
    s_and_b32 s59, s2, 3
    s_lshl_b32 s59, s59, 12
    s_add_u32 s59, s59, {CNTB(beta)}
    v_lshlrev_b32 v255, 8, {VN}
    buffer_load_dword {dst}, v255, {R_WS}, s59 offen sc1
    {L}:
    """)
def probe_check(a, beta, src, vm):
    L=a.newlabel("pc")
    a(f"""
    s_cmp_lg_u32 {SW}, 7
    s_cbranch_scc1 {L}
    s_waitcnt vmcnt({vm})
    v_cmp_gt_u32 vcc, 16, {src}
    s_cmp_eq_u64 vcc, 0
    s_cbranch_scc1 {L}
    """)
    wait(a, beta, bar=False)
    a.label(L)

def code_touch(a):
    L=a.newlabel("ct")
    a(f"""
    s_cmp_lg_u32 {SW}, 1
    s_cbranch_scc1 {L}
    s_getpc_b64 s[64:65]
    ctbase:
    s_lshr_b32 s66, s2, 3
    s_mul_i32 s66, s66, 12
    v_min_u32 v8, 11, {VL}
    v_add_u32 v8, s66, v8
    v_lshlrev_b32 v8, 7, v8
    v_min_u32 v8, kend-ctbase-4, v8
    v_mov_b32 v9, s65
    v_add_co_u32 v8, vcc, s64, v8
    v_addc_co_u32 v9, vcc, 0, v9, vcc
    global_load_dword v254, v[8:9], off
    {L}:
    """)

def p0_qfirst(a):
    pst(a,0)
    l2_touch(a)
    zero_issue(a)
    pst(a,1)
    LE=a.newlabel("ea"); LF=a.newlabel("eb")
    gen_ftile(a)
    zero_signal(a)
    pst(a,2)
    wq_dma(a)
    wt_loads(a)
    xtile_base(a, "s64")
    L=a.newlabel("nc")
    a(f"s_cmp_ge_u32 s72, 20\n s_cbranch_scc1 {L}")
    fft_consts(a)
    a.label(L)
    side_job(a, False, 0)
    pst(a,3)
    xl=x_regloads(a)
    a(f"""
    v_lshrrev_b32 v7, 2, {VN}
    v_lshl_add_u32 v6, {VG}, 3, v7
    v_lshlrev_b32 v6, 7, v6
    v_lshrrev_b32 v7, 1, v7
    v_and_b32 v11, 1, {VG}
    v_lshl_add_u32 v7, v11, 1, v7
    v_xor_b32 v7, s60, v7
    v_lshl_add_u32 v6, v7, 5, v6
    v_and_b32 v7, 3, {VN}
    v_lshl_add_u32 v7, v7, 3, v6
    s_mul_i32 s40, s61, 40960
    s_add_u32 s40, s40, {WQL}
    v_add_u32 v7, s40, v7
    """)
    L6=a.newlabel("w6")
    a(f"s_cmp_lt_u32 {SW}, 3\n s_cbranch_scc1 {L6}\n s_waitcnt vmcnt(0)\n {L6}:")
    for j in range(4): xl(j)
    a("s_waitcnt lgkmcnt(0)\n s_barrier")
    pst(a,4)
    for j in range(10):
        a(f"ds_read_b64_tr_b16 {v(PF+4*j,2)}, v7 offset:{4096*j}")
        a(f"ds_read_b64_tr_b16 {v(PF+4*j+2,2)}, v7 offset:{4096*j+512}")
        if j%4==3: a("s_waitcnt lgkmcnt(4)")
    init_probe(a)
    L=a.newlabel("zx")
    def zx(k):
        if k==0: a(f"""
            v_mov_b32 v12, 0
            v_mov_b32 v13, 0
            s_mul_i32 s43, s61, 40960
            s_lshl_b32 s44, s60, 9
            s_add_u32 s43, s43, s44
            v_lshlrev_b32 v6, 3, {VL}
            v_add_u32 v6, s43, v6
            s_add_u32 s46, s64, 4096
            s_cmp_ge_u32 s60, 2
            s_cselect_b32 s46, {OOB}, s46
            buffer_store_dwordx2 v[12:13], v6, {R_WS}, s64 offen sc1
            """)
        if k==1: a(f"buffer_store_dwordx2 v[12:13], v6, {R_WS}, s64 offen offset:2048 sc1")
        if k==2: a(f"""
            buffer_store_dwordx2 v[12:13], v6, {R_WS}, s46 offen sc1
            s_cmp_lg_u32 {SW}, 6
            s_cbranch_scc1 {L}
            v_lshlrev_b32 v7, 2, {VL}
            s_lshl_b32 s47, {ST}, 12
            s_lshl_b32 s46, {SI}, 7
            s_add_u32 s47, s47, s46
            s_add_u32 s47, s47, {PV0}
            s_mov_b32 exec_hi, 0
            buffer_store_dword v12, v7, {R_WS}, s47 offen sc1
            s_mov_b32 exec_hi, -1
            {L}:
            """)
    def hook(j):
        if j<3: zx(j)
        if j<6: xl(j+4)
    g640_core(a, True, VL16, wait_priv=hook)
    pst(a,5)
    wq_write(a)
    a("s_waitcnt vmcnt(0)")
    L=a.newlabel("bz")
    a(f"s_cmp_lg_u32 {SW}, 6\n s_cbranch_scc1 {L}")
    init_wait(a)
    a.label(L)
    a("s_waitcnt lgkmcnt(0)\n s_barrier")
    arrive(a, 0)
    wq_stage(a)
    wq_fin(a)
    zfill(a, KVP, (ZCEND-KVP)//1024, 1, 12)
    xe_prep(a, False, sign="v5")
    a("s_waitcnt lgkmcnt(0)")
    rows_read(a, 63)
    a("s_waitcnt lgkmcnt(0)\n s_barrier")
    pst(a,6)
    g640_core(a, False, VL16)
    probe(a, 0, "v252")
    a(f"s_mov_b32 s65, {PV0}\n s_waitcnt vmcnt(0)")
    xtype_epilogue(a, "s64", False, "s65", vm1="v5", extra_write=lambda: probe_check(a, 0, "v252", 0), post_bar=lambda: arrive(a, 1))
    a("s_barrier")
    pst(a,7)
    pflush(a,0)

def p0_xfirst(a):
    pst(a,0)
    T2='t2' in EXP or 't3' in EXP
    if T2:
        touch_x(a); touch_w(a, 4)
        if 't3' in EXP: touch_q(a, 6)
    else: l2_touch(a)
    zero_issue(a)
    pst(a,1)
    gen_ftile(a)
    zero_signal(a)
    pst(a,2)
    if 'p0d' in EXP:
        a("s_waitcnt vmcnt(0)"); pst(a,3)
        rows_dma(a, R_X, tok_row(a)); pst(a,4)
        a("s_waitcnt vmcnt(0)"); pst(a,5)
        wt_loads(a); a("s_waitcnt vmcnt(0)"); pst(a,6)
        pflush(a,6)
    NE = 8
    for e in EXP:
        if e.startswith('ne'): NE=int(e[2:])
    def consts():
        L=a.newlabel("nc")
        a(f"s_cmp_ge_u32 s72, 20\n s_cbranch_scc1 {L}")
        fft_consts(a)
        a.label(L)
    LE=a.newlabel("ea"); LF=a.newlabel("eb")
    if NE>0:
        a(f"s_cmp_ge_u32 {SW}, {NE}\n s_cbranch_scc1 {LE}")
        rows_dma(a, R_X, tok_row(a))
        a.label(LE)
    if NE==8: wt_loads(a)
    if 't2' in EXP: touch_q(a, 6)
    xtile_base(a, "s64")
    consts()
    if NE<8:
        a(f"s_cmp_lt_u32 {SW}, {NE}\n s_cbranch_scc1 {LF}")
        rows_dma(a, R_X, tok_row(a))
        a.label(LF)
        wt_loads(a)
    side_job(a, False, 0)
    pst(a,3)
    wl=wq_loads(a)
    xe_prep(a, False, sign="v5")
    L6=a.newlabel("w6")
    a((f"s_cmp_ge_u32 s72, 20" if 'wtside' in EXP else f"s_cmp_lt_u32 {SW}, 3")+f"\n s_cbranch_scc1 {L6}\n s_waitcnt vmcnt(0)\n {L6}:")
    rows_read(a, 4)
    if 'wqdma' in EXP: a("s_waitcnt lgkmcnt(0)")
    wl(0); wl(1)
    a("s_waitcnt lgkmcnt(0)\n s_barrier")
    pst(a,4)
    g640_core(a, False, VL16, wait_priv=lambda j: (wl(j+2) if j<8 else None))
    pst(a,5)
    init_probe(a)
    a(f"s_mov_b32 s65, {PV0}")
    xtype_epilogue(a, "s64", False, "s65", vm1="v5")
    pst(a,6)
    a("s_waitcnt vmcnt(3)")
    if 'wqdma' in EXP:
        L=a.newlabel("ws"); a(f"s_cmp_lt_u32 {SW}, 5\n s_cbranch_scc1 {L}"); wq_stage(a); a.label(L)
    else: wq_stage(a)
    q_core(a)
    probe(a, 0, "v252")
    wq_write(a)
    if 'b0late' not in EXP: probe_check(a, 0, "v252", 0)
    a("s_waitcnt lgkmcnt(0)\n s_barrier")
    pst(a,7)
    pflush(a,0)

def body(a):
    QF='qfirst' in EXP
    (p0_qfirst if QF else p0_xfirst)(a)
    def fft_phase(layer, k):
        first = layer==0
        xin,xout,var,ba = (X0,X1,PV0,2) if first else (X2,X3,PV2,4)
        S=a.newlabel("side"); J=a.newlabel("join"); S2=a.newlabel("side2")
        qkv_roles(a, layer)
        a(f"s_cmp_ge_u32 s72, 20\n s_cbranch_scc1 {S}")
        if first:
            if not QF: wq_fin(a)
            if 'b0late' not in EXP: fft_w_load(a)
        if first:
            fft_prep(a, first)
        pst(a,2)
        bg=fft_main(a, xin, xout, var, first)
        pst(a,3)
        if ("fd" in EXP and not first) or ("fd1" in EXP and first): pflush(a,6)
        nb=len(bg)
        qkv_prep(a, layer)
        if first and 'lateb1' in EXP: probe_check(a, 1, "v252", 2)
        drain(a); arrive(a, ba)
        if 'atouch' in EXP:
            RX=RXS[layer]; L=a.newlabel("at"); nw=(80*RX+63)//64
            a(f"""
            s_cmp_ge_u32 {SW}, {min(nw,6)}
            s_cbranch_scc1 {L}
            s_lshl_b32 s40, {SW}, 6
            v_add_u32 v8, s40, {VL}
            v_min_u32 v8, {80*RX-1}, v8
            v_lshlrev_b32 v8, 7, v8
            s_and_b32 s40, {SX}, {8//RX-1}
            s_mul_i32 s40, s40, {RX*8*40960}
            s_lshr_b32 s41, s2, 3
            s_mul_i32 s41, s41, {80*RX*128}
            s_add_u32 s40, s40, s41
            s_add_u32 s40, s40, {xout}
            buffer_load_dword v254, v8, {R_WS}, s40 offen sc1
            {L}:
            """)
        J6=a.newlabel("j6")
        if nb:
            a("s_barrier")
            for c in bg: c()
        pst(a,4)
        a(f"s_branch {J if nb else J6}")
        a.label(S)
        if first:
            if not QF:
                wq_fin(a)
                drain(a); arrive(a, 1)
            a(f"s_sub_u32 s66, s72, 20\n s_cmp_ge_u32 s66, 10\n s_cbranch_scc1 {S2}")
            wo_job(a, False)
            S3=a.newlabel("side3")
            a(f"s_branch {S3}")
            a.label(S2)
            gcol_job(a)
            a.label(S3)
            a("s_waitcnt lgkmcnt(0)")
            wait(a, 1)
            qkv_bload(a, 4)
            a("s_waitcnt vmcnt(10)\n s_barrier")
            arrive(a, 5)
        else:
            if 'sbar' in EXP: a("s_barrier")
            wor_loads(a)
            side_job(a, True, 0)
            drain(a); arrive(a, 3)
            qkv_bload(a, 5)
            L=a.newlabel("z4")
            a(f"""
            v_mov_b32 v8, 0
            v_mov_b32 v9, 0
            v_mov_b32 v10, 0
            v_mov_b32 v11, 0
            s_lshl_b32 s41, s67, 10
            s_add_u32 s41, s41, {O4}
            """)
            for i in range(7):
                if 'zloop' in EXP: break
                if i==6: a(f"s_cmp_ge_u32 s67, {5120-6*768}\n s_cbranch_scc1 {L}")
                a(f"buffer_store_dwordx4 v[8:11], {VL16}, {R_WS}, s41 offen sc1\n s_add_u32 s41, s41, {768*1024}")
            a.label(L)
        qkv_prep(a, layer)
        a.label(J)
        a("s_waitcnt vmcnt(0)")
        a.label(J6)
        pst(a,5)
        pflush(a,k)
    def attn_phase(layer, k):
        last = layer==1
        pst(a,0)
        wait(a, 4 if last else 2)
        pst(a,1)
        if "clk" in EXP: a("s_memtime s[84:85]")
        qkv_main(a, layer)
        pst(a,2)
        if "clk" in EXP: a("s_memtime s[98:99]")
        qkv_tail(a, layer)
        pst(a,5)
        a(f"s_mul_i32 s40, s61, 51200\n v_add_u32 v21, s40, {VL16}")
        if last:
            p6_prep(a)
        else:
            xtile_base(a, "s64")
            a(f"s_add_u32 s66, s64, {X1}\n s_add_u32 s64, s64, {X2}\n s_mov_b32 s65, {PV2}")
            xe_prep(a, False, "s66")
            fft_prep(a, False)
        pst(a,6)
        pflush(a,k)
        ao_main(a, layer)
        pst(a,0)
        if last:
            p6_epilogue(a)
            pst(a,1)
            if STAMPS: a("s_waitcnt vmcnt(0)")
            pst(a,2)
            pflush(a,k+1)
        else:
            xtype_epilogue(a, "s64", True, "s65")
            pst(a,6)
            if "xe" in EXP: pflush(a,6)
    fft_phase(0,1)
    attn_phase(0,2)
    fft_phase(1,3)
    attn_phase(1,4)

def build(path):
    n=NAME+"_kernel"
    a=Asm(); a.late=[]
    a.l.append(f".globl {n}\n.p2align 8\n.type {n},@function")
    a.label(n)
    prologue(a)
    if STAMPS:
        for i in range(84,100): a(f"s_mov_b32 s{i}, 0")
    body(a)
    a.label("kexit")
    a("s_endpgm")
    for f in a.late: f()
    a.label("kend")
    hdr=open("cdna_kernels/"+NAME+".s.ref").read().split("; Override")[0]
    txt=hdr+"; @launch grid=(256,1,1) block=(512,1,1) lds=163840\n"+'.amdgcn_target "amdgcn-amd-amdhsa--gfx950"\n.text\n'+a.text()
    txt+=f""".section .rodata,"a"
.p2align 6
.amdhsa_kernel {n}
  .amdhsa_next_free_vgpr 256
  .amdhsa_next_free_sgpr 102
  .amdhsa_accum_offset 256
  .amdhsa_group_segment_fixed_size 0
  .amdhsa_kernarg_size 72
  .amdhsa_user_sgpr_count 2
  .amdhsa_user_sgpr_kernarg_segment_ptr 1
  .amdhsa_system_sgpr_workgroup_id_x 1
.end_amdhsa_kernel
"""
    open(path,"w").write(txt)

if __name__=="__main__":
    if len(sys.argv)>2 and sys.argv[2]=='1': STAMPS=True
    if len(sys.argv)>3: EXP=set(sys.argv[3].split(","))
    EXP ^= DEF
    for e in EXP:
        if e.startswith("rx"): RXS=[int(e[2]),int(e[3])]
    build(sys.argv[1])
```
